```python
import torch

def _softmax(x, axis=-1):
    return torch.softmax(x, dim=axis)

def _gelu(x):
    return torch.nn.functional.gelu(x, approximate='tanh')

def _silu(x):
    return torch.nn.functional.silu(x)

def _sigmoid(x):
    return torch.sigmoid(x)

def _layernorm(x, axis=-1, eps=1e-05):
    m = x.mean(dim=axis, keepdim=True)
    v = x.var(dim=axis, keepdim=True, unbiased=False)
    return (x - m) / torch.sqrt(v + eps)

def _scatter_add(tgt, idx, src, axis=0):
    return tgt.clone().index_add_(axis, idx, src)

def _segment_sum(src, seg, n):
    out = torch.zeros((n,) + src.shape[1:], dtype=src.dtype)
    return out.index_add_(0, seg, src)

def _pad(x, pw):
    flat = tuple((v for pair in reversed(pw) for v in pair))
    return torch.nn.functional.pad(x, flat)
kernel_name = 'sequential_preLN__memory_aug_recurrent_mem_tr__glu_gated_bilinear__prompt'

def setup_inputs():

    _w = lambda a: (lambda t: t.to(torch.bfloat16) if t.is_floating_point() else t)(torch.as_tensor(a))

    def _A_setup():
        B, S, Dm = (1, 2048, 576)
        H, Dh = (32, 128)
        M, seg = (8, 32)
        seg = min(seg, S)
        S = S // seg * seg
        return {'x': _w((lambda *s: torch.randn(*s, dtype=torch.bfloat16) * 0.05)(B, S, Dm)), 'mem0': _w((lambda *s: torch.randn(*s, dtype=torch.bfloat16) * 0.2)(B, M, Dm)), 'Wq': _w((lambda *s: torch.randn(*s, dtype=torch.bfloat16) * 1.6)(Dm, H, Dh) * Dm ** (-0.5)), 'Wk': _w((lambda *s: torch.randn(*s, dtype=torch.bfloat16) * 1.6)(Dm, H, Dh) * Dm ** (-0.5)), 'Wv': _w((lambda *s: torch.randn(*s, dtype=torch.bfloat16) * 0.2)(Dm, H, Dh) * Dm ** (-0.5)), 'Wo': _w((lambda *s: torch.randn(*s, dtype=torch.bfloat16) * 0.2)(H, Dh, Dm) * (H * Dh) ** (-0.5)), 'seg_len': seg}
    _A_in = _A_setup()

    def _B_setup():
        B, S, D, F = (1, 2048, 576, 4608)
        return {'x': _w((lambda *s: torch.randn(*s, dtype=torch.bfloat16) * 0.05)(B, S, D)), 'w_gate': _w((lambda *s: torch.randn(*s, dtype=torch.bfloat16) * 0.2)(D, F) * D ** (-0.5)), 'w_up': _w((lambda *s: torch.randn(*s, dtype=torch.bfloat16) * 0.2)(D, F) * D ** (-0.5)), 'w_down': _w((lambda *s: torch.randn(*s, dtype=torch.bfloat16) * 0.2)(F, D) * F ** (-0.5))}
    _B_in = _B_setup()
    return {'A_x': _A_in['x'], 'A_mem0': _A_in['mem0'], 'A_Wq': _A_in['Wq'], 'A_Wk': _A_in['Wk'], 'A_Wv': _A_in['Wv'], 'A_Wo': _A_in['Wo'], 'A_seg_len': _A_in['seg_len'], 'B_x': _B_in['x'], 'B_w_gate': _B_in['w_gate'], 'B_w_up': _B_in['w_up'], 'B_w_down': _B_in['w_down']}

def reference(A_x, A_mem0, A_Wq, A_Wk, A_Wv, A_Wo, A_seg_len, B_x, B_w_gate, B_w_up, B_w_down):

    def _A_ref(x, mem0, Wq, Wk, Wv, Wo, seg_len):
        B, S, Dm = x.shape
        H, Dh = (Wq.shape[1], Wq.shape[2])
        M = mem0.shape[1]
        scale = Dh ** (-0.5)
        n_seg = S // seg_len
        L = M + seg_len
        idx = torch.arange(L)
        mask = (idx[:, None] < M) | (idx[:, None] >= idx[None, :])
        mem = mem0
        outs = []
        for s in range(n_seg):
            xs = x[:, s * seg_len:(s + 1) * seg_len, :].clone()
            h = torch.concatenate([mem, xs], axis=1)
            q = torch.einsum('btd,dhe->bhte', h, Wq)
            k = torch.einsum('btd,dhe->bhte', h, Wk)
            v = torch.einsum('btd,dhe->bhte', h, Wv)
            scores = torch.einsum('bhqe,bhke->bhqk', q, k) * scale
            scores = torch.where(mask[None, None], scores, -1000000000.0)
            p = _softmax(scores, axis=-1)
            o = torch.einsum('bhqk,bhke->bhqe', p, v)
            o = torch.einsum('bhte,hed->btd', o, Wo)
            mem = o[:, :M, :].clone()
            outs.append(o[:, M:, :])
        return torch.concatenate(outs, axis=1)

    def _B_ref(x, w_gate, w_up, w_down):
        g = torch.einsum('bsd,df->bsf', x, w_gate)
        u = torch.einsum('bsd,df->bsf', x, w_up)
        h = g * u
        return torch.einsum('bsf,fd->bsd', h, w_down)
    x = A_x
    h = x + _A_ref(_layernorm(x, axis=-1), A_mem0, A_Wq, A_Wk, A_Wv, A_Wo, A_seg_len)
    h2 = h + _B_ref(_layernorm(h, axis=-1), B_w_gate, B_w_up, B_w_down)
    return h2
```

```python
from gen import K, vr, ar, sr
from lay import *

STAMP = [False]
OPT = {}
PS = lambda: OPT.get('ps', 9344)

vL, vIdx, vLW, vLW2, vAd, vAk, vId = 0, 1, 2, 3, 4, 5, 6
D0 = 8


def D(i, n=1):
    return vr(D0 + i, n)


S_WS, S_QK, S_WV, S_WO, S_M0 = 4, 8, 12, 16, 20
S_DBG = 24
sW, sH, sStep, sKV, sKM, sPst, sPz, sMr, sMw, sMrs, sBud, sC, sW512, sRole, sT0, sT1, sT2, sT3 = range(26, 44)
sPld = 44
sLo = 48
sTm = 50
sRot = 94
sPar = 59
sKnown, sKvF, sKmF = 97, 98, 99
sKm = 58

LD_SEL = 12288
LD_O = 13312
LD_X = 16384
LD_KV = 32768
LD_RES = 49152
KVF_OFF = 2048 + 384


def stage(t):
    return (t // 3) * 4096 + (t % 3) * 1024


RES_SLABS = [("qk", 7), ("qk", 11), ("qk", 15), ("v", 0), ("v", 4), ("o", 0 * 4 + 0), ("o", 0 * 4 + 3)]
HALF_SLAB = ("o", 1 * 4 + 3)
ALL_SLABS = [("qk", c) for c in range(18)] + [("v", t) for t in range(9)] + [("o", x) for x in range(8)] + [("z", 0)]
REG_SLABS = [s for s in ALL_SLABS if s not in RES_SLABS and s != HALF_SLAB]
ORDER = REG_SLABS + [HALF_SLAB] + RES_SLABS
assert len(ORDER) == 36
FCH = [(0, 1), (1, 0), (2, 3), (3, 2)]

WREG = {}
_n = 0
for s in REG_SLABS:
    for j in range(2):
        WREG[(s, j)] = _n
        _n += 1
WREG[(HALF_SLAB, 1)] = _n
assert _n == 56


def wreg(slab, j, off=0, n=8):
    i = WREG[(slab, j)]
    if i < 25:
        return vr(56 + 8 * i + off, n)
    return ar(8 * (i - 25) + off, n)


def res_addr(slab, j):
    if slab == HALF_SLAB:
        assert j == 0
        return LD_X
    return LD_RES + RES_SLABS.index(slab) * 16384 + j * 2048


def table():
    T = np.zeros((4, 6, 64, 4), np.uint32)
    ONE = 0x3F80
    for w in range(4):
        for l in range(64):
            n, g = l % 16, l // 16
            i, hb = n % 8, n // 8
            idx = 0xEEEE if hb else 0x4444
            smr = (2 + g % 2) * 256 + i * 16 + (2 * hb + g // 2) * 4
            vad = g * 128 + i * 16
            T[w, 0, l] = [idx | (smr << 16), vad, vad + hb * 512, 0]
            idn = [ONE if 4 * g + e == n else 0 for e in range(4)]
            r, c4 = n // 4, n % 4
            f = 2 * r + g % 2
            rowb = (16 * r + 2 * g) * 256
            trqk = rowb + ((64 * w + 32 * (c4 // 2) + 8 * (c4 % 2)) ^ (f << 5))
            trv = rowb + ((64 * w + 8 * c4) ^ (f << 5))
            T[w, 1, l] = [idn[0] | idn[1] << 16, idn[2] | idn[3] << 16, trqk, trv]
            ps = (g // 2) * 512 + (n // 4) * 128 + (g % 2) * 64 + (n % 4) * 16
            zs = (n // 8) * 128 + (2 * g + (n // 4) % 2) * 16 + (n % 4) * 4
            pl = (l >> 3) * PS() + (l & 7) * 16
            o = l & 7
            if w == 3:
                ms = rho(o // 2, g % 2) * 16 + (2 * (o % 2) + g // 2) * 4
            else:
                ms = (o // 4) * 64 + g * 16 + (o % 4) * 4
            T[w, 2, l] = [ps, zs, pl, ms]
            sel = [0] * 8
            if n % 4 < 2:
                sel[4 * (n % 4) + n // 4] = ONE
            T[w, 3, l] = [sel[2 * e] | sel[2 * e + 1] << 16 for e in range(4)]
            q, p = g, n
            f = (w >> 1) * 4 + (w & 1) * 2 + (q >> 1)
            p2 = p ^ (f << 1)
            voz = (4 * (q // 2) + q % 2) * 8192 + p2 * 16
            rowp = (16 * (q // 2) + 2 * (q % 2)) * 1152
            voo = rowp + 288 * (p2 // 4) + 16 * (p2 % 4)
            vozo = rowp + 288 * (p2 // 4) + ((p2 % 4) // 2) * 64 * 1152 + (p2 % 2) * 16
            T[w, 4, l] = [voz, voo, vozo, q * 8192 + p2 * 16]
            x = w * 64 + l
            hA, gA, ii, qq = x // 128, (x // 32) % 4, (x // 4) % 8, x % 4
            T[w, 5, l] = [ii * 1152 + 2 * mcol(0, hA, gA, qq, 0), ii * 1152 + 2 * mcol(8, hA, gA, qq, 0), x * 4, 0]
    return T


def table_text(label):
    T = table().reshape(-1, 8)
    s = f".p2align 8\n.type {label},@object\n{label}:\n"
    for row in T:
        s += ".long " + ",".join(hex(int(x)) for x in row) + "\n"
    s += f".size {label}, {T.size * 4}\n"
    return s


def srd(k, s, off, nbytes):
    k.I(f"s_load_dwordx2 {sr(s, 2)}, s[0:1], {off}")
    return lambda: k.I(f"s_mov_b32 {sr(s + 2)}, {hex(nbytes)}\ns_mov_b32 {sr(s + 3)}, 0x00020000")


def lds_ref(a):
    if a < 65536 - 4096 + 4096:
        return vLW, a
    if a < 131072:
        return vLW2, a - 65536
    return None, a - 131072


def rd_frag(k, dst, slab, j, tmp=None):
    a = res_addr(slab, j)
    reg, off = lds_ref(a)
    out = []
    if reg is None:
        out.append(f"v_add_u32 {D(dst + 7)}, 0x10000, {vr(vLW2)}")
        r = D(dst + 7)
    else:
        r = vr(reg)
    out.append(f"ds_read_b128 {D(dst, 4)}, {r} offset:{off}")
    out.append(f"ds_read_b128 {D(dst + 4, 4)}, {r} offset:{off + 1024}")
    return out


def smf(acc, a, b):
    return f"v_smfmac_f32_16x16x64_bf16 {D(acc, 4)}, {D(a, 4)}, {b}, {vr(vIdx)}"


def prologue(k, tbl, nwg_stride=8, prof=False):
    I = k.I
    fin = [srd(k, S_WS, 104, WS_BYTES), srd(k, S_WV, 32, 576 * 8192), srd(k, S_WO, 40, 32 * 147456),
           srd(k, S_M0, 8, 9216)]
    I(f"s_load_dwordx4 s[60:63], s[0:1], 16")
    I(f"s_load_dwordx2 {sr(S_DBG, 2)}, s[0:1], 96")
    I(f"v_lshrrev_b32 v8, 6, v0")
    I(f"v_readfirstlane_b32 {sr(sW)}, v8")
    I(f"v_and_b32 v0, 63, v0")
    I(f"v_lshlrev_b32 {vr(vL)}, 4, v0")
    I(f"s_lshr_b32 {sr(sH)}, s2, 3")
    I(f"s_getpc_b64 s[64:65]")
    k.L("chain_pc")
    I(f"s_add_u32 s64, s64, {tbl}-chain_pc")
    I(f"s_addc_u32 s65, s65, 0")
    I(f"s_mul_i32 {sr(sT0)}, {sr(sW)}, 6144")
    I(f"v_add_u32 v8, {sr(sT0)}, {vr(vL)}")
    I(f"v_add_u32 v9, 3072, v8")
    I(f"global_load_dwordx4 {D(16, 4)}, v9, s[64:65] offset:1024")
    I(f"global_load_dwordx4 {D(20, 4)}, v8, s[64:65]")
    I(f"global_load_dwordx4 {D(24, 4)}, v8, s[64:65] offset:1024")
    I(f"global_load_dwordx4 {D(28, 4)}, v8, s[64:65] offset:2048")
    I(f"global_load_dwordx4 {D(32, 4)}, v9, s[64:65]")
    I(f"global_load_dwordx4 {D(36, 4)}, v9, s[64:65] offset:2048")
    I(f"s_lshl_b32 {sr(sT0)}, {sr(sW)}, 12")
    I(f"v_add_u32 {vr(vLW)}, {sr(sT0)}, {vr(vL)}")
    I(f"v_add_u32 {vr(vLW2)}, 0x10000, {vr(vLW)}")
    I("s_waitcnt lgkmcnt(0)")
    for f in fin:
        f()
    I(f"s_cmp_lt_u32 {sr(sW)}, 2")
    I(f"s_cselect_b32 {sr(S_QK)}, s60, s62")
    I(f"s_cselect_b32 {sr(S_QK + 1)}, s61, s63")
    I(f"s_mov_b32 {sr(S_QK + 2)}, {576 * 8192}")
    I(f"s_mov_b32 {sr(S_QK + 3)}, 0x00020000")
    I(f"s_and_b32 s66, {sr(sW)}, 1")
    I(f"s_lshr_b32 s67, {sr(sW)}, 1")
    I(f"s_lshl_b32 s68, {sr(sH)}, 8")
    I(f"s_mul_i32 s69, {sr(sH)}, 147456")
    I(f"s_lshl_b32 s70, s66, 17")
    I(f"s_add_u32 s70, s70, s68")
    I(f"s_lshl_b32 s71, {sr(sW)}, 17")
    I(f"s_add_u32 s71, s71, s68")
    I(f"s_lshl_b32 s72, s66, 14")
    I(f"s_add_u32 s72, s72, s68")
    I(f"s_mul_i32 s73, s67, {288 * 8192}")
    I(f"s_add_u32 s73, s73, s72")
    I(f"s_mul_i32 s74, s66, 1152")
    I(f"s_add_u32 s74, s74, s69")
    I(f"s_mul_i32 s77, s67, {32 * 1152}")
    I(f"s_add_u32 s78, s74, s77")
    I(f"s_lshl_b32 s75, s67, 6")
    I(f"s_add_u32 s74, s74, s75")
    I(f"s_add_u32 s75, s74, s77")
    I(f"s_sub_u32 s76, s74, s77")
    I(f"s_add_u32 s76, s76, {32 * 1152}")
    I(f"s_lshl_b32 s79, {sr(sW)}, 12")

    def dma(n):
        kind, x = ORDER[n]
        slot = (n + 4) % 10
        for i in range(4):
            if kind == "qk":
                t, hA = x // 2, x % 2
                if t < 8:
                    base, c, vo = 70, (mcol(t, hA, 0, 0, 0) + 4 * i) * 8192, D(19)
                else:
                    base, c, vo = 72, (144 * (2 * hA + i // 2) + 128 + 8 * (i % 2)) * 8192, D(16)
                d = S_QK
            elif kind == "v":
                if x < 8:
                    base, c, vo = 71, (mcol(x, 0, 0, 0, 0) + 4 * i) * 8192, D(19)
                else:
                    base, c, vo = 73, (144 * (i // 2) + 128 + 8 * (i % 2)) * 8192, D(16)
                d = S_WV
            elif kind == "o":
                reg, f = x // 4, x % 4
                base = 75 if f % 2 == 0 else 76
                c, vo, d = (64 * (f // 2) + 4 * i) * 1152 + 128 * reg, D(17), S_WO
            else:
                base, c, vo, d = 78, 4 * i * 1152 + 256, D(18), S_WO
            I(f"s_add_u32 {sr(sT0)}, s{base}, {c}")
            I(f"s_add_u32 m0, s79, {slot * 16384 + i * 1024}")
            nt = "" if d == S_WO else "nt "
            I(f"buffer_load_dwordx4 {vo}, {sr(d, 4)}, {sr(sT0)} offen {nt}lds")
        k.tag(f"slab{n}")

    for n in range(9):
        dma(n)
    I(f"v_mov_b32 {vr(vIdx)}, {D(20)}")
    I(f"v_mov_b32 {vr(vAd)}, {D(21)}")
    I(f"v_mov_b32 {vr(vAk)}, {D(22)}")
    I(f"v_mov_b32 {vr(vId)}, {D(24)}")
    I(f"v_mov_b32 {vr(vId + 1)}, {D(25)}")
    I(f"v_xor_b32 {D(25)}, 32, {D(27)}")
    I(f"s_movk_i32 {sr(sStep)}, 0")
    I(f"s_movk_i32 {sr(sPar)}, 0")
    I(f"s_mul_i32 {sr(sT0)}, {sr(sH)}, 43")
    I(f"s_lshr_b32 {sr(sT0)}, {sr(sT0)}, 7")
    I(f"s_mul_i32 {sr(sT0)}, {sr(sT0)}, 3")
    I(f"s_sub_u32 {sr(sT0)}, {sr(sH)}, {sr(sT0)}")
    for u in range(3):
        I(f"s_add_u32 {sr(sT1)}, {sr(sT0)}, {u}")
        I(f"s_sub_u32 {sr(sT2)}, {sr(sT1)}, 3")
        I(f"s_cmp_ge_u32 {sr(sT1)}, 3")
        I(f"s_cselect_b32 {sr(sT1)}, {sr(sT2)}, {sr(sT1)}")
        I(f"s_lshl_b32 {sr(sRot + u)}, {sr(sT1)}, 10")
    I(f"s_lshl_b32 {sr(sKV)}, {sr(sH)}, 14")
    I(f"s_lshl_b32 {sr(sKM)}, {sr(sH)}, 13")
    I(f"s_lshl_b32 {sr(sT0)}, {sr(sW)}, 11")
    I(f"s_add_u32 {sr(sKM)}, {sr(sKM)}, {sr(sT0)}")
    I(f"s_add_u32 {sr(sKM)}, {sr(sKM)}, {hex(WS_KM)}")
    I(f"s_mul_i32 {sr(sT1)}, {sr(sH)}, {PS()}")
    I(f"s_add_u32 {sr(sT1)}, {sr(sT1)}, {hex(WS_P)}")
    I(f"s_add_u32 {sr(sPst)}, {sr(sT1)}, {sr(sT0)}")
    I(f"s_lshl_b32 {sr(sT0)}, {sr(sW)}, 8")
    I(f"s_add_u32 {sr(sPz)}, {sr(sT1)}, {sr(sT0)}")
    I(f"s_add_u32 {sr(sPz)}, {sr(sPz)}, 8192")
    I(f"s_lshl_b32 {sr(sT2)}, {sr(sH)}, 1")
    I(f"s_add_u32 {sr(sT2)}, {sr(sT2)}, {sr(sW)}")
    I(f"s_add_u32 {sr(sT3)}, {sr(sH)}, 64")
    I(f"s_cmp_lt_u32 {sr(sW)}, 2")
    I(f"s_cselect_b32 {sr(sT2)}, {sr(sT2)}, {sr(sT3)}")
    I(f"s_min_u32 {sr(sT2)}, {sr(sT2)}, 71")
    I(f"s_lshl_b32 {sr(sT2)}, {sr(sT2)}, 7")
    I(f"s_cmp_lt_u32 {sr(sH)}, 8")
    I(f"s_cselect_b32 {sr(sRole)}, 2, 1")
    I(f"s_cmp_lt_u32 {sr(sW)}, 2")
    I(f"s_cselect_b32 {sr(sRole)}, 0, {sr(sRole)}")
    I(f"s_cmp_eq_u32 {sr(sW)}, 2")
    I(f"s_cselect_b32 {sr(sRole)}, 1, {sr(sRole)}")
    I(f"s_add_u32 {sr(sKm)}, s79, {LD_KV}")
    I(f"s_add_u32 {sr(sKV)}, {sr(sKV)}, s79")
    for ld in range(4):
        I(f"s_add_u32 {sr(sPld + ld)}, {sr(sT2)}, {hex(WS_P + ld * 8 * PS())}")
    I(f"s_add_u32 {sr(sMrs)}, {sr(sT2)}, {hex(WS_M)}")
    I(f"s_add_u32 {sr(sMw)}, {sr(sT2)}, {hex(WS_M + 0x4000)}")
    I(f"s_mul_i32 {sr(sMr)}, {sr(sW)}, 3072")
    I(f"s_add_u32 {sr(sMr)}, {sr(sMr)}, {hex(WS_M + 0x4000)}")
    I(f"s_mov_b32 {sr(sBud)}, 0x80000")
    I(f"s_mov_b32 {sr(sC)}, {hex(int(np.float32(128 ** -0.5 * 1.4426950408889634).view(np.uint32)))}")
    I(f"s_lshl_b32 {sr(sW512)}, {sr(sW)}, 9")
    I(f"s_lshl_b32 {sr(sT0)}, {sr(sH)}, 7")
    I(f"s_lshl_b32 {sr(sT1)}, {sr(sW)}, 2")
    I(f"s_add_u32 {sr(sT0)}, {sr(sT0)}, {sr(sT1)}")
    I(f"s_add_u32 {sr(sKvF)}, {sr(sT0)}, {hex(fl(FL_KV) - KVF_OFF)}")
    I(f"s_add_u32 {sr(sKmF)}, {sr(sT0)}, {hex(fl(FL_KM))}")
    I(f"s_mov_b32 {sr(sLo)}, 0x00ff00ff")
    I(f"s_mov_b32 {sr(sLo + 1)}, 0x00ff00ff")
    I(f"s_cmp_eq_u32 {sr(sRole)}, 1")
    I(f"s_cbranch_scc1 chain_nofill")
    k.snap("fill")
    I(f"v_mov_b64 {D(40, 2)}, -1")
    I(f"v_mov_b64 {D(42, 2)}, -1")
    for sl in range(2):
        for ld in range(4):
            I(f"s_add_u32 {sr(sT0)}, {sr(sPld + ld)}, {hex(sl * 0x80000)}")
            I(f"buffer_store_dwordx4 {D(40, 4)}, {D(30)}, {sr(S_WS, 4)}, {sr(sT0)} offen sc1")
    for sl in range(4):
        I(f"s_add_u32 {sr(sT0)}, {sr(sMrs)}, {hex(sl * 0x4000)}")
        I(f"buffer_store_dword {D(40)}, {D(31)}, {sr(S_WS, 4)}, {sr(sT0)} offen sc1")
    I("s_waitcnt vmcnt(0)")
    k.L("chain_nofill")
    k.restore("fill")

    def wb(n):
        kind = ORDER[n]
        tb = 0
        for j in range(2):
            if kind == HALF_SLAB and j == 1:
                continue
            a = res_addr(kind, j)
            I(f"v_add_u32 {D(24)}, {a}, {vr(vLW)}")
            I(f"ds_write_b128 {D(24)}, {D(tb + 8 * j, 4)}")
            I(f"ds_write_b128 {D(24)}, {D(tb + 8 * j + 4, 4)} offset:1024")

    for n in range(36):
        slab = ORDER[n]
        slot = (n + 4) % 10
        k.wait_tag(f"slab{n}")
        I("s_waitcnt lgkmcnt(0)")
        I("s_barrier")
        if n == 1:
            I(f"s_cmp_lg_u32 {sr(sW)}, 0")
            I(f"s_cbranch_scc1 chain_nosig")
            k.snap("sig")
            I(f"s_getreg_b32 {sr(sT0)}, hwreg(HW_REG_XCC_ID)")
            I(f"s_and_b32 {sr(sT0)}, {sr(sT0)}, 15")
            I(f"s_lshl_b32 {sr(sT0)}, 1, {sr(sT0)}")
            I(f"s_mov_b64 exec, 1")
            I(f"v_mov_b32 {D(40)}, {sr(sT0)}")
            I(f"v_mov_b32 {D(41)}, 0")
            I(f"v_mov_b32 {D(42)}, 1")
            I(f"global_atomic_or {D(43)}, {D(41)}, {D(40)}, {sr(S_DBG, 2)} sc0 sc1")
            I("s_waitcnt vmcnt(0)")
            I(f"global_atomic_add {D(41)}, {D(42)}, {sr(S_DBG, 2)} offset:4 sc1")
            I("s_waitcnt vmcnt(0)")
            I(f"s_mov_b64 exec, -1")
            k.L("chain_nosig")
            k.restore("sig")
        if OPT.get("full"):
            if n == 8:
                I(f"v_mov_b32 {D(41)}, 0")
                I(f"global_load_dword {D(42)}, {D(41)}, {sr(S_DBG, 2)} offset:8 sc1")
            if n == 18:
                I(f"v_readfirstlane_b32 {sr(sT0)}, {D(42)}")
                I(f"s_cmp_lg_u32 {sr(sT0)}, 0")
                I(f"s_cbranch_scc1 chain_clr")
                k.snap("clr")
                k.L("chain_clrl")
                I(f"global_load_dword {D(42)}, {D(41)}, {sr(S_DBG, 2)} offset:8 sc1")
                I(f"s_sub_u32 {sr(sBud)}, {sr(sBud)}, 1")
                I(f"s_cbranch_scc1 chain_end")
                I("s_waitcnt vmcnt(0)")
                I(f"v_readfirstlane_b32 {sr(sT0)}, {D(42)}")
                I(f"s_cmp_eq_u32 {sr(sT0)}, 0")
                I(f"s_cbranch_scc1 chain_clrl")
                k.L("chain_clr")
                k.restore("clr")
                I(f"buffer_load_dword {D(42)}, off, {sr(S_WS, 4)}, {sr(sKvF)} offset:{KVF_OFF} sc1")
            if n == 29:
                I(f"v_readfirstlane_b32 {sr(sKnown)}, {D(42)}")
                I(f"s_cmp_lg_u32 {sr(sKnown)}, 0")
                I(f"s_cbranch_scc1 chain_kv0")
                k.snap("kv0")
                k.L("chain_kv0l")
                I(f"buffer_load_dword {D(42)}, off, {sr(S_WS, 4)}, {sr(sKvF)} offset:{KVF_OFF} sc1")
                I(f"s_sub_u32 {sr(sBud)}, {sr(sBud)}, 1")
                I(f"s_cbranch_scc1 chain_end")
                I("s_waitcnt vmcnt(0)")
                I(f"v_readfirstlane_b32 {sr(sKnown)}, {D(42)}")
                I(f"s_cmp_eq_u32 {sr(sKnown)}, 0")
                I(f"s_cbranch_scc1 chain_kv0l")
                k.L("chain_kv0")
                k.restore("kv0")
        if n >= 29:
            wb(n - 1)
        if n + 9 < 36:
            dma(n + 9)
        isqk = slab[0] == "qk"
        for j in range(2):
            src = 26 if isqk else (27 if j == 0 else 25)
            if j == 0 or not isqk:
                I(f"v_add_u32 {D(44 + j)}, {slot * 16384}, {D(src)}")
            areg = D(44) if isqk else D(44 + j)
            for u in range(4):
                off = (8 * (u // 2) + u % 2) * 256 + (16 * j if isqk else 0)
                if (slab, j) in WREG:
                    dst = wreg(slab, j, 2 * u, 2)
                else:
                    dst = D(8 * j + 2 * u, 2)
                I(f"ds_read_b64_tr_b16 {dst}, {areg} offset:{off}")
        if n == 29:
            I(f"ds_write_b128 {vr(vLW)}, {D(28, 4)} offset:3072")
            I(f"ds_write_b128 {vr(vL)}, {D(32, 4)} offset:{LD_SEL}")
            for t in range(9):
                for c in range(2):
                    if t < 8:
                        I(f"buffer_load_ushort {D((16 if c else 28) + t)}, {D(36)}, {sr(S_M0, 4)}, 0 offen "
                          f"offset:{2 * mcol(t, 0, 0, 0, c)}")
                    else:
                        I(f"buffer_load_ushort {D(39 + c)}, {D(37)}, {sr(S_M0, 4)}, 0 offen offset:{4 * c}")
            I(f"s_mov_b32 m0, {sr(sKm)}")
            for i in range(4):
                I(f"buffer_load_dwordx4 {vr(vL)}, {sr(S_WS, 4)}, {sr(sKV)} offen offset:{i * 1024} sc1 lds")
        if n == 31:
            for t in range(9):
                lo, hi = (D(28 + t), D(16 + t)) if t < 8 else (D(39), D(40))
                I(f"v_lshl_or_b32 {lo}, {hi}, 16, {lo}")
                I(f"ds_write_b32 {D(38)}, {lo} offset:{stage(t)}")
    I("s_waitcnt lgkmcnt(0)")
    I("s_barrier")
    wb(35)
    if OPT.get("full"):
        I(f"v_mov_b32 {D(41)}, {sr(sKnown)}")
        I(f"ds_write_b32 {vr(vLW)}, {D(41)} offset:{LD_X + 3072}")
    I(f"s_add_u32 {sr(sKV)}, {sr(sKV)}, {32 * 16384}")
    I(f"v_mov_b32 {D(41)}, 0")
    k.L("chain_init")
    I(f"global_load_dwordx2 {D(42, 2)}, {D(41)}, {sr(S_DBG, 2)} sc1")
    I(f"s_sub_u32 {sr(sBud)}, {sr(sBud)}, 1")
    I(f"s_cbranch_scc1 chain_end")
    I("s_waitcnt vmcnt(0)")
    I(f"v_readfirstlane_b32 {sr(sT0)}, {D(43)}")
    I(f"v_readfirstlane_b32 {sr(sT1)}, {D(42)}")
    I(f"s_cmp_lt_u32 {sr(sT0)}, 32")
    I(f"s_cbranch_scc1 chain_init")
    I("s_waitcnt vmcnt(0) lgkmcnt(0)")
    I("s_barrier")
    for r in range(0, 8, 2):
        I(f"v_mov_b64 {D(r, 2)}, 0")
    I("s_waitcnt lgkmcnt(0)")
    k.join("pro")
    if prof:
        I(f"s_memtime {sr(sTm, 2)}")
        I("s_waitcnt lgkmcnt(0)")
    I(f"s_bcnt1_i32_b32 {sr(sT1)}, {sr(sT1)}")
    I(f"s_cmp_eq_u32 {sr(sT1)}, 1")
    I(f"s_cbranch_scc0 chain_step_s")


def weave(k, main, fill, per=2):
    for i, m in enumerate(main):
        k.I(m)
        for x in fill.get(i, []):
            if callable(x):
                x()
            else:
                k.I(x)


def step(k, sfx, sc):
    I = k.I

    def st(i):
        if STAMP[0]:
            k.raw(f"\ts_memtime s[{60 + 2 * i}:{61 + 2 * i}]")

    k.L(f"chain_step_{sfx}")
    st(0)
    A = [8, 12, 16, 20]
    ab = lambda ch: A[(ch + 2) % 4]
    rdA = lambda ch: f"ds_read_b128 {D(ab(ch), 4)}, {vr(vAd)} offset:{stage(ch // 2) + (ch % 2) * 512}"
    rdAv = lambda t, b: f"ds_read_b128 {D(b, 4)}, {vr(vAk)} offset:{stage(t)}"
    RB = {(("qk", 7), 0): 24, (("qk", 7), 1): 32, (("qk", 11), 0): 40, (("qk", 11), 1): 24, (("qk", 15), 0): 32,
          (("qk", 15), 1): 40, (("v", 0), 0): 40, (("v", 0), 1): 24, (("v", 4), 0): 40, (("v", 4), 1): 24,
          (("o", 0), 0): 32, (("o", 0), 1): 40, (("o", 3), 0): 32, (("o", 3), 1): 40, (("o", 7), 0): 32}
    W = lambda s, j: D(RB[(s, j)], 8) if (s, j) in RB else wreg(s, j)
    rf = lambda s, j: rd_frag(k, RB[(s, j)], s, j)
    kv = lambda i: f"buffer_load_dwordx4 {vr(vL)}, {sr(S_WS, 4)}, {sr(sKV)} offen offset:{i * 1024} sc1 lds"
    I(rdA(0))
    I(rdA(1))
    if OPT.get("full"):
        I(f"s_add_u32 {sr(sT0)}, {sr(sStep)}, 2")
        I(f"s_min_u32 {sr(sT0)}, {sr(sT0)}, 64")
        I(f"s_cmp_lt_u32 {sr(sKnown)}, {sr(sT0)}")
        I(f"s_cbranch_scc1 chain_kvw_{sfx}")
        k.L(f"chain_kvok_{sfx}")
    if not OPT.get("nopf"):
        if OPT.get("early"):
            I(f"v_lshlrev_b32 {D(8)}, 1, {vr(vL)}")
            I(f"s_add_u32 m0, {sr(sKm)}, {LD_X - LD_KV + 1024}")
            if OPT.get("full"):
                I(f"v_mov_b32 {D(46)}, {sr(sStep)}")
                I("s_mov_b64 exec, 1")
                I(f"buffer_store_dword {D(46)}, off, {sr(S_WS, 4)}, {sr(sKmF)} sc1")
                I(f"buffer_load_dword off, {sr(S_WS, 4)}, {sr(sKvF)} offset:{KVF_OFF} sc1 lds")
                I("s_mov_b64 exec, -1")
            I(f"buffer_load_dword {D(8)}, {sr(S_WS, 4)}, {sr(sKV)} offen offset:2048 sc1 lds")
            I(f"s_mov_b32 m0, {sr(sKm)}")
        else:
            I(f"v_lshlrev_b32 {D(8)}, 2, {vr(vL)}")
            I(f"s_add_u32 m0, {sr(sKm)}, {LD_X - LD_KV + 3072}")
            I(f"buffer_load_dword {D(8)}, {sr(S_WS, 4)}, {sr(sKV)} offen sc1 lds")
    I(rdA(2))
    I(rdA(3))
    main, fill = [], {}
    for ch in range(18):
        for j in range(2):
            main.append(smf(4 * j, ab(ch), W(("qk", ch), j)))
        if ch + 4 < 18:
            fill.setdefault(2 * ch + 1, []).append(rdA(ch + 4))

    def put(pos, lst):
        for x in lst:
            while len(fill.get(pos, [])) >= 2:
                pos += 1
            fill.setdefault(pos, []).append(x)

    if OPT.get("full"):
        put(0, [f"ds_read_b32 {D(47)}, {vr(vLW)} offset:{LD_X + 3072 + 384}"])
        put(6, [f"v_readfirstlane_b32 {sr(sKnown)}, {D(47)}"])
    else:
        put(6, [f"s_waitcnt vmcnt({0 if OPT.get('nopf') else 1})"])
    put(6, rf(("qk", 7), 0))
    put(8, rf(("qk", 7), 1))
    put(10, rf(("qk", 11), 0))
    put(16, rf(("qk", 11), 1))
    put(18, rf(("qk", 15), 0))
    put(24, rf(("qk", 15), 1))
    put(26, rf(("v", 0), 1))
    put(29, [rdAv(0, 8)])
    put(31, [rdAv(1, 12)])
    put(32, rf(("v", 0), 0))
    put(33, [f"v_mov_b64 {D(32 + r, 2)}, 0" for r in range(0, 8, 2)])
    weave(k, main, fill)
    st(1)
    V = lambda t, b: [smf(32 + 4 * j, b, W(("v", t), j)) for j in range(2)]
    for x in V(0, 8):
        I(x)
    I(f"v_cvt_pk_bf16_f32 {D(16)}, {D(0)}, {D(1)}")
    I(f"v_cvt_pk_bf16_f32 {D(17)}, {D(2)}, {D(3)}")
    I(f"ds_read_b128 {D(24, 4)}, {vr(vLW)} offset:{LD_KV}")
    I(f"ds_read_b128 {D(28, 4)}, {vr(vLW)} offset:{LD_KV + 1024}")
    I(f"v_mfma_f32_16x16x16_bf16 {D(0, 4)}, {D(16, 2)}, {vr(vId, 2)}, 0")
    I(f"v_cvt_pk_bf16_f32 {D(18)}, {D(4)}, {D(5)}")
    I(f"v_cvt_pk_bf16_f32 {D(19)}, {D(6)}, {D(7)}")
    I(rdAv(2, 8))
    I(f"v_mfma_f32_16x16x16_bf16 {D(4, 4)}, {D(18, 2)}, {vr(vId, 2)}, 0")
    x = rf(("v", 4), 0)
    I(x[0])
    I(V(1, 12)[0])
    I(x[1])
    for y in x[2:]:
        I(y)
    I(V(1, 12)[1])
    I(f"v_cvt_pk_bf16_f32 {D(16)}, {D(0)}, {D(1)}")
    I(f"v_cvt_pk_bf16_f32 {D(17)}, {D(2)}, {D(3)}")
    I(rdAv(3, 12))
    I(f"v_cvt_pk_bf16_f32 {D(18)}, {D(4)}, {D(5)}")
    I(f"v_cvt_pk_bf16_f32 {D(19)}, {D(6)}, {D(7)}")
    if not OPT.get("wst"):
        st(2)
    I(f"v_mfma_f32_16x16x32_bf16 {D(20, 4)}, {D(16, 4)}, {D(16, 4)}, 0")
    I(f"buffer_store_dwordx4 {D(16, 4)}, {vr(vL)}, {sr(S_WS, 4)}, {sr(sKM)} offen sc1")
    I(f"v_mfma_f32_16x16x32_bf16 {D(0, 4)}, {D(24, 4)}, {D(16, 4)}, 0")
    I(f"v_mfma_f32_16x16x32_bf16 {D(4, 4)}, {D(28, 4)}, {D(16, 4)}, 0")
    x = rf(("v", 4), 1)
    I(rdAv(4, 16))
    I(V(2, 8)[0])
    for y in x:
        I(y)
    I(V(2, 8)[1])
    I(rdAv(5, 8))
    I(f"s_mov_b64 exec, {sr(sLo, 2)}")
    I(f"ds_write_b128 {vr(vLW)}, {D(20, 4)} offset:{LD_X + 3072}")
    I(f"ds_write_b128 {vr(vLW)}, {D(0, 4)} offset:{LD_X + 2048}")
    I(f"ds_write_b128 {vr(vLW)}, {D(4, 4)} offset:{LD_X + 2048 + 128}")
    k.tagl("sw")
    I(f"s_mov_b64 exec, -1")
    if OPT.get("early"):
        I(kv(0))
        I(kv(1))
    I(V(3, 12)[0])
    I(f"v_lshrrev_b32 {D(23)}, 16, {vr(vIdx)}")
    I(V(3, 12)[1])
    I(rdAv(6, 12))
    k.wait_tagl("sw")
    st(4)
    I("s_barrier")
    st(5)
    sx = lambda w, d: f"ds_read_b128 {D(d, 4)}, {vr(vL)} offset:{LD_X + 2048 + w * 4096}"
    I(sx(0, 0))
    I(sx(1, 4))
    I(V(4, 16)[1])
    I(sx(2, 24))
    I(sx(3, 28))
    I(V(4, 16)[0])
    o0 = (LD_X + 3072) // 256
    I(f"ds_read2st64_b32 {D(20, 2)}, {D(23)} offset0:{o0} offset1:{o0 + 16}")
    I(f"ds_read2st64_b32 {D(22, 2)}, {D(23)} offset0:{o0 + 32} offset1:{o0 + 48}")
    I(V(5, 8)[0])
    I(rdAv(7, 16))
    I(V(5, 8)[1])
    I(rdAv(8, 8))
    I(V(6, 12)[0])
    I(V(6, 12)[1])
    for r in range(4):
        I(f"v_add_f32 {D(r)}, {D(r)}, {D(4 + r)}")
    for r in range(4):
        I(f"v_add_f32 {D(24 + r)}, {D(24 + r)}, {D(28 + r)}")
    I(f"v_add_f32 {D(20)}, {D(20)}, {D(21)}")
    I(f"v_add_f32 {D(22)}, {D(22)}, {D(23)}")
    for r in range(4):
        I(f"v_add_f32 {D(r)}, {D(r)}, {D(24 + r)}")
    I(f"v_add_f32 {D(4)}, {D(20)}, {D(22)}")
    I(f"v_max3_f32 {D(5)}, {D(0)}, {D(1)}, {D(2)}")
    I(f"v_max3_f32 {D(5)}, {D(5)}, {D(3)}, {D(4)}")
    I(V(7, 16)[0])
    I(f"ds_read_b128 {D(24, 4)}, {vr(vLW)} offset:{LD_KV + 2048}")
    I(f"v_max_f32_dpp {D(6)}, {D(5)}, {D(5)} row_ror:8 row_mask:0xf bank_mask:0xf")
    I(f"v_max_f32_dpp {D(7)}, {D(5)}, {D(5)} row_ror:8 row_mask:0xf bank_mask:0xf")
    I(V(7, 16)[1])
    I(f"ds_read_b128 {D(28, 4)}, {vr(vLW)} offset:{LD_KV + 3072}")
    I(f"v_permlane16_swap_b32 {D(6)}, {D(7)}")
    I(f"v_max_f32 {D(5)}, {D(6)}, {D(7)}")
    I(f"v_max_f32 {D(6)}, {D(6)}, {D(7)}")
    I(V(8, 8)[0])
    I(f"v_mov_b32 {D(21)}, 0")
    I(f"v_permlane32_swap_b32 {D(5)}, {D(6)}")
    I(V(8, 8)[1])
    I(f"v_max_f32 {D(5)}, {D(5)}, {D(6)}")
    I(f"v_mul_f32 {D(5)}, {sr(sC)}, {D(5)}")
    for r in range(5):
        I(f"v_fma_f32 {D(r)}, {D(r)}, {sr(sC)}, -{D(5)}")
    for r in range(5):
        I(f"v_exp_f32 {D(r)}, {D(r)}")
    x = rf(("o", 0), 1)
    I(f"v_cvt_pk_bf16_f32 {D(12)}, {D(0)}, {D(1)}")
    I(f"v_cvt_pk_bf16_f32 {D(13)}, {D(2)}, {D(3)}")
    I(f"v_mov_b32 {D(22)}, 0")
    I(f"v_mov_b32_dpp {D(5)}, {D(4)} row_ror:8 row_mask:0xf bank_mask:0xf")
    I(f"v_mov_b32_dpp {D(14)}, {D(12)} row_ror:8 row_mask:0xf bank_mask:0xf")
    I(f"v_mov_b32_dpp {D(15)}, {D(13)} row_ror:8 row_mask:0xf bank_mask:0xf")
    I(f"v_add_f32 {D(8)}, {D(0)}, {D(1)}")
    I(f"v_add_f32 {D(9)}, {D(2)}, {D(3)}")
    I(f"v_cvt_pk_bf16_f32 {D(20)}, {D(4)}, {D(5)}")
    I(f"v_cvt_pk_bf16_f32 {D(23)}, {D(4)}, {D(5)}")
    I(f"v_add_f32 {D(8)}, {D(8)}, {D(4)}")
    I(f"v_mfma_f32_16x16x32_bf16 {D(0, 4)}, {D(24, 4)}, {D(12, 4)}, 0")
    I(f"v_permlane32_swap_b32 {D(32)}, {D(33)}")
    I(f"v_permlane32_swap_b32 {D(34)}, {D(35)}")
    I(f"v_mfma_f32_16x16x32_bf16 {D(4, 4)}, {D(28, 4)}, {D(12, 4)}, 0")
    I(f"v_permlane32_swap_b32 {D(36)}, {D(37)}")
    I(f"v_permlane32_swap_b32 {D(38)}, {D(39)}")
    I(f"v_add_f32 {D(32)}, {D(32)}, {D(33)}")
    I(f"v_add_f32 {D(34)}, {D(34)}, {D(35)}")
    I(f"v_add_f32 {D(36)}, {D(36)}, {D(37)}")
    I(f"v_add_f32 {D(38)}, {D(38)}, {D(39)}")
    I(f"v_cvt_pk_bf16_f32 {D(10)}, {D(32)}, {D(34)}")
    I(f"v_cvt_pk_bf16_f32 {D(11)}, {D(36)}, {D(38)}")
    I(f"v_add_f32 {D(8)}, {D(8)}, {D(9)}")
    I(f"v_lshrrev_b32 {D(16)}, 1, {vr(vL)}")
    I(f"v_mfma_f32_16x16x16_bf16 {D(0, 4)}, {D(10, 2)}, {D(20, 2)}, {D(0, 4)}")
    I(f"v_add_f32_dpp {D(9)}, {D(8)}, {D(8)} row_ror:8 row_mask:0xf bank_mask:0xf")
    I(f"v_add_f32_dpp {D(8)}, {D(8)}, {D(8)} row_ror:8 row_mask:0xf bank_mask:0xf")
    I(f"v_mfma_f32_16x16x16_bf16 {D(4, 4)}, {D(10, 2)}, {D(22, 2)}, {D(4, 4)}")
    I(f"buffer_store_dwordx2 {D(10, 2)}, {D(16)}, {sr(S_WS, 4)}, {sr(sKM)} offen offset:1024 sc1")
    I(f"v_permlane16_swap_b32 {D(8)}, {D(9)}")
    I(f"v_add_f32 {D(17)}, {D(8)}, {D(9)}")
    I(f"v_add_f32 {D(8)}, {D(8)}, {D(9)}")
    I(f"s_cmp_eq_u32 {sr(sStep)}, 63")
    I(f"s_cbranch_scc1 chain_end")
    I(f"v_permlane32_swap_b32 {D(8)}, {D(17)}")
    I(f"v_add_f32 {D(8)}, {D(8)}, {D(17)}")
    I(f"v_rcp_f32 {D(8)}, {D(8)}")
    I(f"v_add_u32 {D(16)}, {sr(sW512)}, {vr(vAd)}")
    for r in range(0, 8, 2):
        I(f"v_pk_mul_f32 {D(r, 2)}, {D(r, 2)}, {D(8, 2)} op_sel_hi:[1,0]")
    for r in range(4):
        I(f"v_cvt_pk_bf16_f32 {D(r)}, {D(2 * r)}, {D(2 * r + 1)}")
    I(f"s_mov_b64 exec, {sr(sLo, 2)}")
    I(f"ds_write_b128 {D(16)}, {D(0, 4)} offset:{LD_O}")
    k.tagl("ow")
    I(f"s_mov_b64 exec, -1")
    if OPT.get("early"):
        I(kv(2))
        I(kv(3))
    for y in rf(("o", 0), 0) + x:
        I(y)
    I(f"v_xor_b32 {D(23)}, 512, {vr(vAk)}")
    for r in (0, 2, 4, 6, 24, 26, 28, 30):
        I(f"v_mov_b64 {D(r, 2)}, 0")
    k.wait_tagl("ow")
    st(6)
    I("s_barrier")
    st(7)
    I(f"ds_read_b128 {D(8, 4)}, {vr(vAk)} offset:{LD_O}")
    I(f"ds_read_b128 {D(12, 4)}, {D(23)} offset:{LD_O}")
    I(f"ds_read_b128 {D(16, 4)}, {vr(vAk)} offset:{LD_O + 1024}")
    I(f"ds_read_b128 {D(20, 4)}, {D(23)} offset:{LD_O + 1024}")
    F = lambda f: 8 + 4 * f
    acc = {(0, 0): 24, (0, 1): 28, (1, 0): 0, (1, 1): 40}
    seq = [("z", 0), (0, 0, 0), (0, 1, 0), (0, 0, 1), (0, 1, 1), ("z", 1), (0, 0, 2), (0, 1, 2), (0, 0, 3), (0, 1, 3)]
    seq += [(1, c, f) for f in range(4) for c in range(2)]
    main = []
    for e in seq:
        if e[0] == "z":
            main.append(smf(4, F(2 * e[1]), W(("z", 0), e[1])))
        else:
            reg, c, f = e
            main.append(smf(acc[(reg, c)], F(f), W(("o", reg * 4 + f), c)))
    fill = {}
    put(1, rf(("o", 3), 0))
    put(2, rf(("o", 3), 1))
    put(8, rf(("o", 7), 0))
    put(9, [f"v_mov_b64 {D(40, 2)}, 0", f"v_mov_b64 {D(42, 2)}, 0"])
    put(10, [f"ds_read_b128 {D(44, 4)}, {vr(vLW)} offset:3072", f"v_permlane32_swap_b32 {D(4)}, {D(5)}",
             f"v_permlane32_swap_b32 {D(6)}, {D(7)}", f"v_cvt_pk_bf16_f32 {D(24)}, {D(24)}, {D(25)}",
             f"v_cvt_pk_bf16_f32 {D(25)}, {D(26)}, {D(27)}", f"v_cvt_pk_bf16_f32 {D(26)}, {D(28)}, {D(29)}",
             f"v_cvt_pk_bf16_f32 {D(27)}, {D(30)}, {D(31)}", f"v_add_f32 {D(4)}, {D(4)}, {D(5)}",
             f"v_add_f32 {D(6)}, {D(6)}, {D(7)}", f"v_cvt_pk_bf16_f32 {D(4)}, {D(4)}, {D(6)}",
             f"v_bfi_b32 {D(24)}, 1, {sr(sPar)}, {D(24)}", f"v_bfi_b32 {D(4)}, 1, {sr(sPar)}, {D(4)}",
             f"buffer_store_dwordx4 {D(24, 4)}, {D(44)}, {sr(S_WS, 4)}, {sr(sPst)} offen{sc}",
             f"buffer_store_dword {D(4)}, {D(45)}, {sr(S_WS, 4)}, {sr(sPz)} offen{sc}"])
    weave(k, main, fill)
    st(8)
    I(f"ds_read_b128 {D(16, 4)}, {vr(vL)} offset:{LD_SEL}")
    I(f"v_cvt_pk_bf16_f32 {D(0)}, {D(0)}, {D(1)}")
    I(f"v_cvt_pk_bf16_f32 {D(1)}, {D(2)}, {D(3)}")
    I(f"v_bfi_b32 {D(0)}, 1, {sr(sPar)}, {D(0)}")
    I(f"v_cvt_pk_bf16_f32 {D(2)}, {D(40)}, {D(41)}")
    I(f"v_cvt_pk_bf16_f32 {D(3)}, {D(42)}, {D(43)}")
    late = not OPT.get("early")
    if late:
        I(f"s_mov_b32 m0, {sr(sKm)}")
    I(f"s_cmp_eq_u32 {sr(sRole)}, 0")
    I(f"buffer_store_dwordx4 {D(0, 4)}, {D(44)}, {sr(S_WS, 4)}, {sr(sPst)} offen offset:1024{sc}")
    I(f"s_cbranch_scc1 chain_h1a_{sfx}")
    I(f"s_cmp_eq_u32 {sr(sRole)}, 2")
    I(f"s_cbranch_scc1 chain_h1z_{sfx}")
    if late:
        I(kv(0))
        I(kv(1))
    I("s_waitcnt lgkmcnt(0)")
    k.join("noh1")
    I(f"s_branch chain_b3_{sfx}")

    def pl(b):
        for ld in range(4):
            I(f"buffer_load_dwordx4 {D(b + 4 * ld, 4)}, {D(46)}, {sr(S_WS, 4)}, {sr(sPld + ld)} offen sc1")

    def red(b, z, first=False):
        ne = lambda d, x, y: f"v_bitop3_b32 {D(d)}, {D(x)}, {D(y)}, {sr(sPar)} bitop3:0x7e"
        for ld in range(4):
            I(f"v_mfma_f32_16x16x32_bf16 {D(40, 4)}, {D(16, 4)}, {D(b + 4 * ld, 4)}, {'0' if ld == 0 else D(40, 4)}")
            if first and ld in (0, 3):
                st(14 if ld == 0 else 15)
            if z:
                I(ne(21, b + 4 * ld, b + 4 * ld + 1))
                I(ne(22, b + 4 * ld + 2, b + 4 * ld + 3))
                I(f"v_or3_b32 {D(20)}, {D(21)}, {D(22)}, {D(20) if ld else D(22)}")
            elif ld % 2:
                I(ne(20 + ld // 2, b + 4 * ld - 4, b + 4 * ld))
        if z:
            I(f"v_and_b32 {D(20)}, 1, {D(20)}")
        else:
            I(f"v_bitop3_b32 {D(20)}, {D(20)}, {D(21)}, 1 bitop3:0xa8")
        I(f"v_cmp_ne_u32 vcc, 0, {D(20)}")

    for z in (1, 0):
        x = "z" if z else "a"
        k.L(f"chain_h1{x}_{sfx}")
        st(9)
        for _ in range(OPT.get("d1", 0)):
            I("s_nop 7")
        if OPT.get("a1"):
            I("s_waitcnt vmcnt(0)")
        pl(24)
        if late:
            I(kv(0))
            I(kv(1))
        if OPT.get("one1"):
            st(3)
            I("s_waitcnt lgkmcnt(0)")
            if OPT.get("wst"):
                I("s_waitcnt vmcnt(4)")
                st(2)
            red(24, z, True)
            I(f"s_cbranch_vccz chain_h1d_{sfx}")
            k.L(f"chain_h1l{x}_{sfx}")
            pl(24)
            I(f"s_sub_u32 {sr(sBud)}, {sr(sBud)}, 1")
            I(f"s_cbranch_scc1 chain_end")
            red(24, z)
            I(f"s_cbranch_vccnz chain_h1l{x}_{sfx}")
        else:
            for _ in range(OPT.get("e1", 0)):
                I("s_nop 7")
            pl(0)
            I("s_waitcnt lgkmcnt(0)")
            red(24, z)
            I(f"s_cbranch_vccz chain_h1d_{sfx}")
            k.L(f"chain_h1l{x}_{sfx}")
            pl(24)
            I(f"s_sub_u32 {sr(sBud)}, {sr(sBud)}, 1")
            I(f"s_cbranch_scc1 chain_end")
            red(0, z)
            I(f"s_cbranch_vccz chain_h1d_{sfx}")
            pl(0)
            red(24, z)
            I(f"s_cbranch_vccnz chain_h1l{x}_{sfx}")
        if z:
            I(f"s_branch chain_h1d_{sfx}")
        k.forget("h1")
    k.L(f"chain_h1d_{sfx}")
    I(f"v_mov_b32 {D(20)}, -1")
    I(f"v_add_f32_dpp {D(40)}, {D(40)}, {D(40)} row_ror:8 row_mask:0xf bank_mask:0xf")
    I(f"v_add_f32_dpp {D(41)}, {D(41)}, {D(41)} row_ror:8 row_mask:0xf bank_mask:0xf")
    I(f"v_cvt_pk_bf16_f32 {D(40)}, {D(40)}, {D(41)}")
    I(f"buffer_store_dword {D(40)}, {D(47)}, {sr(S_WS, 4)}, {sr(sMw)} offen{sc}")
    st(10)
    I(f"buffer_store_dword {D(20)}, {D(47)}, {sr(S_WS, 4)}, {sr(sMrs)} offen{sc}")
    if OPT.get("a2"):
        I("s_waitcnt vmcnt(1)")
    k.L(f"chain_b3_{sfx}")
    I("s_barrier")
    st(11)
    I(f"s_add_u32 {sr(sStep)}, {sr(sStep)}, 1")
    I(f"s_add_u32 {sr(sKM)}, {sr(sKM)}, {32 * 8192}")
    for r in (sPst, sPz, sPld, sPld + 1, sPld + 2, sPld + 3):
        I(f"s_xor_b32 {sr(r)}, {sr(r)}, 0x80000")
    I(f"s_mov_b32 {sr(sMrs)}, {sr(sMw)}")
    I(f"s_bfe_u32 {sr(sPar)}, {sr(sStep)}, 0x10001")
    I(f"s_add_u32 {sr(sMw)}, {sr(sMw)}, 0x4000")
    I(f"s_and_b32 {sr(sMw)}, {sr(sMw)}, 0xfff0ffff")
    I(f"s_cmp_eq_u32 {sr(sW)}, 3")
    I(f"s_cbranch_scc0 chain_h2_{sfx}")
    if late:
        I(kv(2))
        I(kv(3))
        I("s_waitcnt vmcnt(2)")
    else:
        I("s_waitcnt vmcnt(0)")
    k.forget("w3")
    I(f"s_branch chain_j_{sfx}")
    k.L(f"chain_h2_{sfx}")

    rot = OPT.get("rot")
    if rot:
        for u in range(3):
            I(f"v_add_u32 {D(16 + u)}, {sr(sRot + u)}, {vr(vL)}")
            I(f"v_add_u32 {D(12 + u)}, {sr(sRot + u)}, {vr(vLW)}")

    def ml(b):
        for u in range(3):
            if rot:
                I(f"buffer_load_dwordx4 {D(b + 4 * u, 4)}, {D(16 + u)}, {sr(S_WS, 4)}, {sr(sMr)} offen sc1")
            else:
                I(f"buffer_load_dwordx4 {D(b + 4 * u, 4)}, {vr(vL)}, {sr(S_WS, 4)}, {sr(sMr)} offen offset:{u * 1024} sc1")

    def chk(b):
        wr = lambda u: f"ds_write_b128 {D(12 + u)}, {D(b + 4 * u, 4)}" if rot else \
            f"ds_write_b128 {vr(vLW)}, {D(b + 4 * u, 4)} offset:{1024 * u}"
        I(wr(0))
        I(f"v_max3_u32 {D(20)}, {D(b)}, {D(b + 1)}, {D(b + 2)}")
        I(wr(1))
        I(f"v_max3_u32 {D(20)}, {D(20)}, {D(b + 3)}, {D(b + 4)}")
        I(f"v_max3_u32 {D(21)}, {D(b + 5)}, {D(b + 6)}, {D(b + 7)}")
        I(wr(2))
        I(f"v_max3_u32 {D(20)}, {D(20)}, {D(b + 8)}, {D(b + 9)}")
        I(f"v_max3_u32 {D(21)}, {D(21)}, {D(b + 10)}, {D(b + 11)}")
        I(f"v_max_u32 {D(20)}, {D(20)}, {D(21)}")
        I(f"v_cmp_eq_u32 vcc, -1, {D(20)}")

    for _ in range(OPT.get("d2", 0)):
        I("s_nop 7")
    ml(24)
    if late:
        I(kv(2))
        I(kv(3))
    if OPT.get("one2"):
        chk(24)
        I(f"s_cbranch_vccz chain_j_{sfx}")
        k.L(f"chain_h2l_{sfx}")
        ml(24)
        I(f"s_sub_u32 {sr(sBud)}, {sr(sBud)}, 1")
        I(f"s_cbranch_scc1 chain_end")
        chk(24)
        I(f"s_cbranch_vccnz chain_h2l_{sfx}")
    else:
        for _ in range(OPT.get("e2", 0)):
            I("s_nop 7")
        ml(36)
        chk(24)
        I(f"s_cbranch_vccz chain_j_{sfx}")
        k.L(f"chain_h2l_{sfx}")
        ml(24)
        I(f"s_sub_u32 {sr(sBud)}, {sr(sBud)}, 1")
        I(f"s_cbranch_scc1 chain_end")
        chk(36)
        I(f"s_cbranch_vccz chain_j_{sfx}")
        ml(36)
        chk(24)
        I(f"s_cbranch_vccnz chain_h2l_{sfx}")
    k.forget("h2")
    k.L(f"chain_j_{sfx}")
    st(12)
    for r in range(0, 8, 2):
        I(f"v_mov_b64 {D(r, 2)}, 0")
    I(f"s_add_u32 {sr(sKV)}, {sr(sKV)}, {32 * 16384}")
    I(f"s_add_u32 {sr(sMr)}, {sr(sMr)}, 0x4000")
    I(f"s_and_b32 {sr(sMr)}, {sr(sMr)}, 0xfff0ffff")
    I("s_waitcnt lgkmcnt(0)")
    I("s_barrier")
    k.join("loop")
    st(13)
    if STAMP[0]:
        I(f"s_cmp_eq_u32 {sr(sStep)}, 41")
        I(f"s_cbranch_scc1 chain_end")
    I(f"s_branch chain_step_{sfx}")
    if OPT.get("full"):
        k.L(f"chain_kvw_{sfx}")
        I(f"buffer_load_dword {D(47)}, off, {sr(S_WS, 4)}, {sr(sKvF)} offset:{KVF_OFF} sc1")
        I(f"s_sub_u32 {sr(sBud)}, {sr(sBud)}, 1")
        I(f"s_cbranch_scc1 chain_end")
        I("s_waitcnt vmcnt(0)")
        I(f"v_readfirstlane_b32 {sr(sKnown)}, {D(47)}")
        I(f"s_cmp_lt_u32 {sr(sKnown)}, {sr(sT0)}")
        I(f"s_cbranch_scc1 chain_kvw_{sfx}")
        I(f"s_branch chain_kvok_{sfx}")


def chain_kernel(prof=False, timed=True, k=None):
    if k is None:
        k = K(timed=timed)
        k.I("s_and_b32 s3, s2, 7")
        k.I("s_cmp_lg_u32 s3, 0")
        k.I("s_cbranch_scc1 chain_exit")
        k.I("s_cmp_ge_u32 s2, 256")
        k.I("s_cbranch_scc1 chain_exit")
    prologue(k, "chain_tbl", prof=prof)
    step(k, "f", "")
    step(k, "s", " sc1")
    k.L("chain_end")
    k.I("s_waitcnt vmcnt(0) lgkmcnt(0)")
    if OPT.get("full"):
        k.I(f"s_add_u32 {sr(sT0)}, {sr(sStep)}, 1")
        k.I(f"v_mov_b32 v8, {sr(sT0)}")
        k.I("s_mov_b64 exec, 1")
        k.I(f"buffer_store_dword v8, off, {sr(S_WS, 4)}, {sr(sKmF)} sc1")
        k.I("s_mov_b64 exec, -1")
    if STAMP[0]:
        k.I(f"s_lshl_b32 {sr(sT0)}, {sr(sH)}, 2")
        k.I(f"s_add_u32 {sr(sT0)}, {sr(sT0)}, {sr(sW)}")
        k.I(f"s_lshl_b32 {sr(sT0)}, {sr(sT0)}, 6")
        k.I(f"s_add_u32 {sr(sT0)}, {sr(sT0)}, 0x3200000")
        k.I("v_mov_b32 v12, 0")
        for i in range(16):
            k.I(f"v_mov_b32 v8, s{60 + 2 * i}")
            k.I(f"buffer_store_dword v8, v12, {sr(S_WS, 4)}, {sr(sT0)} offen offset:{4 * i}")
        k.I("s_waitcnt vmcnt(0)")
    if prof:
        k.I(f"s_memtime {sr(sTm + 2, 2)}")
        k.I("s_waitcnt lgkmcnt(0)")
        k.I(f"s_sub_u32 {sr(sTm + 2)}, {sr(sTm + 2)}, {sr(sTm)}")
        k.I(f"s_cmp_lg_u32 s2, 0")
        k.I("s_cbranch_scc1 chain_exit")
        k.I(f"s_lshl_b32 {sr(sT0)}, {sr(sW)}, 4")
        k.I(f"v_mov_b32 v8, {sr(sTm + 2)}")
        k.I(f"v_mov_b32 v9, {sr(sBud)}")
        k.I(f"v_mov_b32 v10, {sr(sStep)}")
        k.I(f"v_mov_b32 v11, {sr(sT1)}")
        k.I(f"v_mov_b32 v12, {sr(sT0)}")
        k.I("s_mov_b64 exec, 1")
        k.I(f"global_store_dwordx4 v12, v[8:11], {sr(S_DBG, 2)} offset:64")
        k.I("s_waitcnt vmcnt(0)")
    k.L("chain_exit")
    return k
```

```python
import re

TRANS = ("v_exp_f32", "v_log_f32", "v_rcp_f32", "v_rsq_f32", "v_sqrt_f32", "v_sin_f32", "v_cos_f32",
         "v_rcp_iflag_f32")


def regs_of(tok):
    tok = tok.strip()
    neg = tok.startswith("-")
    if neg:
        tok = tok[1:]
    if tok.startswith("|") and tok.endswith("|"):
        tok = tok[1:-1]
    m = re.fullmatch(r"([vas])(\d+)", tok)
    if m:
        return [(m.group(1), int(m.group(2)))]
    m = re.fullmatch(r"([vas])\[(\d+):(\d+)\]", tok)
    if m:
        return [(m.group(1), i) for i in range(int(m.group(2)), int(m.group(3)) + 1)]
    if tok == "vcc":
        return [("s", "vcc")]
    if tok in ("vcc_lo", "vcc_hi"):
        return [("s", "vcc")]
    if tok == "exec" or tok in ("exec_lo", "exec_hi"):
        return [("s", "exec")]
    if tok == "m0":
        return [("s", "m0")]
    return []


class Ins:
    def __init__(self, text):
        self.text = text
        t = text.split(";")[0].strip()
        parts = t.split(None, 1)
        self.op = parts[0]
        rest = parts[1] if len(parts) > 1 else ""
        ops = [o.strip() for o in re.split(r",(?![^\[]*\])", rest)] if rest else []
        mods = ""
        if ops:
            last = ops[-1].split(None, 1)
            ops[-1] = last[0]
            mods = last[1] if len(last) > 1 else ""
        self.ops = ops
        self.mods = mods
        self.kind = "other"
        self.defs = []
        self.uses = []
        self.passes = 0
        self.srcC = []
        self.srcAB = []
        self.states = 1
        self.dpp = False
        self.trans = False
        self.wide_store = []
        self.vm = False
        self.lgkm = False
        self.lds_dma = False
        op = self.op
        R = lambda i: regs_of(ops[i]) if i < len(ops) else []
        if op.startswith("v_mfma") or op.startswith("v_smfmac"):
            self.kind = "mfma"
            self.passes = 8 if "32x32" in op else 4
            self.defs = R(0)
            if op.startswith("v_smfmac"):
                self.srcC = R(0)
                self.srcAB = R(1) + R(2) + R(3)
            else:
                self.srcC = R(3)
                self.srcAB = R(1) + R(2)
            self.uses = self.srcC + self.srcAB
        elif op.startswith("v_"):
            self.kind = "valu"
            base = op.replace("_e32", "").replace("_e64", "").replace("_dpp", "").replace("_sdwa", "")
            self.trans = base in TRANS
            self.dpp = ("row_" in mods) or ("quad_perm" in mods) or op.endswith("_dpp")
            if base.startswith("v_permlane") and "swap" in base:
                self.defs = R(0) + R(1)
                self.uses = R(0) + R(1)
                self.kind = "valu"
                self.permlane = True
            elif base.startswith("v_cmp"):
                self.defs = R(0)
                self.uses = sum((R(i) for i in range(1, len(ops))), [])
            elif "_co_" in base:
                self.defs = R(0) + R(1)
                self.uses = sum((R(i) for i in range(2, len(ops))), [])
            elif base == "v_nop":
                pass
            else:
                self.defs = R(0)
                self.uses = sum((R(i) for i in range(1, len(ops))), [])
                if base.startswith("v_fmac") or base.startswith("v_mac") or self.dpp or "d16" in base or \
                        base.startswith("v_writelane") or base.startswith("v_dot2c"):
                    self.uses += R(0)
                if base.startswith("v_cndmask") and len(ops) == 3:
                    self.uses += [("s", "vcc")]
        elif op.startswith("ds_"):
            self.kind = "ds"
            self.lgkm = True
            if op.startswith("ds_read") or op.startswith("ds_bpermute") or op.startswith("ds_permute") or \
                    op.startswith("ds_swizzle") or "_rtn" in op:
                self.defs = R(0)
                self.uses = sum((R(i) for i in range(1, len(ops))), [])
            else:
                self.uses = sum((R(i) for i in range(0, len(ops))), [])
        elif op.startswith("buffer_") or op.startswith("global_"):
            self.kind = "vmem"
            self.vm = True
            toks = mods.split()
            if op.startswith("buffer_load") and "lds" in toks:
                self.lds_dma = True
                self.uses = sum((R(i) for i in range(0, len(ops))), []) + [("s", "m0")]
            elif op.startswith("global_load_lds"):
                self.lds_dma = True
                self.uses = sum((R(i) for i in range(0, len(ops))), []) + [("s", "m0")]
            elif "_load" in op:
                self.defs = R(0)
                self.uses = sum((R(i) for i in range(1, len(ops))), [])
                if "d16" in op:
                    self.uses += R(0)
            elif "atomic" in op:
                if "sc0" in toks:
                    self.defs = R(0)
                    if op.startswith("global_"):
                        self.uses = sum((R(i) for i in range(1, len(ops))), [])
                    else:
                        self.uses = sum((R(i) for i in range(0, len(ops))), [])
                else:
                    self.uses = sum((R(i) for i in range(0, len(ops))), [])
            elif op in ("buffer_wbl2", "buffer_inv"):
                pass
            else:
                self.uses = sum((R(i) for i in range(0, len(ops))), [])
                if op.endswith("x3") or op.endswith("x4"):
                    self.wide_store = R(0) if op.startswith("buffer_") else R(1)
        elif op.startswith("s_"):
            self.kind = "salu"
            if op == "s_nop":
                self.states = int(ops[0], 0) + 1
            elif op in ("s_waitcnt", "s_barrier", "s_endpgm", "s_setprio", "s_sleep") or op.startswith("s_cbranch") \
                    or op == "s_branch" or op.startswith("s_cmp") or op.startswith("s_bitcmp"):
                self.uses = sum((R(i) for i in range(0, len(ops))), [])
            else:
                self.defs = R(0)
                self.uses = sum((R(i) for i in range(1, len(ops))), [])
            if op.startswith("s_load") or op.startswith("s_buffer_load") or op == "s_memtime" or op == "s_memrealtime":
                self.kind = "smem"
        self.defs = set(self.defs)
        self.uses = set(self.uses)
        self.is_permlane = op.startswith("v_permlane")
        self.is_readlane = op.startswith("v_readlane") or op.startswith("v_readfirstlane")


def need(prev, cur):
    n = 0
    vec = lambda s: {r for r in s if r[0] in "va"}
    sc = lambda s: {r for r in s if r[0] == "s"}
    if prev.kind == "valu":
        pd = vec(prev.defs)
        if prev.op.startswith("v_dot") and cur.kind in ("valu", "mfma", "ds", "vmem"):
            if cur.op == prev.op:
                if pd & set(regs_of(cur.ops[1]) + regs_of(cur.ops[2])):
                    n = max(n, 3)
            elif pd & (cur.uses | cur.defs):
                n = max(n, 3)
        if cur.kind == "mfma" and pd & cur.uses:
            n = max(n, 2)
        if cur.kind == "valu":
            if (cur.dpp or cur.is_permlane) and pd & cur.uses:
                n = max(n, 2)
            if cur.is_readlane and pd & cur.uses:
                n = max(n, 1)
            if prev.trans and not cur.trans and pd & cur.uses:
                n = max(n, 1)
            if sc(prev.defs) & cur.uses:
                n = max(n, 4 if cur.is_readlane else 2)
        if cur.kind == "vmem" and sc(prev.defs) & cur.uses:
            n = max(n, 5)
        if cur.kind == "mfma" and ("s", "exec") in prev.defs:
            n = max(n, 4)
    if prev.kind == "mfma":
        big = 8 if prev.passes == 4 else 12
        pd = prev.defs
        if cur.kind == "mfma":
            if pd & set(cur.srcAB):
                n = max(n, big)
            c = set(cur.srcC)
            if pd & c:
                if not (pd == c and prev.passes == cur.passes):
                    n = max(n, 6 if prev.passes == 4 else 10)
            elif pd & cur.defs and prev.passes != cur.passes:
                n = max(n, big)
        elif cur.kind in ("valu", "ds", "vmem"):
            if pd & (cur.uses | cur.defs):
                n = max(n, big)
        if cur.kind == "valu" and set(prev.srcC) & cur.defs:
            n = max(n, 3 if prev.passes == 4 else 7)
    if prev.kind == "vmem" and prev.wide_store:
        if set(prev.wide_store) & cur.defs:
            n = max(n, 2 if cur.kind in ("valu", "mfma") else 1)
    if prev.kind == "salu" and ("s", "m0") in prev.defs and (cur.lds_dma or "addtid" in cur.op):
        n = max(n, 1)
    return n


class K:
    def __init__(self, timed=False):
        self.items = []
        self.timed = timed

    def I(self, text):
        for line in text.strip().split("\n"):
            line = line.strip()
            if not line:
                continue
            if line.startswith(";"):
                self.items.append(("c", line))
            elif line.endswith(":"):
                self.items.append(("l", line[:-1]))
            else:
                self.items.append(("i", line))

    def L(self, name):
        self.items.append(("l", name))

    def C(self, text):
        self.items.append(("c", "; " + text))

    def tag(self, name):
        self.items.append(("t", name))

    def wait_tag(self, name):
        self.items.append(("w", name))

    def tagl(self, name):
        self.items.append(("tl", name))

    def wait_tagl(self, name):
        self.items.append(("wl", name))

    def join(self, name=None):
        self.items.append(("j", name))

    def forget(self, name=None):
        self.items.append(("fg", name))

    def forget_reg(self, reg):
        self.items.append(("fr", reg))

    def raw(self, text):
        self.items.append(("r", text))

    def snap(self, name):
        self.items.append(("sn", name))

    def restore(self, name):
        self.items.append(("rs", name))

    def render(self):
        snaps = {}
        out = None
        for _ in range(3):
            out, snaps = self._pass(snaps)
        return out

    def _pass(self, snaps_in):
        out = []
        timed = getattr(self, "timed", False)

        class H:
            def __init__(self):
                self.c = [0, 0]
                self.lm = None
                self.e = []

            def copy(self):
                h = H()
                h.c = list(self.c)
                h.lm = self.lm
                h.e = [list(x) for x in self.e]
                return h

            def issue(self, ins, extra=0):
                t = [self.c[0] + extra, self.c[1] + extra]
                if timed and ins.kind == "mfma" and self.lm:
                    t = [max(t[0], self.lm[0] + self.lm[2]), max(t[1], self.lm[1] + self.lm[2])]
                return t

            def short(self, ins, extra):
                t = self.issue(ins, extra)
                for p, ea, eb in self.e:
                    n = need(p, ins)
                    if n and min(t[0] - ea, t[1] - eb) < n:
                        return True
                return False

            def push(self, ins):
                t = self.issue(ins)
                if ins.kind == "mfma":
                    self.lm = (t[0], t[1], ins.passes)
                    self.c = [t[0] + 1, t[1] + (2 if timed else 1)]
                else:
                    self.c = [t[0] + ins.states, t[1] + ins.states]
                self.e.append([ins, self.c[0], self.c[1]])
                self.e = [x for x in self.e if min(self.c[0] - x[1], self.c[1] - x[2]) < 24]
                if self.lm and min(self.c[0] - self.lm[0], self.c[1] - self.lm[1]) >= 16:
                    self.lm = None

            def key(self):
                lm = None if not self.lm else (self.c[0] - self.lm[0], self.c[1] - self.lm[1], self.lm[2])
                return (lm, tuple((x[0].text, self.c[0] - x[1], self.c[1] - x[2]) for x in self.e))

        hists = [H()]
        snaps = {}
        vm = []
        lg = []
        qs = {}
        nops = 0

        def emit(ins):
            out.append("\t" + ins.text)
            for h in hists:
                h.push(ins)

        def apply_wait(ins):
            m = re.search(r"vmcnt\((\d+)\)", ins.text)
            if m:
                n = int(m.group(1))
                if len(vm) > n:
                    del vm[: len(vm) - n]
            m = re.search(r"lgkmcnt\((\d+)\)", ins.text)
            if m:
                n = int(m.group(1))
                if len(lg) > n:
                    del lg[: len(lg) - n]

        for kind, val in self.items:
            if kind == "c":
                out.append("\t" + val)
                continue
            if kind == "r":
                out.append(val)
                continue
            if kind == "l":
                out.append(val + ":")
                for s in snaps_in.get(val, []):
                    h = s.copy()
                    h.lm = None
                    hists.append(h)
                continue
            if kind == "fg":
                vm.clear()
                lg.clear()
                continue
            if kind == "fr":
                for e in vm:
                    e[0].discard(val)
                continue
            if kind == "sn":
                qs[val] = ([[set(e[0]), e[1]] for e in vm], [[set(e[0]), e[1]] for e in lg])
                continue
            if kind == "rs":
                vm[:] = [[set(e[0]), e[1]] for e in qs[val][0]]
                lg[:] = [[set(e[0]), e[1]] for e in qs[val][1]]
                continue
            if kind == "t":
                vm[-1][1] = val
                continue
            if kind == "w":
                idx = [i for i, e in enumerate(vm) if e[1] == val]
                if idx:
                    n = len(vm) - 1 - idx[-1]
                    w = Ins(f"s_waitcnt vmcnt({min(n, 63)})")
                    apply_wait(w)
                    emit(w)
                continue
            if kind == "tl":
                lg[-1][1] = val
                continue
            if kind == "wl":
                idx = [i for i, e in enumerate(lg) if e[1] == val]
                if idx:
                    n = len(lg) - 1 - idx[-1]
                    w = Ins(f"s_waitcnt lgkmcnt({min(n, 15)})")
                    apply_wait(w)
                    emit(w)
                continue
            if kind == "j":
                bad = [e for e in vm + lg if e[0]]
                assert not bad, f"pending register loads at join {val}: {bad}"
                vm.clear()
                lg.clear()
                continue
            ins = Ins(val)
            if ins.op == "s_waitcnt":
                apply_wait(ins)
                emit(ins)
                continue
            touched = ins.uses | ins.defs
            wv = wl = None
            for i, e in enumerate(vm):
                if e[0] & touched:
                    wv = len(vm) - 1 - i
            for i, e in enumerate(lg):
                if e[0] & touched:
                    wl = len(lg) - 1 - i
            smem_pending = any(e[1] == "smem" for e in lg)
            if wl is not None and smem_pending:
                wl = 0
            if wv is not None or wl is not None:
                parts = []
                if wv is not None:
                    parts.append(f"vmcnt({min(wv, 63)})")
                if wl is not None:
                    parts.append(f"lgkmcnt({min(wl, 15)})")
                w = Ins("s_waitcnt " + " ".join(parts))
                apply_wait(w)
                emit(w)
            req = 0
            while any(h.short(ins, req) for h in hists):
                req += 1
            while req > 0:
                n = min(req, 16)
                emit(Ins(f"s_nop {n - 1}"))
                nops += 1
                req -= n
            emit(ins)
            if ins.vm:
                vm.append([set(ins.defs), None])
            if ins.lgkm:
                lg.append([set(ins.defs), None])
            if ins.kind == "smem":
                lg.append([set(ins.defs), "smem"])
            if ins.op.startswith("s_cbranch") or ins.op == "s_branch":
                tgt = ins.ops[0]
                snaps.setdefault(tgt, []).extend([h.copy() for h in hists])
            if ins.op in ("s_branch", "s_endpgm"):
                hists = [H()]
            if len(hists) > 1:
                uniq = {}
                for h in hists:
                    uniq.setdefault(h.key(), h)
                hists = list(uniq.values())
        self.nops = nops
        return "\n".join(out) + "\n", snaps


def vr(a, n=1):
    return f"v{a}" if n == 1 else f"v[{a}:{a + n - 1}]"


def ar(a, n=1):
    return f"a{a}" if n == 1 else f"a[{a}:{a + n - 1}]"


def sr(a, n=1):
    return f"s{a}" if n == 1 else f"s[{a}:{a + n - 1}]"
```

```python
import numpy as np

WS_KV = 0x0000000
WS_KM = 0x2000000
WS_P = 0x3000000
WS_M = 0x3100000
WS_F = 0x3300000
WS_XN = 0x3400000
WS_HN = 0x3700000
WS_H = 0x3A00000
WS_O = 0x4000000
WS_ACT = 0x5000000
WS_WP = 0x6400000
WS_DP = 0x7800000
WS_Q = 0x9000000
WS_BYTES = 0x10000000
FL_XN, FL_KV, FL_KM, FL_O, FL_WO, FL_HN, FL_GU, FL_DN, FL_Q, FL_END = 0, 64, 96, 128, 160, 200, 208, 244, 284, 300
fl = lambda line: WS_F + 128 * line


def slot8(g, s):
    return 16 * (g // 2) + 8 * (s // 4) + 4 * (g % 2) + s % 4


def rho(g, c):
    return 4 * (g % 2) + 2 * c + g // 2


def mcol(t, hA, gA, q, c):
    if t < 8:
        return 144 * (t // 2) + 64 * (t % 2) + 32 * hA + 16 * c + 4 * gA + q
    return 144 * (2 * hA + gA // 2) + 128 + 8 * (gA % 2) + 4 * (q // 2) + (q % 2) + 2 * c
```

```python
from gen import K, vr, ar, sr
from lay import *

R_CH, R_KV, R_Q, R_AT, R_WO, R_R1, R_GU, R_DN, R_R2, R_NONE = range(10)
TROW = {R_KV: 0, R_Q: 1, R_GU: 2, R_WO: 3, R_DN: 4, R_AT: 5, R_R1: 6, R_R2: 6, R_NONE: 6}

S_WS, S_A, S_B, S_X = 4, 8, 12, 16
S_DBG = 24
sW, sIdx, sSeg, sNeed, sSrc, sDst, sFlag, sPoll, sBud, sM0, sT0, sT1, sT2, sT3, sIss, sLn, sRole, sKn, sW4k = range(26, 45)
sDst2, sC0, sC1, sC2, sC3 = range(45, 50)
sMask = 60
vL = 0
C = lambda i: vr(100 + i)
BUFSZ = 36864
OPT = {}


def f32(x):
    return hex(int(np.float32(x).view(np.uint32)))


def role_map():
    m = [None] * 256
    groups = [(R_WO, g) for g in range(8)] + [(R_DN, g) for g in range(8)]
    order = [groups[(i // 2) + 8 * (i % 2)] for i in range(16)]
    rest = [(R_KV, i) for i in range(32)] + [(R_Q, i) for i in range(16)] + [(R_AT, i) for i in range(32)] + \
           [(R_GU, i) for i in range(36)] + [(R_R1, i) for i in range(8)] + [(R_R2, i) for i in range(9)] + \
           [(R_NONE, i) for i in range(11)]
    gi = 0
    for base, xs in ((0, range(1, 8)), (5, range(1, 8)), (10, (1, 2))):
        for x in xs:
            r, g = order[gi]
            gi += 1
            for j in range(5):
                m[(base + j) * 8 + x] = (r, g * 5 + j)
    for i in range(32):
        m[i * 8] = (R_CH, i)
    free = [wg for wg in range(256) if m[wg] is None]
    assert len(free) == len(rest)
    for wg, e in zip(free, rest):
        m[wg] = e
    ln = 0
    out = []
    lnidx = {}
    for r in (R_NONE, R_R2, R_R1, R_AT):
        for wg in range(256):
            if m[wg][0] == r:
                lnidx[wg] = ln
                ln += 1
    assert ln == 60
    for wg in range(256):
        r, i = m[wg]
        out.append(r | i << 8 | lnidx.get(wg, 255) << 16)
    return out


def lane_table():
    T = np.zeros((7, 64, 8), np.uint32)
    for l in range(64):
        q, p = l // 16, l % 16
        g, n16 = l // 16, l % 16
        r, c4 = n16 // 4, n16 % 4
        n, hi = l % 32, l // 32
        dm = lambda S: q * S + (p ^ (4 * q)) * 16
        tr = lambda HS: ((g // 2) * HS + r) * 256 + (4 * r + 2 * (g % 2) + c4 // 2) * 16 + (c4 % 2) * 8
        vk = ((n >> 3) & 1) * 1024 + hi * 256 + ((n >> 4) * 8 + (n & 7)) * 16
        vv = 2048 + (n // 16) * 1024 + hi * 256 + (n % 16) * 16
        vq = (n // 16) * 4096 + hi * 256 + (n % 16) * 16
        T[0, l, :5] = [dm(8192), tr(8), vk, vv, (l % 4) * 4]
        T[1, l, :5] = [dm(8192), tr(8), vq, vq + 8192, (l % 4) * 4]
        T[2, l, :5] = [dm(9216), tr(4), l * 16, 0, ((l % 12) // 3) * 128 + (l % 3) * 4]
        T[3, l, :5] = [dm(1152), tr(4), l * 16, 0, ((l % 16) // 4) * 128 + (l % 4) * 4]
        T[4, l, :5] = [dm(1152), tr(4), l * 16, 0, l % 18]
        T[5, l, :5] = [g * 512 + n16 * 16, (n16 - 16 * (g // 2) - 4 * (g % 2)) & 0xffffffff, (l % 4) * 4,
                       1 if l % 8 >= 4 else 0, l * 8]
        nn, pp = l // 8, l % 8
        T[6, l, :5] = [pp * 512 + nn * 16, nn * 1152 + (pp // 2) * 32 + (pp % 2) * 8, nn * 1152 + pp * 16,
                       (l % 40) * 128, nn * 8]
    return T


def tables_text():
    s = ".p2align 8\n.type role_tbl,@object\nrole_tbl:\n"
    rm = role_map()
    for i in range(0, 256, 8):
        s += ".long " + ",".join(hex(x) for x in rm[i:i + 8]) + "\n"
    T = lane_table()
    T2 = T.reshape(7, 64, 2, 4).transpose(0, 2, 1, 3).reshape(-1, 8)
    for row in T2:
        s += ".long " + ",".join(hex(int(x)) for x in row) + "\n"
    s += f".size role_tbl, {1024 + T.size * 4}\n"
    return s


def entry(k):
    I = k.I
    I("s_cmp_ge_u32 s2, 256")
    I("s_cbranch_scc1 all_exit")
    I("s_and_b32 s3, s2, 7")
    I("s_cmp_eq_u32 s3, 0")
    I("s_cbranch_scc1 chain_entry")
    I("s_getpc_b64 s[64:65]")
    k.L("role_pc")
    I("s_add_u32 s64, s64, role_tbl-role_pc")
    I("s_addc_u32 s65, s65, 0")
    I("s_lshl_b32 s3, s2, 2")
    I(f"s_load_dword {sr(sRole)}, s[64:65], s3")
    I(f"s_load_dwordx2 {sr(S_WS, 2)}, s[0:1], 104")
    I(f"s_load_dwordx2 {sr(S_DBG, 2)}, s[0:1], 96")
    I(f"s_load_dwordx2 {sr(S_X, 2)}, s[0:1], 0")
    I("v_lshrrev_b32 v8, 6, v0")
    I(f"v_readfirstlane_b32 {sr(sW)}, v8")
    I("v_and_b32 v0, 63, v0")
    I(f"v_lshlrev_b32 {vr(vL)}, 4, v0")
    I(f"s_mov_b32 {sr(S_WS + 2)}, {hex(WS_BYTES)}")
    I(f"s_mov_b32 {sr(S_WS + 3)}, 0x00020000")
    I(f"s_mov_b32 {sr(S_X + 2)}, {2048 * 1152}")
    I(f"s_mov_b32 {sr(S_X + 3)}, 0x00020000")
    I(f"s_mov_b32 {sr(sBud)}, 0x40000")
    I(f"s_lshl_b32 {sr(sW4k)}, {sr(sW)}, 12")
    I("s_waitcnt lgkmcnt(0)")
    I(f"s_bfe_u32 {sr(sIdx)}, {sr(sRole)}, 0x80008")
    I(f"s_bfe_u32 {sr(sLn)}, {sr(sRole)}, 0x80010")
    I(f"s_and_b32 {sr(sRole)}, {sr(sRole)}, 255")
    for r, nm in ((R_KV, "kv"), (R_Q, "q"), (R_GU, "gu"), (R_WO, "wo"), (R_DN, "dn")):
        I(f"s_cmp_eq_u32 {sr(sRole)}, {r}")
        I(f"s_cbranch_scc1 {nm}_entry")
    I("s_branch ln_entry")


def consts(k, row):
    I = k.I
    I(f"v_add_u32 v8, {1024 + row * 2048}, {vr(vL)}")
    I(f"global_load_dwordx4 {vr(100, 4)}, v8, s[64:65]")
    I(f"global_load_dwordx4 {vr(104, 4)}, v8, s[64:65] offset:1024")


def wait_init(k, p):
    I = k.I
    I("v_mov_b32 v8, 0")
    k.L(f"{p}_init")
    I(f"global_load_dword v9, v8, {sr(S_DBG, 2)} offset:8 sc1")
    I(f"s_sub_u32 {sr(sBud)}, {sr(sBud)}, 1")
    I("s_cbranch_scc1 all_exit")
    I("s_waitcnt vmcnt(0)")
    I(f"v_readfirstlane_b32 {sr(sT0)}, v9")
    I(f"s_cmp_eq_u32 {sr(sT0)}, 0")
    I(f"s_cbranch_scc1 {p}_init")


def put_flag(k, val, tmp=98):
    I = k.I
    I(f"v_mov_b32 {vr(tmp)}, {val}")
    I(f"s_mov_b64 exec, 1")
    I(f"buffer_store_dword {vr(tmp)}, off, {sr(S_WS, 4)}, {sr(sFlag)} sc1")
    I(f"s_mov_b64 exec, -1")


def spin(k, lab, voff, soff, need, wide=False, dst=96):
    I = k.I
    k.L(lab)
    if wide:
        I(f"buffer_load_dwordx4 {vr(92, 4)}, {voff}, {sr(S_WS, 4)}, {soff} offen sc1")
    else:
        I(f"buffer_load_dword {vr(dst)}, {voff}, {sr(S_WS, 4)}, {soff} offen sc1")
    I(f"s_sub_u32 {sr(sBud)}, {sr(sBud)}, 1")
    I("s_cbranch_scc1 all_exit")
    I("s_waitcnt vmcnt(0)")
    if wide:
        I(f"v_min_u32 {vr(92)}, {vr(92)}, {vr(93)}")
        I(f"v_min3_u32 {vr(dst)}, {vr(92)}, {vr(94)}, {vr(95)}")
    I(f"v_cmp_gt_u32 vcc, {need}, {vr(dst)}")
    I(f"s_cbranch_vccnz {lab}")


def wreg(t, ks, off=0, n=4):
    i = (36 * t + ks) * 4
    if i < 256:
        return ar(i + off, n)
    return vr(112 + i - 256 + off, n)


ROWMAP = {
    "nat": lambda t, half: 16 * t + 4 * half,
    "std": lambda t, half: 16 * t + 8 * half,
    "o": lambda t, half: 32 * (t // 2) + 16 * half + 8 * (t % 2),
}


def load_weights(k, mats, nslab, S, perm):
    I = k.I
    N = len(mats) * nslab

    def dma(n):
        d, base = mats[n // nslab]
        sl = n % nslab
        for i in range(4):
            I(f"s_add_u32 {sr(sT0)}, {sr(base)}, {(64 * sl + 4 * i) * S}")
            I(f"s_add_u32 m0, {sr(sW4k)}, {(n % 10) * 16384 + i * 1024}")
            I(f"buffer_load_dwordx4 {C(0)}, {sr(d, 4)}, {sr(sT0)} offen nt lds")
        k.tag(f"slab{n}")

    for n in range(min(9, N)):
        dma(n)
    I(f"s_lshl_b32 {sr(sT0)}, {sr(sW)}, 6")
    I(f"v_xor_b32 {C(1)}, {sr(sT0)}, {C(1)}")
    for n in range(N):
        k.wait_tag(f"slab{n}")
        I("s_waitcnt lgkmcnt(0)")
        I("s_barrier")
        if n + 9 < N:
            dma(n + 9)
        I(f"v_add_u32 v8, {(n % 10) * 16384}, {C(1)}")
        for t in range(4):
            for half in range(2):
                I(f"ds_read_b64_tr_b16 {wreg(n // nslab, 4 * (n % nslab) + t, 2 * half, 2)}, v8 "
                  f"offset:{ROWMAP[perm](t, half) * 256}")
    I("s_waitcnt lgkmcnt(0)")
    I("s_barrier")


ACC = [8, 24]
BR = 40
EP = 72
vRd = 1


def gemm(k, p, ntile, per, swap, epilogue, src_step, poll_step, extra=None):
    I = k.I
    nk = 4 * sum(per)
    start = [0, 4 * per[0], 4 * (per[0] + per[1])]
    LA = 6 if ntile == 1 else 3

    def dma_all():
        for c in range(3):
            if c == 0:
                I(f"s_mov_b32 m0, {sr(sM0)}")
                so = sSrc
            else:
                d = start[c] * 1024
                if per[c] != per[0]:
                    I(f"s_mul_i32 {sr(sT1)}, {sr(sW)}, {(per[0] - per[c]) * 1024}")
                    I(f"s_sub_u32 {sr(sT1)}, {d}, {sr(sT1)}")
                    I(f"s_add_u32 m0, {sr(sM0)}, {sr(sT1)}")
                    I(f"s_add_u32 {sr(sT0)}, {sr(sSrc)}, {sr(sT1)}")
                else:
                    I(f"s_add_u32 m0, {sr(sM0)}, {d}")
                    I(f"s_add_u32 {sr(sT0)}, {sr(sSrc)}, {d}")
                so = sT0
            for j in range(per[c]):
                I(f"buffer_load_dwordx4 {vr(vL)}, {sr(S_WS, 4)}, {sr(so)} offen offset:{j * 1024} sc1 lds")
        I(f"s_add_u32 {sr(sSrc)}, {sr(sSrc)}, {src_step}")
        I(f"s_sub_u32 {sr(sM0)}, {sr(sC0)}, {sr(sM0)}")

    NS = epilogue(None)
    I(f"s_mul_i32 {sr(sT0)}, {sr(sW)}, {per[0] * 1024}")
    I(f"s_add_u32 {sr(sSrc)}, {sr(sSrc)}, {sr(sT0)}")
    I(f"s_mov_b32 {sr(sM0)}, {sr(sT0)}")
    I(f"s_lshl_b32 {sr(sC0)}, {sr(sT0)}, 1")
    I(f"s_add_u32 {sr(sC0)}, {sr(sC0)}, {BUFSZ}")
    I(f"v_mov_b32 {vr(vRd)}, {vr(vL)}")
    I(f"s_mov_b32 {sr(sSeg)}, 0")
    I(f"s_mov_b32 {sr(sNeed)}, 1")
    wait_init(k, p)
    I(f"s_branch {p}_spin")
    k.L(f"{p}_loop")
    k.forget()
    I(f"s_waitcnt vmcnt({per[1] + per[2] + NS})")
    I("s_barrier")
    I(f"buffer_load_dword {vr(96)}, {C(4)}, {sr(S_WS, 4)}, {sr(sPoll)} offen sc1")
    k.forget()

    def rd(t):
        if t == start[1]:
            I(f"s_waitcnt vmcnt({per[2] + NS + 1})")
            I("s_barrier")
        if t == start[2]:
            I(f"s_waitcnt vmcnt(0)")
            I("s_barrier")
            put_flag(k, sr(sSeg))
            I(f"v_cmp_gt_u32 vcc, {sr(sNeed)}, {vr(96)}")
            I(f"s_mov_b32 {sr(sIss)}, 0")
            I(f"s_cbranch_vccnz {p}_late")
            I(f"s_cmp_eq_u32 {sr(sSeg)}, 63")
            I(f"s_cbranch_scc1 {p}_late")
            dma_all()
            I(f"s_mov_b32 {sr(sIss)}, 1")
            k.L(f"{p}_late")
        I(f"ds_read_b128 {vr(BR + 4 * (t % 8), 4)}, {vr(vRd)} offset:{t * 1024}")

    for t in range(LA):
        rd(t)
    for t in range(nk):
        b = vr(BR + 4 * (t % 8), 4)
        for j in range(ntile):
            a = vr(ACC[j], 16)
            x, y = (b, wreg(j, t)) if swap[j] else (wreg(j, t), b)
            I(f"v_mfma_f32_32x32x16_bf16 {a}, {x}, {y}, {a if t else 0}")
            if j == 0 and t + LA < nk:
                rd(t + LA)
    I(f"v_xor_b32 {vr(vRd)}, {vr(2)}, {vr(vRd)}")
    epilogue(k)
    I(f"s_add_u32 {sr(sSeg)}, {sr(sSeg)}, 1")
    I(f"s_add_u32 {sr(sNeed)}, {sr(sNeed)}, 1")
    poll_step(k)
    I(f"s_cmp_eq_u32 {sr(sIss)}, 1")
    I(f"s_cbranch_scc1 {p}_loop")
    I("s_waitcnt vmcnt(0)")
    put_flag(k, sr(sSeg))
    I(f"s_cmp_eq_u32 {sr(sSeg)}, 64")
    I("s_cbranch_scc1 all_exit")
    I(f"s_sub_u32 {sr(sNeed)}, {sr(sNeed)}, 1")
    poll_step(k, back=True)
    k.L(f"{p}_spin")
    spin(k, f"{p}_sp", C(4), sr(sPoll), sr(sNeed))
    dma_all()
    for _ in range(NS):
        I(f"buffer_load_dword {vr(97)}, {C(4)}, {sr(S_WS, 4)}, {sr(sPoll)} offen sc1")
    k.forget()
    I(f"s_add_u32 {sr(sNeed)}, {sr(sNeed)}, 1")
    poll_step(k)
    I(f"s_branch {p}_loop")


def cvt16(k, dst, src):
    for r in range(8):
        k.I(f"v_cvt_pk_bf16_f32 {vr(dst + r)}, {vr(src + 2 * r)}, {vr(src + 2 * r + 1)}")


def st16(k, reg, voff, soff, off):
    k.I(f"buffer_store_dwordx4 {vr(reg, 4)}, {voff}, {sr(S_WS, 4)}, {sr(soff)} offen offset:{off} sc1")


def srd(k, s, karg, nbytes):
    k.I(f"s_load_dwordx2 {sr(s, 2)}, s[0:1], {karg}")
    k.I(f"s_mov_b32 {sr(s + 2)}, {nbytes}")
    k.I(f"s_mov_b32 {sr(s + 3)}, 0x00020000")


def rd_toggle(k):
    k.I(f"v_add_u32 v2, {BUFSZ}, {vr(vL)}")
    k.I(f"v_xor_b32 v2, v2, {vr(vL)}")


def own_flag(k, line):
    k.I(f"s_lshl_b32 {sr(sFlag)}, {sr(sIdx)}, 7")
    k.I(f"s_lshl_b32 {sr(sT0)}, {sr(sW)}, 2")
    k.I(f"s_add_u32 {sr(sFlag)}, {sr(sFlag)}, {sr(sT0)}")
    k.I(f"s_add_u32 {sr(sFlag)}, {sr(sFlag)}, {hex(fl(line))}")


def role_proj(k, isq):
    I = k.I
    p = "q" if isq else "kv"
    k.L(f"{p}_entry")
    consts(k, TROW[R_Q if isq else R_KV])
    srd(k, S_A, 16 if isq else 24, 576 * 8192)
    srd(k, S_B, 16 if isq else 32, 576 * 8192)
    I(f"s_lshl_b32 {sr(sC2)}, {sr(sW)}, 17")
    I(f"s_lshl_b32 {sr(sT0)}, {sr(sIdx)}, {9 if isq else 8}")
    I(f"s_add_u32 {sr(sC2)}, {sr(sC2)}, {sr(sT0)}")
    I(f"s_add_u32 {sr(sC3)}, {sr(sC2)}, {256 if isq else 0}")
    I("s_waitcnt vmcnt(0) lgkmcnt(0)")
    load_weights(k, [(S_A, sC2), (S_B, sC3)], 9, 8192, "nat")
    rd_toggle(k)
    own_flag(k, FL_Q if isq else FL_KV)
    I(f"s_mov_b32 {sr(sSrc)}, {hex(WS_XN)}")
    I(f"s_mov_b32 {sr(sPoll)}, {hex(fl(FL_XN))}")
    I(f"s_lshl_b32 {sr(sDst)}, {sr(sIdx)}, 14")
    I(f"s_lshl_b32 {sr(sT0)}, {sr(sW)}, {10 if isq else 12}")
    I(f"s_add_u32 {sr(sDst)}, {sr(sDst)}, {sr(sT0)}")
    I(f"s_add_u32 {sr(sDst)}, {sr(sDst)}, {hex(WS_Q if isq else WS_KV)}")

    def ep(k):
        if k is None:
            return 4
        for j in range(2):
            cvt16(k, EP + 8 * j, ACC[j])
            st16(k, EP + 8 * j, C(2 + j), sDst, 0)
            st16(k, EP + 8 * j + 4, C(2 + j), sDst, 512)
        k.I(f"s_add_u32 {sr(sDst)}, {sr(sDst)}, {32 * (8192 if isq else 16384)}")

    def ps(k, back=False):
        k.I(f"s_{'sub' if back else 'add'}_u32 {sr(sPoll)}, {sr(sPoll)}, 128")

    gemm(k, p, 2, [3, 3, 3], [False, not isq], ep, BUFSZ, ps)


def role_gu(k):
    I = k.I
    k.L("gu_entry")
    consts(k, TROW[R_GU])
    srd(k, S_A, 64, 576 * 9216)
    srd(k, S_B, 72, 576 * 9216)
    I(f"s_mul_i32 {sr(sC2)}, {sr(sW)}, {16 * 9216}")
    I(f"s_lshl_b32 {sr(sT0)}, {sr(sIdx)}, 8")
    I(f"s_add_u32 {sr(sC2)}, {sr(sC2)}, {sr(sT0)}")
    I("s_waitcnt vmcnt(0) lgkmcnt(0)")
    load_weights(k, [(S_A, sC2), (S_B, sC2)], 9, 9216, "std")
    rd_toggle(k)
    own_flag(k, FL_GU)
    I(f"s_mov_b32 {sr(sSrc)}, {hex(WS_HN)}")
    I(f"s_mov_b32 {sr(sPoll)}, {hex(fl(FL_HN))}")
    I(f"s_lshl_b32 {sr(sDst)}, {sr(sIdx)}, 13")
    I(f"s_lshl_b32 {sr(sT0)}, {sr(sW)}, 11")
    I(f"s_add_u32 {sr(sDst)}, {sr(sDst)}, {sr(sT0)}")
    I(f"s_add_u32 {sr(sDst)}, {sr(sDst)}, {hex(WS_ACT)}")

    def ep(k):
        if k is None:
            return 2
        for r in range(16):
            k.I(f"v_mul_f32 {vr(ACC[0] + r)}, {vr(ACC[0] + r)}, {vr(ACC[1] + r)}")
        cvt16(k, EP, ACC[0])
        st16(k, EP, vr(vL), sDst, 0)
        st16(k, EP + 4, vr(vL), sDst, 1024)
        k.I(f"s_add_u32 {sr(sDst)}, {sr(sDst)}, {288 * 1024}")

    def ps(k, back=False):
        k.I(f"s_xor_b32 {sr(sPoll)}, {sr(sPoll)}, 512")

    gemm(k, "gu", 2, [3, 3, 3], [False, False], ep, BUFSZ, ps)


def role_red(k, dn):
    I = k.I
    p = "dn" if dn else "wo"
    rows = 576 if dn else 512
    k.L(f"{p}_entry")
    consts(k, TROW[R_DN if dn else R_WO])
    srd(k, S_A, 80 if dn else 40, 8 * rows * 1152)
    I(f"s_mul_i32 {sr(sC1)}, {sr(sIdx)}, 52")
    I(f"s_lshr_b32 {sr(sC1)}, {sr(sC1)}, 8")
    I(f"s_mul_i32 {sr(sT0)}, {sr(sC1)}, 5")
    I(f"s_sub_u32 {sr(sC3)}, {sr(sIdx)}, {sr(sT0)}")
    I(f"s_mul_i32 {sr(sC2)}, {sr(sC1)}, {rows * 1152}")
    I(f"s_mul_i32 {sr(sT0)}, {sr(sW)}, {16 * 1152}")
    I(f"s_add_u32 {sr(sC2)}, {sr(sC2)}, {sr(sT0)}")
    I(f"s_lshl_b32 {sr(sT0)}, {sr(sC3)}, 8")
    I(f"s_add_u32 {sr(sC2)}, {sr(sC2)}, {sr(sT0)}")
    I("s_waitcnt vmcnt(0) lgkmcnt(0)")
    load_weights(k, [(S_A, sC2)], rows // 64, 1152, "std" if dn else "o")
    rd_toggle(k)
    own_flag(k, FL_DN if dn else FL_WO)
    I(f"s_mul_i32 {sr(sSrc)}, {sr(sC1)}, {rows * 64}")
    I(f"s_add_u32 {sr(sSrc)}, {sr(sSrc)}, {hex(WS_ACT if dn else WS_O)}")
    if dn:
        I(f"s_mul_i32 {sr(sT0)}, {sr(sC1)}, 18")
        I(f"v_add_u32 {C(4)}, {sr(sT0)}, {C(4)}")
        I(f"v_lshrrev_b32 v8, 2, {C(4)}")
        I(f"v_and_b32 {C(4)}, 3, {C(4)}")
        I(f"v_lshlrev_b32 {C(4)}, 2, {C(4)}")
        I(f"v_lshl_add_u32 {C(4)}, v8, 7, {C(4)}")
        I(f"s_mov_b32 {sr(sPoll)}, {hex(fl(FL_GU))}")
    else:
        I(f"s_lshl_b32 {sr(sPoll)}, {sr(sC1)}, 9")
        I(f"s_add_u32 {sr(sPoll)}, {sr(sPoll)}, {hex(fl(FL_O))}")
    I(f"s_lshl_b32 {sr(sT0)}, {sr(sC3)}, 2")
    I(f"s_add_u32 {sr(sT0)}, {sr(sT0)}, {sr(sW)}")
    I(f"s_lshl_b32 {sr(sDst)}, {sr(sT0)}, 11")
    I(f"s_mul_i32 {sr(sT1)}, {sr(sC1)}, {BUFSZ}")
    I(f"s_add_u32 {sr(sDst)}, {sr(sDst)}, {sr(sT1)}")
    I(f"s_add_u32 {sr(sDst)}, {sr(sDst)}, {hex(WS_DP if dn else WS_WP)}")
    I(f"s_add_u32 {sr(sT1)}, {sr(sDst)}, 0x4000000")
    I(f"s_cmp_lt_u32 {sr(sT0)}, 18")
    I(f"s_cselect_b32 {sr(sDst)}, {sr(sDst)}, {sr(sT1)}")

    def ep(k):
        if k is None:
            return 2
        cvt16(k, EP, ACC[0])
        st16(k, EP, vr(vL), sDst, 0)
        st16(k, EP + 4, vr(vL), sDst, 1024)
        k.I(f"s_add_u32 {sr(sDst)}, {sr(sDst)}, {8 * BUFSZ}")

    gemm(k, p, 1, [3, 3, 3] if dn else [3, 3, 2], [False], ep, 8 * rows * 64, lambda k, back=False: None)


def red8(k, op, r, t):
    I = k.I
    for m in ("quad_perm:[1,0,3,2]", "quad_perm:[2,3,0,1]", "row_half_mirror"):
        I(f"{op}_dpp {vr(t)}, {vr(r)}, {vr(r)} {m} row_mask:0xf bank_mask:0xf")
        r, t = t, r
    return r


def sum_regs(k, regs, a, sq=False):
    I = k.I
    for i, r in enumerate(regs):
        d = a + i % 4
        if sq:
            I(f"v_mul_f32 {vr(d)}, {vr(r)}, {vr(r)}" if i < 4 else f"v_fmac_f32 {vr(d)}, {vr(r)}, {vr(r)}")
        elif i < 4:
            continue
        elif i < 8:
            I(f"v_add_f32 {vr(d)}, {vr(regs[i - 4])}, {vr(r)}")
        else:
            I(f"v_add_f32 {vr(d)}, {vr(d)}, {vr(r)}")
    I(f"v_add_f32 {vr(a)}, {vr(a)}, {vr(a + 1)}")
    I(f"v_add_f32 {vr(a + 2)}, {vr(a + 2)}, {vr(a + 3)}")
    I(f"v_add_f32 {vr(a)}, {vr(a)}, {vr(a + 2)}")


def unpack(k, dst, src, n):
    for r in range(n):
        k.I(f"v_lshlrev_b32 {vr(dst + 2 * r)}, 16, {vr(src + r)}")
        k.I(f"v_and_b32 {vr(dst + 2 * r + 1)}, 0xffff0000, {vr(src + r)}")


def rnd(k, r):
    k.I(f"v_cvt_pk_bf16_f32 {vr(r)}, {vr(r)}, {vr(r)}")
    k.I(f"v_lshlrev_b32 {vr(r)}, 16, {vr(r)}")


def normalise(k, x, n, mean, var, pk):
    I = k.I
    rnd(k, mean)
    rnd(k, var)
    I(f"v_add_f32 {vr(var)}, {f32(1e-5)}, {vr(var)}")
    rnd(k, var)
    I(f"v_sqrt_f32 {vr(var)}, {vr(var)}")
    rnd(k, var)
    I(f"v_rcp_f32 {vr(var)}, {vr(var)}")
    for r in range(n):
        I(f"v_sub_f32 {vr(x + r)}, {vr(x + r)}, {vr(mean)}")
    for r in range(n // 2):
        I(f"v_cvt_pk_bf16_f32 {vr(pk + r)}, {vr(x + 2 * r)}, {vr(x + 2 * r + 1)}")
    unpack(k, x, pk, n // 2)
    for r in range(n):
        I(f"v_mul_f32 {vr(x + r)}, {vr(x + r)}, {vr(var)}")
    for r in range(n // 2):
        I(f"v_cvt_pk_bf16_f32 {vr(pk + r)}, {vr(x + 2 * r)}, {vr(x + 2 * r + 1)}")


def role_ln(k):
    I = k.I
    k.L("ln_entry")
    consts(k, 6)
    I(f"s_cmp_lg_u32 {sr(sLn)}, 0")
    I("s_cbranch_scc1 ln_go")
    k.snap("z")
    I("v_mov_b64 v[8:9], 0")
    I("v_mov_b64 v[10:11], 0")
    I(f"s_mul_i32 {sr(sT0)}, {sr(sW)}, 10240")
    I(f"s_add_u32 {sr(sT0)}, {sr(sT0)}, {hex(WS_F)}")
    for i in range(10):
        I(f"buffer_store_dwordx4 v[8:11], {vr(vL)}, {sr(S_WS, 4)}, {sr(sT0)} offen offset:{(i % 4) * 1024} sc1")
        if i % 4 == 3:
            I(f"s_add_u32 {sr(sT0)}, {sr(sT0)}, 4096")
    I("s_waitcnt vmcnt(0)")
    I("s_barrier")
    I("v_mov_b32 v9, 1")
    I("s_mov_b64 exec, 1")
    I(f"global_store_dword v8, v9, {sr(S_DBG, 2)} offset:8 sc1")
    I("s_mov_b64 exec, -1")
    k.L("ln_go")
    k.restore("z")
    I("s_waitcnt vmcnt(0)")
    k.L("ln_loop")
    I(f"s_lshl_b32 {sr(sT0)}, {sr(sLn)}, 2")
    I(f"s_add_u32 {sr(sT0)}, {sr(sT0)}, {sr(sW)}")
    I(f"s_mul_i32 {sr(sT0)}, {sr(sT0)}, {8 * 1152}")
    for i in range(9):
        I(f"buffer_load_dwordx4 {vr(8 + 4 * i, 4)}, {C(2)}, {sr(S_X, 4)}, {sr(sT0)} offen offset:{i * 128}")
    X = 112
    unpack(k, X, 8, 36)
    sum_regs(k, list(range(X, X + 72)), 44)
    r = red8(k, "v_add_f32", 44, 45)
    I(f"v_mul_f32 v48, {f32(1 / 576)}, {vr(r)}")
    for i in range(72):
        I(f"v_sub_f32 {vr(184 + i)}, {vr(X + i)}, v48")
    sum_regs(k, list(range(184, 256)), 44, sq=True)
    r = red8(k, "v_add_f32", 44, 45)
    I(f"v_mul_f32 v49, {f32(1 / 576)}, {vr(r)}")
    normalise(k, X, 72, 48, 49, 8)
    I(f"s_mul_i32 {sr(sT0)}, {sr(sLn)}, {BUFSZ}")
    I(f"s_lshl_b32 {sr(sT1)}, {sr(sW)}, 7")
    I(f"s_add_u32 {sr(sT0)}, {sr(sT0)}, {sr(sT1)}")
    I(f"s_add_u32 {sr(sT0)}, {sr(sT0)}, {hex(WS_XN)}")
    for i in range(9):
        st16(k, 8 + 4 * i, C(0), sT0, 0)
        I(f"s_add_u32 {sr(sT0)}, {sr(sT0)}, 4096")
    I("s_waitcnt vmcnt(0)")
    wait_init(k, "ln")
    I(f"s_lshl_b32 {sr(sFlag)}, {sr(sLn)}, 7")
    I(f"s_lshl_b32 {sr(sT0)}, {sr(sW)}, 2")
    I(f"s_add_u32 {sr(sFlag)}, {sr(sFlag)}, {sr(sT0)}")
    I(f"s_add_u32 {sr(sFlag)}, {sr(sFlag)}, {hex(fl(FL_XN))}")
    I(f"s_add_u32 {sr(sT0)}, {sr(sLn)}, 1")
    put_flag(k, sr(sT0))
    I(f"s_add_u32 {sr(sLn)}, {sr(sLn)}, 60")
    I(f"s_cmp_lt_u32 {sr(sLn)}, 64")
    k.forget()
    I("s_cbranch_scc1 ln_loop")
    for r, nm in ((R_AT, "at"), (R_R1, "r1"), (R_R2, "r2")):
        I(f"s_cmp_eq_u32 {sr(sRole)}, {r}")
        I(f"s_cbranch_scc1 {nm}_entry")
    I("s_branch all_exit")


def acc_parts(k, A, P, n, ns):
    I = k.I
    for s in range(ns):
        for i in range(n):
            for r in range(4):
                src = P + 4 * (n * s + i) + r
                d = A + 8 * i + 2 * r
                if s == 0:
                    I(f"v_lshlrev_b32 {vr(d)}, 16, {vr(src)}")
                    I(f"v_and_b32 {vr(d + 1)}, 0xffff0000, {vr(src)}")
                else:
                    I(f"v_dot2c_f32_bf16 {vr(d)}, {sr(sC0)}, {vr(src)}")
                    I(f"v_dot2c_f32_bf16 {vr(d + 1)}, {sr(sC1)}, {vr(src)}")


def role_r1(k):
    I = k.I
    k.L("r1_entry")
    I(f"s_cmp_eq_u32 {sr(sW)}, 3")
    I("s_cbranch_scc1 all_exit")
    own_flag(k, FL_HN)
    I(f"s_mov_b32 {sr(sC0)}, 0x3f80")
    I(f"s_mov_b32 {sr(sC1)}, 0x3f800000")
    I(f"s_lshr_b32 {sr(sSeg)}, {sr(sIdx)}, 2")
    I(f"s_and_b32 {sr(sC2)}, {sr(sIdx)}, 3")
    I(f"s_mul_i32 {sr(sT0)}, {sr(sW)}, 12288")
    I(f"s_lshl_b32 {sr(sT1)}, {sr(sC2)}, 7")
    I(f"s_add_u32 {sr(sT0)}, {sr(sT0)}, {sr(sT1)}")
    I(f"v_add_u32 v3, {sr(sT0)}, {C(0)}")
    I(f"v_add_u32 v4, 4096, v3")
    I(f"v_add_u32 v5, 8192, v3")
    I(f"s_mul_i32 {sr(sT0)}, {sr(sW)}, 384")
    I(f"s_mul_i32 {sr(sT1)}, {sr(sC2)}, {8 * 1152}")
    I(f"s_add_u32 {sr(sT0)}, {sr(sT0)}, {sr(sT1)}")
    I(f"v_add_u32 v6, {sr(sT0)}, {C(1)}")
    I(f"s_lshl_b32 {sr(sT0)}, {sr(sW)}, 6")
    I(f"v_add_u32 v7, {sr(sT0)}, {C(4)}")
    I(f"s_mov_b32 {sr(sPoll)}, {hex(fl(FL_WO))}")
    k.L("r1_loop")
    XR, P, A, PK = 8, 112, 24, 48
    I(f"s_mul_i32 {sr(sT0)}, {sr(sSeg)}, {32 * 1152}")
    for i in range(3):
        for u in range(2):
            I(f"buffer_load_dwordx2 {vr(XR + 4 * i + 2 * u, 2)}, v6, {sr(S_X, 4)}, {sr(sT0)} offen offset:{128 * i + 16 * u}")
    I(f"s_add_u32 {sr(sNeed)}, {sr(sSeg)}, 1")
    spin(k, "r1_sp", C(3), sr(sPoll), sr(sNeed), wide=True)
    I(f"s_mul_i32 {sr(sT0)}, {sr(sSeg)}, {8 * BUFSZ}")
    I(f"s_add_u32 {sr(sT0)}, {sr(sT0)}, {hex(WS_WP)}")
    for s in range(8):
        for i in range(3):
            I(f"buffer_load_dwordx4 {vr(P + 4 * (3 * s + i), 4)}, {vr(3 + i)}, {sr(S_WS, 4)}, {sr(sT0)} offen sc1")
        if s < 7:
            I(f"s_add_u32 {sr(sT0)}, {sr(sT0)}, {BUFSZ}")
    unpack(k, 60, XR, 12)
    acc_parts(k, A, P, 3, 8)
    for r in range(12):
        I(f"v_cvt_pk_bf16_f32 {vr(PK + r)}, {vr(A + 2 * r)}, {vr(A + 2 * r + 1)}")
    unpack(k, A, PK, 12)
    for r in range(24):
        I(f"v_add_f32 {vr(A + r)}, {vr(A + r)}, {vr(60 + r)}")
    for r in range(12):
        I(f"v_cvt_pk_bf16_f32 {vr(PK + r)}, {vr(A + 2 * r)}, {vr(A + 2 * r + 1)}")
    I(f"s_mul_i32 {sr(sT0)}, {sr(sSeg)}, {BUFSZ}")
    I(f"s_add_u32 {sr(sT1)}, {sr(sT0)}, {hex(WS_H)}")
    I(f"s_add_u32 {sr(sT0)}, {sr(sT0)}, {hex(WS_HN)}")
    unpack(k, A, PK, 12)
    for i in range(3):
        st16(k, PK + 4 * i, vr(3 + i), sT1, 0)
    sum_regs(k, list(range(A, A + 24)), 84)
    r = red8(k, "v_add_f32", 84, 85)
    I(f"v_mul_f32 v88, {f32(1 / 192)}, {vr(r)}")
    for i in range(24):
        I(f"v_sub_f32 {vr(60 + i)}, {vr(A + i)}, v88")
    sum_regs(k, list(range(60, 84)), 84, sq=True)
    r = red8(k, "v_add_f32", 84, 85)
    I(f"v_mov_b32 v89, {vr(r)}")
    I(f"ds_write_b64 v7, v[88:89]")
    I("s_waitcnt lgkmcnt(0)")
    I("s_barrier")
    I(f"v_and_b32 v84, 0x13f, v7")
    I(f"ds_read2_b64 v[60:63], v84 offset0:0 offset1:8")
    I(f"ds_read_b64 v[64:65], v84 offset:128")
    I(f"v_xor_b32 v7, 0x100, v7")
    I(f"v_add_f32 v88, v60, v62")
    I(f"v_add_f32 v89, v61, v63")
    I(f"v_add_f32 v88, v88, v64")
    I(f"v_add_f32 v89, v89, v65")
    I(f"v_mul_f32 v88, {f32(1 / 3)}, v88")
    for r in (60, 62, 64):
        I(f"v_sub_f32 {vr(r)}, {vr(r)}, v88")
    I(f"v_mul_f32 v60, v60, v60")
    I(f"v_fmac_f32 v60, v62, v62")
    I(f"v_fmac_f32 v60, v64, v64")
    I(f"v_fmac_f32 v89, {f32(192.0)}, v60")
    I(f"v_mul_f32 v89, {f32(1 / 576)}, v89")
    normalise(k, A, 24, 88, 89, 60)
    for i in range(3):
        st16(k, 60 + 4 * i, vr(3 + i), sT0, 0)
    I("s_waitcnt vmcnt(0)")
    put_flag(k, sr(sNeed))
    I(f"s_add_u32 {sr(sSeg)}, {sr(sSeg)}, 2")
    I(f"s_cmp_lt_u32 {sr(sSeg)}, 64")
    k.forget()
    I("s_cbranch_scc1 r1_loop")
    I("s_branch all_exit")


def role_r2(k):
    I = k.I
    k.L("r2_entry")
    srd(k, S_A, 88, 2048 * 1152)
    I(f"s_mov_b32 {sr(sC0)}, 0x3f80")
    I(f"s_mov_b32 {sr(sC1)}, 0x3f800000")
    I(f"s_lshl_b32 {sr(sT0)}, {sr(sIdx)}, 2")
    I(f"s_add_u32 {sr(sT0)}, {sr(sT0)}, {sr(sW)}")
    I(f"s_mul_i32 {sr(sC2)}, {sr(sT0)}, 57")
    I(f"s_lshr_b32 {sr(sC2)}, {sr(sC2)}, 9")
    I(f"s_mul_i32 {sr(sT1)}, {sr(sC2)}, 9")
    I(f"s_sub_u32 {sr(sC3)}, {sr(sT0)}, {sr(sT1)}")
    I(f"s_lshl_b32 {sr(sT0)}, {sr(sC3)}, 12")
    I(f"s_lshl_b32 {sr(sT1)}, {sr(sC2)}, 7")
    I(f"s_add_u32 {sr(sT0)}, {sr(sT0)}, {sr(sT1)}")
    I(f"v_add_u32 v3, {sr(sT0)}, {C(0)}")
    I(f"s_lshl_b32 {sr(sT0)}, {sr(sC3)}, 7")
    I(f"s_mul_i32 {sr(sT1)}, {sr(sC2)}, {8 * 1152}")
    I(f"s_add_u32 {sr(sT0)}, {sr(sT0)}, {sr(sT1)}")
    I(f"v_add_u32 v6, {sr(sT0)}, {C(1)}")
    I(f"s_mov_b32 {sr(sPoll)}, {hex(fl(FL_DN))}")
    I(f"s_mov_b32 {sr(sSeg)}, 0")
    I("s_waitcnt lgkmcnt(0)")
    k.L("r2_loop")
    P, A = 112, 24
    I(f"s_add_u32 {sr(sNeed)}, {sr(sSeg)}, 1")
    spin(k, "r2_sp", C(3), sr(sPoll), sr(sNeed), wide=True)
    I(f"s_mul_i32 {sr(sT1)}, {sr(sSeg)}, {BUFSZ}")
    I(f"s_lshl_b32 {sr(sT0)}, {sr(sT1)}, 3")
    I(f"s_add_u32 {sr(sT2)}, {sr(sT1)}, {hex(WS_H)}")
    I(f"s_add_u32 {sr(sT0)}, {sr(sT0)}, {hex(WS_DP)}")
    I(f"buffer_load_dwordx4 v[8:11], v3, {sr(S_WS, 4)}, {sr(sT2)} offen sc1")
    for s in range(8):
        I(f"buffer_load_dwordx4 {vr(P + 4 * s, 4)}, v3, {sr(S_WS, 4)}, {sr(sT0)} offen sc1")
        if s < 7:
            I(f"s_add_u32 {sr(sT0)}, {sr(sT0)}, {BUFSZ}")
    unpack(k, 60, 8, 4)
    acc_parts(k, A, P, 1, 8)
    for r in range(4):
        I(f"v_cvt_pk_bf16_f32 {vr(48 + r)}, {vr(A + 2 * r)}, {vr(A + 2 * r + 1)}")
    unpack(k, A, 48, 4)
    for r in range(8):
        I(f"v_add_f32 {vr(A + r)}, {vr(A + r)}, {vr(60 + r)}")
    for r in range(4):
        I(f"v_cvt_pk_bf16_f32 {vr(48 + r)}, {vr(A + 2 * r)}, {vr(A + 2 * r + 1)}")
    I(f"buffer_store_dwordx2 v[48:49], v6, {sr(S_A, 4)}, {sr(sT1)} offen")
    I(f"buffer_store_dwordx2 v[50:51], v6, {sr(S_A, 4)}, {sr(sT1)} offen offset:16")
    I(f"s_add_u32 {sr(sSeg)}, {sr(sSeg)}, 1")
    I(f"s_cmp_lt_u32 {sr(sSeg)}, 64")
    k.forget()
    I("s_cbranch_scc1 r2_loop")
    I("s_branch all_exit")


def role_at(k):
    I = k.I
    k.L("at_entry")
    consts(k, TROW[R_AT])
    own_flag(k, FL_O)
    Q, KK, V, X, VM, S, SM, O = 8, 24, 56, 72, 88, 112, 120, 128
    sQ, sK, sV, sKM = sSrc, sM0, sDst2, sC3
    I(f"s_and_b32 {sr(sC1)}, {sr(sW)}, 1")
    I(f"s_lshr_b32 {sr(sC2)}, {sr(sW)}, 1")
    I(f"s_lshl_b32 {sr(sQ)}, {sr(sIdx)}, 13")
    I(f"s_lshl_b32 {sr(sT0)}, {sr(sC1)}, 12")
    I(f"s_add_u32 {sr(sKM)}, {sr(sQ)}, {hex(WS_KM)}")
    I(f"s_add_u32 {sr(sDst)}, {sr(sQ)}, {hex(WS_O)}")
    I(f"s_add_u32 {sr(sQ)}, {sr(sQ)}, {sr(sT0)}")
    I(f"s_add_u32 {sr(sQ)}, {sr(sQ)}, {hex(WS_Q)}")
    I(f"s_lshl_b32 {sr(sK)}, {sr(sIdx)}, 14")
    I(f"s_lshl_b32 {sr(sT0)}, {sr(sC2)}, 13")
    I(f"s_add_u32 {sr(sV)}, {sr(sK)}, {sr(sT0)}")
    I(f"s_lshl_b32 {sr(sT0)}, {sr(sC2)}, 12")
    I(f"s_add_u32 {sr(sDst)}, {sr(sDst)}, {sr(sT0)}")
    I(f"s_lshl_b32 {sr(sT1)}, {sr(sC1)}, 8")
    I(f"s_add_u32 {sr(sDst)}, {sr(sDst)}, {sr(sT1)}")
    I(f"s_mov_b32 {sr(sC0)}, {f32(128 ** -0.5 * 1.4426950408889634)}")
    I("s_waitcnt vmcnt(0)")
    I(f"v_add_u32 {C(4)}, {sr(sT0)}, {C(4)}")
    for u in range(1, 4):
        I(f"v_add_u32 {vr(2 + u)}, {4096 * u}, {vr(vL)}")
    I(f"s_lshl_b32 {sr(sT0)}, {sr(sC1)}, 4")
    I(f"v_add_u32 {C(1)}, {sr(sT0)}, {C(1)}")
    for j in range(8):
        I(f"v_cmp_le_i32 {sr(sMask + 2 * j, 2)}, {8 * (j // 4) + j % 4}, {C(1)}")
    I(f"s_sub_u32 {sr(sT0)}, {FL_Q - FL_KV}, {sr(sIdx)}")
    I(f"s_lshr_b32 {sr(sT1)}, {sr(sIdx)}, 1")
    I(f"s_add_u32 {sr(sT0)}, {sr(sT0)}, {sr(sT1)}")
    I(f"s_lshl_b32 {sr(sT0)}, {sr(sT0)}, 7")
    I(f"v_mul_lo_u32 {C(3)}, {C(3)}, {sr(sT0)}")
    I(f"v_add_u32 {C(3)}, {C(3)}, {C(2)}")
    I(f"s_lshl_b32 {sr(sT0)}, {sr(sIdx)}, 7")
    I(f"s_add_u32 {sr(sT2)}, {sr(sT0)}, {hex(fl(FL_KV))}")
    I(f"s_add_u32 {sr(sPoll)}, {sr(sT0)}, {hex(fl(FL_KM))}")
    I(f"v_mov_b32 v6, {f32(-1e30)}")
    I(f"v_mov_b32 v7, 0")
    I(f"s_mov_b32 {sr(sSeg)}, 0")
    I(f"s_mov_b32 {sr(sKn)}, 0")
    off = lambda u: vr(vL) if u == 0 else vr(2 + u)

    def known(lab, need):
        I(f"s_cmp_ge_u32 {sr(sKn)}, {need}")
        I(f"s_cbranch_scc1 {lab}_ok")
        spin(k, lab, C(3), sr(sT2), need)
        r = red8(k, "v_min_u32", 96, 97)
        I(f"v_readfirstlane_b32 {sr(sKn)}, {vr(r)}")
        k.L(f"{lab}_ok")

    def ld_qk():
        for u in range(4):
            I(f"buffer_load_dwordx4 {vr(Q + 4 * u, 4)}, {vr(vL)}, {sr(S_WS, 4)}, {sr(sQ)} offen offset:{u * 1024} sc1")
            for kt in range(2):
                I(f"buffer_load_dwordx4 {vr(KK + 8 * u + 4 * kt, 4)}, {off(u)}, {sr(S_WS, 4)}, {sr(sK)} offen "
                  f"offset:{kt * 1024} sc1")
        I(f"s_add_u32 {sr(sQ)}, {sr(sQ)}, {32 * 8192}")
        I(f"s_add_u32 {sr(sK)}, {sr(sK)}, {32 * 16384}")

    def ld_v():
        for u in range(2):
            for et in range(2):
                I(f"buffer_load_dwordx4 {vr(V + 8 * u + 4 * et, 4)}, {off(u)}, {sr(S_WS, 4)}, {sr(sV)} offen "
                  f"offset:{2048 + et * 1024} sc1")
        I(f"s_add_u32 {sr(sV)}, {sr(sV)}, {32 * 16384}")

    known("at_k0", 1)
    ld_qk()
    for _ in range(2):
        I(f"buffer_load_dword {vr(97)}, {C(2)}, {sr(S_WS, 4)}, {sr(sPoll)} offen sc1")
    ld_v()
    k.L("at_loop")
    k.forget()
    for u in range(4):
        I(f"s_waitcnt vmcnt({6 + 3 * (3 - u)})")
        for kt in range(2):
            I(f"v_mfma_f32_16x16x32_bf16 {vr(S + 4 * kt, 4)}, {vr(KK + 8 * u + 4 * kt, 4)}, {vr(Q + 4 * u, 4)}, "
              f"{vr(S + 4 * kt, 4) if u else 0}")
    I("s_waitcnt vmcnt(4)")
    put_flag(k, sr(sSeg))
    for j in range(8):
        I(f"v_cndmask_b32_e64 {vr(S + j)}, v6, {vr(S + j)}, {sr(sMask + 2 * j, 2)}")
    I(f"v_max3_f32 v2, {vr(S)}, {vr(S + 1)}, {vr(S + 2)}")
    I(f"v_max3_f32 v2, v2, {vr(S + 3)}, {vr(S + 4)}")
    I(f"v_max3_f32 v2, v2, {vr(S + 5)}, {vr(S + 6)}")
    I(f"v_max_f32 v2, v2, {vr(S + 7)}")
    for r in range(0, 16, 2):
        I(f"v_mov_b64 {vr(144 + r, 2)}, {vr(Q + r, 2)}")
    I(f"s_add_u32 {sr(sNeed)}, {sr(sSeg)}, 2")
    I(f"s_min_u32 {sr(sNeed)}, {sr(sNeed)}, 64")
    known("at_k1", sr(sNeed))
    I(f"s_add_u32 {sr(sNeed)}, {sr(sSeg)}, 1")
    spin(k, "at_sp", C(2), sr(sPoll), sr(sNeed))
    for u in range(4):
        I(f"buffer_load_dwordx4 {vr(X + 4 * u, 4)}, {off(u // 2)}, {sr(S_WS, 4)}, {sr(sKM)} offen "
          f"offset:{(u % 2) * 2048} sc1")
    for u in range(2):
        I(f"buffer_load_dwordx2 {vr(VM + 2 * u, 2)}, {C(4)}, {sr(S_WS, 4)}, {sr(sKM)} offen offset:{1024 + u * 2048} sc1")
    I(f"s_add_u32 {sr(sKM)}, {sr(sKM)}, {32 * 8192}")
    I(f"s_cmp_eq_u32 {sr(sSeg)}, 63")
    I(f"s_cbranch_scc1 at_last")

    def finish(last):
        n = 0 if last else 12
        if not last:
            ld_qk()
        k.forget()
        for u in range(4):
            I(f"s_waitcnt vmcnt({n + 2 + 3 - u})")
            I(f"v_mfma_f32_16x16x32_bf16 {vr(SM, 4)}, {vr(X + 4 * u, 4)}, {vr(144 + 4 * u, 4)}, {vr(SM, 4) if u else 0}")
        I("s_mov_b32 exec_hi, 0")
        for r in range(4):
            I(f"v_mov_b32 {vr(SM + r)}, v6")
        I("s_mov_b32 exec_hi, -1")
        I(f"v_max3_f32 v2, v2, {vr(SM)}, {vr(SM + 1)}")
        I(f"v_max3_f32 v92, v2, {vr(SM + 2)}, {vr(SM + 3)}")
        I(f"v_max3_f32 v93, v2, {vr(SM + 2)}, {vr(SM + 3)}")
        I("v_permlane16_swap_b32 v92, v93")
        I("v_max_f32 v2, v92, v93")
        I("v_max_f32 v92, v92, v93")
        I("v_permlane32_swap_b32 v2, v92")
        I("v_max_f32 v2, v2, v92")
        I(f"v_mul_f32 v2, {sr(sC0)}, v2")
        for r in range(12):
            I(f"v_fma_f32 {vr(S + r)}, {vr(S + r)}, {sr(sC0)}, -v2")
        for r in range(12):
            I(f"v_exp_f32 {vr(S + r)}, {vr(S + r)}")
        for r in range(4):
            I(f"v_cvt_pk_bf16_f32 {vr(124 + r)}, {vr(S + 2 * r)}, {vr(S + 2 * r + 1)}")
        I(f"v_cvt_pk_bf16_f32 v92, {vr(SM)}, {vr(SM + 2)}")
        I(f"v_cvt_pk_bf16_f32 v94, {vr(SM + 1)}, {vr(SM + 3)}")
        for u in range(2):
            for et in range(2):
                I(f"v_mfma_f32_16x16x32_bf16 {vr(O + 8 * u + 4 * et, 4)}, {vr(V + 8 * u + 4 * et, 4)}, {vr(124, 4)}, 0")
                if u == 0 and et == 0:
                    I("v_permlane32_swap_b32 v92, v94")
                    I("v_mov_b32 v95, 0")
                if u == 0 and et == 1:
                    I("v_mov_b32 v93, v94")
                    I("v_mov_b32 v92, 0")
        sum_regs(k, list(range(S, S + 12)), 160)
        I(f"s_waitcnt vmcnt({n})")
        for u in range(2):
            for et in range(2):
                I(f"v_mfma_f32_16x16x16_bf16 {vr(O + 8 * u + 4 * et, 4)}, {vr(VM + 2 * u, 2)}, "
                  f"{vr(94 - 2 * et, 2)}, {vr(O + 8 * u + 4 * et, 4)}")
        I("v_mov_b32 v161, v160")
        I("v_permlane16_swap_b32 v160, v161")
        I("v_add_f32 v162, v160, v161")
        I("v_add_f32 v160, v160, v161")
        I("v_permlane32_swap_b32 v160, v162")
        I("v_add_f32 v160, v160, v162")
        I("v_rcp_f32 v160, v160")
        for r in range(16):
            I(f"v_mul_f32 {vr(O + r)}, {vr(O + r)}, v160")
        cvt16(k, 164, O)
        st16(k, 164, C(0), sDst, 0)
        st16(k, 168, C(0), sDst, 2048)
        I(f"s_add_u32 {sr(sDst)}, {sr(sDst)}, {256 * 1024}")
        I(f"s_add_u32 {sr(sSeg)}, {sr(sSeg)}, 1")
        if last:
            I("s_waitcnt vmcnt(0)")
            put_flag(k, sr(sSeg))
            I("s_branch all_exit")
        else:
            ld_v()
            I("s_branch at_loop")

    finish(False)
    k.L("at_last")
    finish(True)


def all_roles(k):
    role_proj(k, False)
    role_proj(k, True)
    role_gu(k)
    role_red(k, False)
    role_red(k, True)
    role_ln(k)
    role_r1(k)
    role_r2(k)
    role_at(k)
```

```python
import sys
sys.path.insert(0, 'exp')
import h
import chain, roles
from gen import K

NAME = "sequential_preLN__memory_aug_recurrent_mem_tr__glu_gated_bilinear__prompt_kernel"


def full_asm(name=NAME, opts=("early", "one1", "one2", "a1", "full"), prof=False):
    chain.OPT.clear()
    chain.OPT.update({x.split('=')[0]: int(x.split('=')[1]) if '=' in x else 1 for x in opts})
    roles.OPT.clear()
    roles.OPT.update(chain.OPT)
    k = K(timed=True)
    roles.entry(k)
    k.L("chain_entry")
    chain.chain_kernel(prof=prof, k=k)
    k.I("s_branch all_exit")
    k.forget()
    roles.all_roles(k)
    k.L("all_exit")
    k.I("s_waitcnt vmcnt(0)")
    body = k.render()
    s = "; @launch grid=(256,1,1) block=(256,1,1) lds=163840\n"
    s += '.amdgcn_target "amdgcn-amd-amdhsa--gfx950"\n.text\n'
    s += f".globl {name}\n.p2align 8\n.type {name},@function\n{name}:\n"
    s += body + "\ts_endpgm\n" + chain.table_text("chain_tbl") + roles.tables_text()
    s += h.KD.format(name=name, vgpr=512, acc=256, ka=14 * 8)
    return s, k


if __name__ == "__main__":
    s, k = full_asm()
    co = h.build(s, NAME, 14, "full", launch_lists=True)
    print(co, k.nops, len(s), h.L.address_register_problem(co, NAME, None))
    if len(sys.argv) > 1:
        open(sys.argv[1], "w").write(s)
```

```python
from gen import K, vr, ar, sr
from lay import *
import roles

STAMP = [False]
OPT = {}
PS = lambda: OPT.get('ps', 9344)

vL, vIdx, vLW, vLW2, vAd, vAk, vId = 0, 1, 2, 3, 4, 5, 6
D0 = 8


def D(i, n=1):
    return vr(D0 + i, n)


S_WS, S_QK, S_WV, S_WO, S_M0 = 4, 8, 12, 16, 20
S_DBG = 24
sW, sH, sStep, sKV, sKM, sPst, sPz, sMr, sMw, sMrs, sBud, sC, sW512, sRole, sT0, sT1, sT2, sT3 = range(26, 44)
sPld = 44
sLo = 48
sTm = 50
sRot = 94
sPar = 59
sKnown, sKvF, sKmF = 97, 98, 99
sKm = 58

LD_SEL = 12288
LD_O = 13312
LD_X = 16384
LD_KV = 32768
LD_RES = 49152
KVF_OFF = 2048 + 384


def stage(t):
    return (t // 3) * 4096 + (t % 3) * 1024


RES_SLABS = [("qk", 7), ("qk", 11), ("qk", 15), ("v", 0), ("v", 4), ("o", 0 * 4 + 0), ("o", 0 * 4 + 3)]
HALF_SLAB = ("o", 1 * 4 + 3)
ALL_SLABS = [("qk", c) for c in range(18)] + [("v", t) for t in range(9)] + [("o", x) for x in range(8)] + [("z", 0)]
REG_SLABS = [s for s in ALL_SLABS if s not in RES_SLABS and s != HALF_SLAB]
ORDER = REG_SLABS + [HALF_SLAB] + RES_SLABS
assert len(ORDER) == 36
FCH = [(0, 1), (1, 0), (2, 3), (3, 2)]

WREG = {}
_n = 0
for s in REG_SLABS:
    for j in range(2):
        WREG[(s, j)] = _n
        _n += 1
WREG[(HALF_SLAB, 1)] = _n
assert _n == 56


def wreg(slab, j, off=0, n=8):
    i = WREG[(slab, j)]
    if i < 25:
        return vr(56 + 8 * i + off, n)
    return ar(8 * (i - 25) + off, n)


def res_addr(slab, j):
    if slab == HALF_SLAB:
        assert j == 0
        return LD_X
    return LD_RES + RES_SLABS.index(slab) * 16384 + j * 2048


def table():
    T = np.zeros((4, 6, 64, 4), np.uint32)
    ONE = 0x3F80
    for w in range(4):
        for l in range(64):
            n, g = l % 16, l // 16
            i, hb = n % 8, n // 8
            idx = 0xEEEE if hb else 0x4444
            smr = (2 + g % 2) * 256 + i * 16 + (2 * hb + g // 2) * 4
            vad = g * 128 + i * 16
            T[w, 0, l] = [idx | (smr << 16), vad, vad + hb * 512, 0]
            idn = [ONE if 4 * g + e == n else 0 for e in range(4)]
            r, c4 = n // 4, n % 4
            f = 2 * r + g % 2
            rowb = (16 * r + 2 * g) * 256
            trqk = rowb + ((64 * w + 32 * (c4 // 2) + 8 * (c4 % 2)) ^ (f << 5))
            trv = rowb + ((64 * w + 8 * c4) ^ (f << 5))
            T[w, 1, l] = [idn[0] | idn[1] << 16, idn[2] | idn[3] << 16, trqk, trv]
            ps = (g // 2) * 512 + (n // 4) * 128 + (g % 2) * 64 + (n % 4) * 16
            zs = (n // 8) * 128 + (2 * g + (n // 4) % 2) * 16 + (n % 4) * 4
            pl = (l >> 3) * PS() + (l & 7) * 16
            o = l & 7
            if w == 3:
                ms = rho(o // 2, g % 2) * 16 + (2 * (o % 2) + g // 2) * 4
            else:
                ms = (o // 4) * 64 + g * 16 + (o % 4) * 4
            T[w, 2, l] = [ps, zs, pl, ms]
            sel = [0] * 8
            if n % 4 < 2:
                sel[4 * (n % 4) + n // 4] = ONE
            T[w, 3, l] = [sel[2 * e] | sel[2 * e + 1] << 16 for e in range(4)]
            q, p = g, n
            f = (w >> 1) * 4 + (w & 1) * 2 + (q >> 1)
            p2 = p ^ (f << 1)
            voz = (4 * (q // 2) + q % 2) * 8192 + p2 * 16
            rowp = (16 * (q // 2) + 2 * (q % 2)) * 1152
            voo = rowp + 288 * (p2 // 4) + 16 * (p2 % 4)
            vozo = rowp + 288 * (p2 // 4) + ((p2 % 4) // 2) * 64 * 1152 + (p2 % 2) * 16
            T[w, 4, l] = [voz, voo, vozo, q * 8192 + p2 * 16]
            x = w * 64 + l
            hA, gA, ii, qq = x // 128, (x // 32) % 4, (x // 4) % 8, x % 4
            T[w, 5, l] = [ii * 1152 + 2 * mcol(0, hA, gA, qq, 0), ii * 1152 + 2 * mcol(8, hA, gA, qq, 0), x * 4, 0]
    return T


def table_text(label):
    T = table().reshape(-1, 8)
    s = f".p2align 8\n.type {label},@object\n{label}:\n"
    for row in T:
        s += ".long " + ",".join(hex(int(x)) for x in row) + "\n"
    s += f".size {label}, {T.size * 4}\n"
    return s


def srd(k, s, off, nbytes):
    k.I(f"s_load_dwordx2 {sr(s, 2)}, s[0:1], {off}")
    return lambda: k.I(f"s_mov_b32 {sr(s + 2)}, {hex(nbytes)}\ns_mov_b32 {sr(s + 3)}, 0x00020000")


def lds_ref(a):
    if a < 65536 - 4096 + 4096:
        return vLW, a
    if a < 131072:
        return vLW2, a - 65536
    return None, a - 131072


def rd_frag(k, dst, slab, j, tmp=None):
    a = res_addr(slab, j)
    reg, off = lds_ref(a)
    out = []
    if reg is None:
        out.append(f"v_add_u32 {D(dst + 7)}, 0x10000, {vr(vLW2)}")
        r = D(dst + 7)
    else:
        r = vr(reg)
    out.append(f"ds_read_b128 {D(dst, 4)}, {r} offset:{off}")
    out.append(f"ds_read_b128 {D(dst + 4, 4)}, {r} offset:{off + 1024}")
    return out


def smf(acc, a, b):
    return f"v_smfmac_f32_16x16x64_bf16 {D(acc, 4)}, {D(a, 4)}, {b}, {vr(vIdx)}"


def prologue(k, tbl, nwg_stride=8, prof=False):
    I = k.I
    fin = [srd(k, S_WS, 104, WS_BYTES), srd(k, S_WV, 32, 576 * 8192), srd(k, S_WO, 40, 32 * 147456),
           srd(k, S_M0, 8, 9216)]
    I(f"s_load_dwordx4 s[60:63], s[0:1], 16")
    I(f"s_load_dwordx2 {sr(S_DBG, 2)}, s[0:1], 96")
    I(f"v_lshrrev_b32 v8, 6, v0")
    I(f"v_readfirstlane_b32 {sr(sW)}, v8")
    I(f"v_and_b32 v0, 63, v0")
    I(f"v_lshlrev_b32 {vr(vL)}, 4, v0")
    I(f"s_lshr_b32 {sr(sH)}, s2, 3")
    I(f"s_getpc_b64 s[64:65]")
    k.L("chain_pc")
    I(f"s_add_u32 s64, s64, {tbl}-chain_pc")
    I(f"s_addc_u32 s65, s65, 0")
    I(f"s_mul_i32 {sr(sT0)}, {sr(sW)}, 6144")
    I(f"v_add_u32 v8, {sr(sT0)}, {vr(vL)}")
    I(f"v_add_u32 v9, 3072, v8")
    I(f"global_load_dwordx4 {D(16, 4)}, v9, s[64:65] offset:1024")
    I(f"global_load_dwordx4 {D(20, 4)}, v8, s[64:65]")
    I(f"global_load_dwordx4 {D(24, 4)}, v8, s[64:65] offset:1024")
    I(f"global_load_dwordx4 {D(28, 4)}, v8, s[64:65] offset:2048")
    I(f"global_load_dwordx4 {D(32, 4)}, v9, s[64:65]")
    I(f"global_load_dwordx4 {D(36, 4)}, v9, s[64:65] offset:2048")
    I(f"s_lshl_b32 {sr(sT0)}, {sr(sW)}, 12")
    I(f"v_add_u32 {vr(vLW)}, {sr(sT0)}, {vr(vL)}")
    I(f"v_add_u32 {vr(vLW2)}, 0x10000, {vr(vLW)}")
    I("s_waitcnt lgkmcnt(0)")
    for f in fin:
        f()
    roles.stamp_base(k, sW)
    roles.stamp(k, 200, D0 + 46, D0 + 47)
    I(f"s_cmp_lt_u32 {sr(sW)}, 2")
    I(f"s_cselect_b32 {sr(S_QK)}, s60, s62")
    I(f"s_cselect_b32 {sr(S_QK + 1)}, s61, s63")
    I(f"s_mov_b32 {sr(S_QK + 2)}, {576 * 8192}")
    I(f"s_mov_b32 {sr(S_QK + 3)}, 0x00020000")
    I(f"s_and_b32 s66, {sr(sW)}, 1")
    I(f"s_lshr_b32 s67, {sr(sW)}, 1")
    I(f"s_lshl_b32 s68, {sr(sH)}, 8")
    I(f"s_mul_i32 s69, {sr(sH)}, 147456")
    I(f"s_lshl_b32 s70, s66, 17")
    I(f"s_add_u32 s70, s70, s68")
    I(f"s_lshl_b32 s71, {sr(sW)}, 17")
    I(f"s_add_u32 s71, s71, s68")
    I(f"s_lshl_b32 s72, s66, 14")
    I(f"s_add_u32 s72, s72, s68")
    I(f"s_mul_i32 s73, s67, {288 * 8192}")
    I(f"s_add_u32 s73, s73, s72")
    I(f"s_mul_i32 s74, s66, 1152")
    I(f"s_add_u32 s74, s74, s69")
    I(f"s_mul_i32 s77, s67, {32 * 1152}")
    I(f"s_add_u32 s78, s74, s77")
    I(f"s_lshl_b32 s75, s67, 6")
    I(f"s_add_u32 s74, s74, s75")
    I(f"s_add_u32 s75, s74, s77")
    I(f"s_sub_u32 s76, s74, s77")
    I(f"s_add_u32 s76, s76, {32 * 1152}")
    I(f"s_lshl_b32 s79, {sr(sW)}, 12")

    def dma(n):
        kind, x = ORDER[n]
        slot = (n + 4) % 10
        for i in range(4):
            if kind == "qk":
                t, hA = x // 2, x % 2
                if t < 8:
                    base, c, vo = 70, (mcol(t, hA, 0, 0, 0) + 4 * i) * 8192, D(19)
                else:
                    base, c, vo = 72, (144 * (2 * hA + i // 2) + 128 + 8 * (i % 2)) * 8192, D(16)
                d = S_QK
            elif kind == "v":
                if x < 8:
                    base, c, vo = 71, (mcol(x, 0, 0, 0, 0) + 4 * i) * 8192, D(19)
                else:
                    base, c, vo = 73, (144 * (i // 2) + 128 + 8 * (i % 2)) * 8192, D(16)
                d = S_WV
            elif kind == "o":
                reg, f = x // 4, x % 4
                base = 75 if f % 2 == 0 else 76
                c, vo, d = (64 * (f // 2) + 4 * i) * 1152 + 128 * reg, D(17), S_WO
            else:
                base, c, vo, d = 78, 4 * i * 1152 + 256, D(18), S_WO
            I(f"s_add_u32 {sr(sT0)}, s{base}, {c}")
            I(f"s_add_u32 m0, s79, {slot * 16384 + i * 1024}")
            nt = "" if d == S_WO else "nt "
            I(f"buffer_load_dwordx4 {vo}, {sr(d, 4)}, {sr(sT0)} offen {nt}lds")
        k.tag(f"slab{n}")

    for n in range(9):
        dma(n)
    I(f"v_mov_b32 {vr(vIdx)}, {D(20)}")
    I(f"v_mov_b32 {vr(vAd)}, {D(21)}")
    I(f"v_mov_b32 {vr(vAk)}, {D(22)}")
    I(f"v_mov_b32 {vr(vId)}, {D(24)}")
    I(f"v_mov_b32 {vr(vId + 1)}, {D(25)}")
    I(f"v_xor_b32 {D(25)}, 32, {D(27)}")
    I(f"s_movk_i32 {sr(sStep)}, 0")
    I(f"s_movk_i32 {sr(sPar)}, 0")
    I(f"s_mul_i32 {sr(sT0)}, {sr(sH)}, 43")
    I(f"s_lshr_b32 {sr(sT0)}, {sr(sT0)}, 7")
    I(f"s_mul_i32 {sr(sT0)}, {sr(sT0)}, 3")
    I(f"s_sub_u32 {sr(sT0)}, {sr(sH)}, {sr(sT0)}")
    for u in range(3):
        I(f"s_add_u32 {sr(sT1)}, {sr(sT0)}, {u}")
        I(f"s_sub_u32 {sr(sT2)}, {sr(sT1)}, 3")
        I(f"s_cmp_ge_u32 {sr(sT1)}, 3")
        I(f"s_cselect_b32 {sr(sT1)}, {sr(sT2)}, {sr(sT1)}")
        I(f"s_lshl_b32 {sr(sRot + u)}, {sr(sT1)}, 10")
    I(f"s_lshl_b32 {sr(sKV)}, {sr(sH)}, 14")
    I(f"s_lshl_b32 {sr(sKM)}, {sr(sH)}, 13")
    I(f"s_lshl_b32 {sr(sT0)}, {sr(sW)}, 11")
    I(f"s_add_u32 {sr(sKM)}, {sr(sKM)}, {sr(sT0)}")
    I(f"s_add_u32 {sr(sKM)}, {sr(sKM)}, {hex(WS_KM)}")
    I(f"s_mul_i32 {sr(sT1)}, {sr(sH)}, {PS()}")
    I(f"s_add_u32 {sr(sT1)}, {sr(sT1)}, {hex(WS_P)}")
    I(f"s_add_u32 {sr(sPst)}, {sr(sT1)}, {sr(sT0)}")
    I(f"s_lshl_b32 {sr(sT0)}, {sr(sW)}, 8")
    I(f"s_add_u32 {sr(sPz)}, {sr(sT1)}, {sr(sT0)}")
    I(f"s_add_u32 {sr(sPz)}, {sr(sPz)}, 8192")
    I(f"s_lshl_b32 {sr(sT2)}, {sr(sH)}, 1")
    I(f"s_add_u32 {sr(sT2)}, {sr(sT2)}, {sr(sW)}")
    I(f"s_add_u32 {sr(sT3)}, {sr(sH)}, 64")
    I(f"s_cmp_lt_u32 {sr(sW)}, 2")
    I(f"s_cselect_b32 {sr(sT2)}, {sr(sT2)}, {sr(sT3)}")
    I(f"s_min_u32 {sr(sT2)}, {sr(sT2)}, 71")
    I(f"s_lshl_b32 {sr(sT2)}, {sr(sT2)}, 7")
    I(f"s_cmp_lt_u32 {sr(sH)}, 8")
    I(f"s_cselect_b32 {sr(sRole)}, 2, 1")
    I(f"s_cmp_lt_u32 {sr(sW)}, 2")
    I(f"s_cselect_b32 {sr(sRole)}, 0, {sr(sRole)}")
    I(f"s_cmp_eq_u32 {sr(sW)}, 2")
    I(f"s_cselect_b32 {sr(sRole)}, 1, {sr(sRole)}")
    I(f"s_add_u32 {sr(sKm)}, s79, {LD_KV}")
    I(f"s_add_u32 {sr(sKV)}, {sr(sKV)}, s79")
    for ld in range(4):
        I(f"s_add_u32 {sr(sPld + ld)}, {sr(sT2)}, {hex(WS_P + ld * 8 * PS())}")
    I(f"s_add_u32 {sr(sMrs)}, {sr(sT2)}, {hex(WS_M)}")
    I(f"s_add_u32 {sr(sMw)}, {sr(sT2)}, {hex(WS_M + 0x4000)}")
    I(f"s_mul_i32 {sr(sMr)}, {sr(sW)}, 3072")
    I(f"s_add_u32 {sr(sMr)}, {sr(sMr)}, {hex(WS_M + 0x4000)}")
    I(f"s_mov_b32 {sr(sBud)}, 0x80000")
    I(f"s_mov_b32 {sr(sC)}, {hex(int(np.float32(128 ** -0.5 * 1.4426950408889634).view(np.uint32)))}")
    I(f"s_lshl_b32 {sr(sW512)}, {sr(sW)}, 9")
    I(f"s_lshl_b32 {sr(sT0)}, {sr(sH)}, 7")
    I(f"s_lshl_b32 {sr(sT1)}, {sr(sW)}, 2")
    I(f"s_add_u32 {sr(sT0)}, {sr(sT0)}, {sr(sT1)}")
    I(f"s_add_u32 {sr(sKvF)}, {sr(sT0)}, {hex(fl(FL_KV) - KVF_OFF)}")
    I(f"s_add_u32 {sr(sKmF)}, {sr(sT0)}, {hex(fl(FL_O))}")
    I(f"s_mov_b32 {sr(sLo)}, 0x00ff00ff")
    I(f"s_mov_b32 {sr(sLo + 1)}, 0x00ff00ff")
    I(f"s_cmp_eq_u32 {sr(sRole)}, 1")
    I(f"s_cbranch_scc1 chain_nofill")
    k.snap("fill")
    I(f"v_mov_b64 {D(40, 2)}, -1")
    I(f"v_mov_b64 {D(42, 2)}, -1")
    for sl in range(2):
        for ld in range(4):
            I(f"s_add_u32 {sr(sT0)}, {sr(sPld + ld)}, {hex(sl * 0x80000)}")
            I(f"buffer_store_dwordx4 {D(40, 4)}, {D(30)}, {sr(S_WS, 4)}, {sr(sT0)} offen sc1")
    for sl in range(4):
        I(f"s_add_u32 {sr(sT0)}, {sr(sMrs)}, {hex(sl * 0x4000)}")
        I(f"buffer_store_dword {D(40)}, {D(31)}, {sr(S_WS, 4)}, {sr(sT0)} offen sc1")
    I("s_waitcnt vmcnt(0)")
    k.L("chain_nofill")
    k.restore("fill")

    def wb(n):
        kind = ORDER[n]
        tb = 0
        for j in range(2):
            if kind == HALF_SLAB and j == 1:
                continue
            a = res_addr(kind, j)
            I(f"v_add_u32 {D(24)}, {a}, {vr(vLW)}")
            I(f"ds_write_b128 {D(24)}, {D(tb + 8 * j, 4)}")
            I(f"ds_write_b128 {D(24)}, {D(tb + 8 * j + 4, 4)} offset:1024")

    for n in range(36):
        slab = ORDER[n]
        slot = (n + 4) % 10
        k.wait_tag(f"slab{n}")
        I("s_waitcnt lgkmcnt(0)")
        I("s_barrier")
        if n == 1:
            I(f"s_cmp_lg_u32 {sr(sW)}, 0")
            I(f"s_cbranch_scc1 chain_nosig")
            k.snap("sig")
            I(f"s_getreg_b32 {sr(sT0)}, hwreg(HW_REG_XCC_ID)")
            I(f"s_and_b32 {sr(sT0)}, {sr(sT0)}, 15")
            I(f"s_lshl_b32 {sr(sT0)}, 1, {sr(sT0)}")
            I(f"s_mov_b64 exec, 1")
            I(f"v_mov_b32 {D(40)}, {sr(sT0)}")
            I(f"v_mov_b32 {D(41)}, 0")
            I(f"v_mov_b32 {D(42)}, 1")
            I(f"global_atomic_or {D(43)}, {D(41)}, {D(40)}, {sr(S_DBG, 2)} sc0 sc1")
            I("s_waitcnt vmcnt(0)")
            I(f"global_atomic_add {D(41)}, {D(42)}, {sr(S_DBG, 2)} offset:4 sc1")
            I("s_waitcnt vmcnt(0)")
            I(f"s_mov_b64 exec, -1")
            k.L("chain_nosig")
            k.restore("sig")
        if OPT.get("full"):
            if n == 8:
                I(f"v_mov_b32 {D(41)}, 0")
                I(f"global_load_dword {D(42)}, {D(41)}, {sr(S_DBG, 2)} offset:8 sc1")
            if n == 18:
                I(f"v_readfirstlane_b32 {sr(sT0)}, {D(42)}")
                I(f"s_cmp_lg_u32 {sr(sT0)}, 0")
                I(f"s_cbranch_scc1 chain_clr")
                k.snap("clr")
                k.L("chain_clrl")
                I(f"global_load_dword {D(42)}, {D(41)}, {sr(S_DBG, 2)} offset:8 sc1")
                I(f"s_sub_u32 {sr(sBud)}, {sr(sBud)}, 1")
                I(f"s_cbranch_scc1 chain_end")
                I("s_waitcnt vmcnt(0)")
                I(f"v_readfirstlane_b32 {sr(sT0)}, {D(42)}")
                I(f"s_cmp_eq_u32 {sr(sT0)}, 0")
                I(f"s_cbranch_scc1 chain_clrl")
                k.L("chain_clr")
                k.restore("clr")
                I(f"buffer_load_dword {D(42)}, off, {sr(S_WS, 4)}, {sr(sKvF)} offset:{KVF_OFF} sc1")
                I(f"buffer_load_dword {D(43)}, off, {sr(S_WS, 4)}, {sr(sKmF)} sc1")
            if n == 29:
                I(f"v_readfirstlane_b32 {sr(sKnown)}, {D(42)}")
                I(f"v_readfirstlane_b32 {sr(sT0)}, {D(43)}")
                I(f"s_min_u32 {sr(sT0)}, {sr(sT0)}, {sr(sKnown)}")
                I(f"s_cmp_lg_u32 {sr(sT0)}, 0")
                I(f"s_cbranch_scc1 chain_kv0")
                k.snap("kv0")
                k.L("chain_kv0l")
                I(f"buffer_load_dword {D(42)}, off, {sr(S_WS, 4)}, {sr(sKvF)} offset:{KVF_OFF} sc1")
                I(f"buffer_load_dword {D(43)}, off, {sr(S_WS, 4)}, {sr(sKmF)} sc1")
                I(f"s_sub_u32 {sr(sBud)}, {sr(sBud)}, 1")
                I(f"s_cbranch_scc1 chain_end")
                I("s_waitcnt vmcnt(0)")
                I(f"v_readfirstlane_b32 {sr(sKnown)}, {D(42)}")
                I(f"v_readfirstlane_b32 {sr(sT0)}, {D(43)}")
                I(f"s_min_u32 {sr(sT0)}, {sr(sT0)}, {sr(sKnown)}")
                I(f"s_cmp_eq_u32 {sr(sT0)}, 0")
                I(f"s_cbranch_scc1 chain_kv0l")
                k.L("chain_kv0")
                k.restore("kv0")
        if n >= 29:
            wb(n - 1)
        if n + 9 < 36:
            dma(n + 9)
        isqk = slab[0] == "qk"
        for j in range(2):
            src = 26 if isqk else (27 if j == 0 else 25)
            if j == 0 or not isqk:
                I(f"v_add_u32 {D(44 + j)}, {slot * 16384}, {D(src)}")
            areg = D(44) if isqk else D(44 + j)
            for u in range(4):
                off = (8 * (u // 2) + u % 2) * 256 + (16 * j if isqk else 0)
                if (slab, j) in WREG:
                    dst = wreg(slab, j, 2 * u, 2)
                else:
                    dst = D(8 * j + 2 * u, 2)
                I(f"ds_read_b64_tr_b16 {dst}, {areg} offset:{off}")
        if n == 29:
            I(f"ds_write_b128 {vr(vLW)}, {D(28, 4)} offset:3072")
            I(f"ds_write_b128 {vr(vL)}, {D(32, 4)} offset:{LD_SEL}")
            for t in range(9):
                for c in range(2):
                    if t < 8:
                        I(f"buffer_load_ushort {D((16 if c else 28) + t)}, {D(36)}, {sr(S_M0, 4)}, 0 offen "
                          f"offset:{2 * mcol(t, 0, 0, 0, c)}")
                    else:
                        I(f"buffer_load_ushort {D(39 + c)}, {D(37)}, {sr(S_M0, 4)}, 0 offen offset:{4 * c}")
            I(f"s_mov_b32 m0, {sr(sKm)}")
            for i in range(4):
                I(f"buffer_load_dwordx4 {vr(vL)}, {sr(S_WS, 4)}, {sr(sKV)} offen offset:{i * 1024} sc1 lds")
        if n == 31:
            for t in range(9):
                lo, hi = (D(28 + t), D(16 + t)) if t < 8 else (D(39), D(40))
                I(f"v_lshl_or_b32 {lo}, {hi}, 16, {lo}")
                I(f"ds_write_b32 {D(38)}, {lo} offset:{stage(t)}")
    I("s_waitcnt lgkmcnt(0)")
    I("s_barrier")
    wb(35)
    if OPT.get("full"):
        I(f"v_mov_b32 {D(41)}, {sr(sKnown)}")
        I(f"ds_write_b32 {vr(vLW)}, {D(41)} offset:{LD_X + 3072}")
    I(f"s_add_u32 {sr(sKV)}, {sr(sKV)}, {32 * 16384}")
    roles.stamp(k, 201, D0 + 46, D0 + 47)
    I(f"v_mov_b32 {D(41)}, 0")
    k.L("chain_init")
    I(f"global_load_dwordx2 {D(42, 2)}, {D(41)}, {sr(S_DBG, 2)} sc1")
    I(f"s_sub_u32 {sr(sBud)}, {sr(sBud)}, 1")
    I(f"s_cbranch_scc1 chain_end")
    I("s_waitcnt vmcnt(0)")
    I(f"v_readfirstlane_b32 {sr(sT0)}, {D(43)}")
    I(f"v_readfirstlane_b32 {sr(sT1)}, {D(42)}")
    I(f"s_cmp_lt_u32 {sr(sT0)}, 32")
    I(f"s_cbranch_scc1 chain_init")
    I("s_waitcnt vmcnt(0) lgkmcnt(0)")
    I("s_barrier")
    for r in range(0, 8, 2):
        I(f"v_mov_b64 {D(r, 2)}, 0")
    I("s_waitcnt lgkmcnt(0)")
    k.join("pro")
    if prof:
        I(f"s_memtime {sr(sTm, 2)}")
        I("s_waitcnt lgkmcnt(0)")
    I(f"s_bcnt1_i32_b32 {sr(sT1)}, {sr(sT1)}")
    I(f"s_cmp_eq_u32 {sr(sT1)}, 1")
    I(f"s_cbranch_scc0 chain_step_s")


def weave(k, main, fill, per=2):
    for i, m in enumerate(main):
        k.I(m)
        for x in fill.get(i, []):
            if callable(x):
                x()
            else:
                k.I(x)


def step(k, sfx, sc):
    I = k.I

    def st(i):
        if STAMP[0]:
            k.raw(f"\ts_memtime s[{60 + 2 * i}:{61 + 2 * i}]")

    k.L(f"chain_step_{sfx}")
    st(0)
    A = [8, 12, 16, 20]
    ab = lambda ch: A[(ch + 2) % 4]
    rdA = lambda ch: f"ds_read_b128 {D(ab(ch), 4)}, {vr(vAd)} offset:{stage(ch // 2) + (ch % 2) * 512}"
    rdAv = lambda t, b: f"ds_read_b128 {D(b, 4)}, {vr(vAk)} offset:{stage(t)}"
    RB = {(("qk", 7), 0): 24, (("qk", 7), 1): 32, (("qk", 11), 0): 40, (("qk", 11), 1): 24, (("qk", 15), 0): 32,
          (("qk", 15), 1): 40, (("v", 0), 0): 40, (("v", 0), 1): 24, (("v", 4), 0): 40, (("v", 4), 1): 24,
          (("o", 0), 0): 32, (("o", 0), 1): 40, (("o", 3), 0): 32, (("o", 3), 1): 40, (("o", 7), 0): 32}
    W = lambda s, j: D(RB[(s, j)], 8) if (s, j) in RB else wreg(s, j)
    rf = lambda s, j: rd_frag(k, RB[(s, j)], s, j)
    kv = lambda i: f"buffer_load_dwordx4 {vr(vL)}, {sr(S_WS, 4)}, {sr(sKV)} offen offset:{i * 1024} sc1 lds"
    I(rdA(0))
    I(rdA(1))
    if OPT.get("full"):
        I(f"s_add_u32 {sr(sT0)}, {sr(sStep)}, 2")
        I(f"s_min_u32 {sr(sT0)}, {sr(sT0)}, 64")
        I(f"s_cmp_lt_u32 {sr(sKnown)}, {sr(sT0)}")
        I(f"s_cbranch_scc1 chain_kvw_{sfx}")
        k.L(f"chain_kvok_{sfx}")
    if not OPT.get("nopf"):
        if OPT.get("early"):
            I(f"v_lshlrev_b32 {D(8)}, 1, {vr(vL)}")
            I(f"s_add_u32 m0, {sr(sKm)}, {LD_X - LD_KV + 1024}")
            if OPT.get("full"):
                roles.stamp(k, sr(sStep), D0 + 44, D0 + 45)
                I("s_mov_b64 exec, 1")
                I(f"buffer_load_dword off, {sr(S_WS, 4)}, {sr(sKvF)} offset:{KVF_OFF} sc1 lds")
                I("s_mov_b64 exec, -1")
            I(f"buffer_load_dword {D(8)}, {sr(S_WS, 4)}, {sr(sKV)} offen offset:2048 sc1 lds")
            I(f"s_mov_b32 m0, {sr(sKm)}")
        else:
            I(f"v_lshlrev_b32 {D(8)}, 2, {vr(vL)}")
            I(f"s_add_u32 m0, {sr(sKm)}, {LD_X - LD_KV + 3072}")
            I(f"buffer_load_dword {D(8)}, {sr(S_WS, 4)}, {sr(sKV)} offen sc1 lds")
    I(rdA(2))
    I(rdA(3))
    main, fill = [], {}
    for ch in range(18):
        for j in range(2):
            main.append(smf(4 * j, ab(ch), W(("qk", ch), j)))
        if ch + 4 < 18:
            fill.setdefault(2 * ch + 1, []).append(rdA(ch + 4))

    def put(pos, lst):
        for x in lst:
            while len(fill.get(pos, [])) >= 2:
                pos += 1
            fill.setdefault(pos, []).append(x)

    if OPT.get("full"):
        put(0, [f"ds_read_b32 {D(47)}, {vr(vLW)} offset:{LD_X + 3072 + 384}"])
        put(6, [f"v_readfirstlane_b32 {sr(sKnown)}, {D(47)}"])
    else:
        put(6, [f"s_waitcnt vmcnt({0 if OPT.get('nopf') else 1})"])
    put(6, rf(("qk", 7), 0))
    put(8, rf(("qk", 7), 1))
    put(10, rf(("qk", 11), 0))
    put(16, rf(("qk", 11), 1))
    put(18, rf(("qk", 15), 0))
    put(24, rf(("qk", 15), 1))
    put(26, rf(("v", 0), 1))
    put(29, [rdAv(0, 8)])
    put(31, [rdAv(1, 12)])
    put(32, rf(("v", 0), 0))
    put(33, [f"v_mov_b64 {D(32 + r, 2)}, 0" for r in range(0, 8, 2)])
    weave(k, main, fill)
    st(1)
    V = lambda t, b: [smf(32 + 4 * j, b, W(("v", t), j)) for j in range(2)]
    for x in V(0, 8):
        I(x)
    I(f"v_cvt_pk_bf16_f32 {D(16)}, {D(0)}, {D(1)}")
    I(f"v_cvt_pk_bf16_f32 {D(17)}, {D(2)}, {D(3)}")
    I(f"ds_read_b128 {D(24, 4)}, {vr(vLW)} offset:{LD_KV}")
    I(f"ds_read_b128 {D(28, 4)}, {vr(vLW)} offset:{LD_KV + 1024}")
    I(f"v_mfma_f32_16x16x16_bf16 {D(0, 4)}, {D(16, 2)}, {vr(vId, 2)}, 0")
    I(f"v_cvt_pk_bf16_f32 {D(18)}, {D(4)}, {D(5)}")
    I(f"v_cvt_pk_bf16_f32 {D(19)}, {D(6)}, {D(7)}")
    I(rdAv(2, 8))
    I(f"v_mfma_f32_16x16x16_bf16 {D(4, 4)}, {D(18, 2)}, {vr(vId, 2)}, 0")
    x = rf(("v", 4), 0)
    I(x[0])
    I(V(1, 12)[0])
    I(x[1])
    for y in x[2:]:
        I(y)
    I(V(1, 12)[1])
    I(f"v_cvt_pk_bf16_f32 {D(16)}, {D(0)}, {D(1)}")
    I(f"v_cvt_pk_bf16_f32 {D(17)}, {D(2)}, {D(3)}")
    I(rdAv(3, 12))
    I(f"v_cvt_pk_bf16_f32 {D(18)}, {D(4)}, {D(5)}")
    I(f"v_cvt_pk_bf16_f32 {D(19)}, {D(6)}, {D(7)}")
    if not OPT.get("wst"):
        st(2)
    I(f"v_mfma_f32_16x16x32_bf16 {D(20, 4)}, {D(16, 4)}, {D(16, 4)}, 0")
    I(f"buffer_store_dwordx4 {D(16, 4)}, {vr(vL)}, {sr(S_WS, 4)}, {sr(sKM)} offen sc1")
    I(f"v_mfma_f32_16x16x32_bf16 {D(0, 4)}, {D(24, 4)}, {D(16, 4)}, 0")
    I(f"v_mfma_f32_16x16x32_bf16 {D(4, 4)}, {D(28, 4)}, {D(16, 4)}, 0")
    x = rf(("v", 4), 1)
    I(rdAv(4, 16))
    I(V(2, 8)[0])
    for y in x:
        I(y)
    I(V(2, 8)[1])
    I(rdAv(5, 8))
    I(f"s_mov_b64 exec, {sr(sLo, 2)}")
    I(f"ds_write_b128 {vr(vLW)}, {D(20, 4)} offset:{LD_X + 3072}")
    I(f"ds_write_b128 {vr(vLW)}, {D(0, 4)} offset:{LD_X + 2048}")
    I(f"ds_write_b128 {vr(vLW)}, {D(4, 4)} offset:{LD_X + 2048 + 128}")
    k.tagl("sw")
    I(f"s_mov_b64 exec, -1")
    if OPT.get("early"):
        I(kv(0))
        I(kv(1))
    I(V(3, 12)[0])
    I(f"v_lshrrev_b32 {D(23)}, 16, {vr(vIdx)}")
    I(V(3, 12)[1])
    I(rdAv(6, 12))
    k.wait_tagl("sw")
    st(4)
    I("s_barrier")
    st(5)
    sx = lambda w, d: f"ds_read_b128 {D(d, 4)}, {vr(vL)} offset:{LD_X + 2048 + w * 4096}"
    I(sx(0, 0))
    I(sx(1, 4))
    I(V(4, 16)[1])
    I(sx(2, 24))
    I(sx(3, 28))
    I(V(4, 16)[0])
    o0 = (LD_X + 3072) // 256
    I(f"ds_read2st64_b32 {D(20, 2)}, {D(23)} offset0:{o0} offset1:{o0 + 16}")
    I(f"ds_read2st64_b32 {D(22, 2)}, {D(23)} offset0:{o0 + 32} offset1:{o0 + 48}")
    I(V(5, 8)[0])
    I(rdAv(7, 16))
    I(V(5, 8)[1])
    I(rdAv(8, 8))
    I(V(6, 12)[0])
    I(V(6, 12)[1])
    for r in range(4):
        I(f"v_add_f32 {D(r)}, {D(r)}, {D(4 + r)}")
    for r in range(4):
        I(f"v_add_f32 {D(24 + r)}, {D(24 + r)}, {D(28 + r)}")
    I(f"v_add_f32 {D(20)}, {D(20)}, {D(21)}")
    I(f"v_add_f32 {D(22)}, {D(22)}, {D(23)}")
    for r in range(4):
        I(f"v_add_f32 {D(r)}, {D(r)}, {D(24 + r)}")
    I(f"v_add_f32 {D(4)}, {D(20)}, {D(22)}")
    I(f"v_max3_f32 {D(5)}, {D(0)}, {D(1)}, {D(2)}")
    I(f"v_max3_f32 {D(5)}, {D(5)}, {D(3)}, {D(4)}")
    I(V(7, 16)[0])
    I(f"ds_read_b128 {D(24, 4)}, {vr(vLW)} offset:{LD_KV + 2048}")
    I(f"v_max_f32_dpp {D(6)}, {D(5)}, {D(5)} row_ror:8 row_mask:0xf bank_mask:0xf")
    I(f"v_max_f32_dpp {D(7)}, {D(5)}, {D(5)} row_ror:8 row_mask:0xf bank_mask:0xf")
    I(V(7, 16)[1])
    I(f"ds_read_b128 {D(28, 4)}, {vr(vLW)} offset:{LD_KV + 3072}")
    I(f"v_permlane16_swap_b32 {D(6)}, {D(7)}")
    I(f"v_max_f32 {D(5)}, {D(6)}, {D(7)}")
    I(f"v_max_f32 {D(6)}, {D(6)}, {D(7)}")
    I(V(8, 8)[0])
    I(f"v_mov_b32 {D(21)}, 0")
    I(f"v_permlane32_swap_b32 {D(5)}, {D(6)}")
    I(V(8, 8)[1])
    I(f"v_max_f32 {D(5)}, {D(5)}, {D(6)}")
    I(f"v_mul_f32 {D(5)}, {sr(sC)}, {D(5)}")
    for r in range(5):
        I(f"v_fma_f32 {D(r)}, {D(r)}, {sr(sC)}, -{D(5)}")
    for r in range(5):
        I(f"v_exp_f32 {D(r)}, {D(r)}")
    x = rf(("o", 0), 1)
    I(f"v_cvt_pk_bf16_f32 {D(12)}, {D(0)}, {D(1)}")
    I(f"v_cvt_pk_bf16_f32 {D(13)}, {D(2)}, {D(3)}")
    I(f"v_mov_b32 {D(22)}, 0")
    I(f"v_mov_b32_dpp {D(5)}, {D(4)} row_ror:8 row_mask:0xf bank_mask:0xf")
    I(f"v_mov_b32_dpp {D(14)}, {D(12)} row_ror:8 row_mask:0xf bank_mask:0xf")
    I(f"v_mov_b32_dpp {D(15)}, {D(13)} row_ror:8 row_mask:0xf bank_mask:0xf")
    I(f"v_add_f32 {D(8)}, {D(0)}, {D(1)}")
    I(f"v_add_f32 {D(9)}, {D(2)}, {D(3)}")
    I(f"v_cvt_pk_bf16_f32 {D(20)}, {D(4)}, {D(5)}")
    I(f"v_cvt_pk_bf16_f32 {D(23)}, {D(4)}, {D(5)}")
    I(f"v_add_f32 {D(8)}, {D(8)}, {D(4)}")
    I(f"v_mfma_f32_16x16x32_bf16 {D(0, 4)}, {D(24, 4)}, {D(12, 4)}, 0")
    I(f"v_permlane32_swap_b32 {D(32)}, {D(33)}")
    I(f"v_permlane32_swap_b32 {D(34)}, {D(35)}")
    I(f"v_mfma_f32_16x16x32_bf16 {D(4, 4)}, {D(28, 4)}, {D(12, 4)}, 0")
    I(f"v_permlane32_swap_b32 {D(36)}, {D(37)}")
    I(f"v_permlane32_swap_b32 {D(38)}, {D(39)}")
    I(f"v_add_f32 {D(32)}, {D(32)}, {D(33)}")
    I(f"v_add_f32 {D(34)}, {D(34)}, {D(35)}")
    I(f"v_add_f32 {D(36)}, {D(36)}, {D(37)}")
    I(f"v_add_f32 {D(38)}, {D(38)}, {D(39)}")
    I(f"v_cvt_pk_bf16_f32 {D(10)}, {D(32)}, {D(34)}")
    I(f"v_cvt_pk_bf16_f32 {D(11)}, {D(36)}, {D(38)}")
    I(f"v_add_f32 {D(8)}, {D(8)}, {D(9)}")
    I(f"v_lshrrev_b32 {D(16)}, 1, {vr(vL)}")
    I(f"v_mfma_f32_16x16x16_bf16 {D(0, 4)}, {D(10, 2)}, {D(20, 2)}, {D(0, 4)}")
    I(f"v_add_f32_dpp {D(9)}, {D(8)}, {D(8)} row_ror:8 row_mask:0xf bank_mask:0xf")
    I(f"v_add_f32_dpp {D(8)}, {D(8)}, {D(8)} row_ror:8 row_mask:0xf bank_mask:0xf")
    I(f"v_mfma_f32_16x16x16_bf16 {D(4, 4)}, {D(10, 2)}, {D(22, 2)}, {D(4, 4)}")
    I(f"buffer_store_dwordx2 {D(10, 2)}, {D(16)}, {sr(S_WS, 4)}, {sr(sKM)} offen offset:1024 sc1")
    I(f"v_permlane16_swap_b32 {D(8)}, {D(9)}")
    I(f"v_add_f32 {D(17)}, {D(8)}, {D(9)}")
    I(f"v_add_f32 {D(8)}, {D(8)}, {D(9)}")
    I(f"s_cmp_eq_u32 {sr(sStep)}, 63")
    I(f"s_cbranch_scc1 chain_end")
    I(f"v_permlane32_swap_b32 {D(8)}, {D(17)}")
    I(f"v_add_f32 {D(8)}, {D(8)}, {D(17)}")
    I(f"v_rcp_f32 {D(8)}, {D(8)}")
    I(f"v_add_u32 {D(16)}, {sr(sW512)}, {vr(vAd)}")
    for r in range(0, 8, 2):
        I(f"v_pk_mul_f32 {D(r, 2)}, {D(r, 2)}, {D(8, 2)} op_sel_hi:[1,0]")
    for r in range(4):
        I(f"v_cvt_pk_bf16_f32 {D(r)}, {D(2 * r)}, {D(2 * r + 1)}")
    I(f"s_mov_b64 exec, {sr(sLo, 2)}")
    I(f"ds_write_b128 {D(16)}, {D(0, 4)} offset:{LD_O}")
    k.tagl("ow")
    I(f"s_mov_b64 exec, -1")
    if OPT.get("early"):
        I(kv(2))
        I(kv(3))
    for y in rf(("o", 0), 0) + x:
        I(y)
    I(f"v_xor_b32 {D(23)}, 512, {vr(vAk)}")
    for r in (0, 2, 4, 6, 24, 26, 28, 30):
        I(f"v_mov_b64 {D(r, 2)}, 0")
    k.wait_tagl("ow")
    st(6)
    I("s_barrier")
    st(7)
    I(f"ds_read_b128 {D(8, 4)}, {vr(vAk)} offset:{LD_O}")
    I(f"ds_read_b128 {D(12, 4)}, {D(23)} offset:{LD_O}")
    I(f"ds_read_b128 {D(16, 4)}, {vr(vAk)} offset:{LD_O + 1024}")
    I(f"ds_read_b128 {D(20, 4)}, {D(23)} offset:{LD_O + 1024}")
    F = lambda f: 8 + 4 * f
    acc = {(0, 0): 24, (0, 1): 28, (1, 0): 0, (1, 1): 40}
    seq = [("z", 0), (0, 0, 0), (0, 1, 0), (0, 0, 1), (0, 1, 1), ("z", 1), (0, 0, 2), (0, 1, 2), (0, 0, 3), (0, 1, 3)]
    seq += [(1, c, f) for f in range(4) for c in range(2)]
    main = []
    for e in seq:
        if e[0] == "z":
            main.append(smf(4, F(2 * e[1]), W(("z", 0), e[1])))
        else:
            reg, c, f = e
            main.append(smf(acc[(reg, c)], F(f), W(("o", reg * 4 + f), c)))
    fill = {}
    put(1, rf(("o", 3), 0))
    put(2, rf(("o", 3), 1))
    put(8, rf(("o", 7), 0))
    put(9, [f"v_mov_b64 {D(40, 2)}, 0", f"v_mov_b64 {D(42, 2)}, 0"])
    put(10, [f"ds_read_b128 {D(44, 4)}, {vr(vLW)} offset:3072", f"v_permlane32_swap_b32 {D(4)}, {D(5)}",
             f"v_permlane32_swap_b32 {D(6)}, {D(7)}", f"v_cvt_pk_bf16_f32 {D(24)}, {D(24)}, {D(25)}",
             f"v_cvt_pk_bf16_f32 {D(25)}, {D(26)}, {D(27)}", f"v_cvt_pk_bf16_f32 {D(26)}, {D(28)}, {D(29)}",
             f"v_cvt_pk_bf16_f32 {D(27)}, {D(30)}, {D(31)}", f"v_add_f32 {D(4)}, {D(4)}, {D(5)}",
             f"v_add_f32 {D(6)}, {D(6)}, {D(7)}", f"v_cvt_pk_bf16_f32 {D(4)}, {D(4)}, {D(6)}",
             f"v_bfi_b32 {D(24)}, 1, {sr(sPar)}, {D(24)}", f"v_bfi_b32 {D(4)}, 1, {sr(sPar)}, {D(4)}",
             f"buffer_store_dwordx4 {D(24, 4)}, {D(44)}, {sr(S_WS, 4)}, {sr(sPst)} offen{sc}",
             f"buffer_store_dword {D(4)}, {D(45)}, {sr(S_WS, 4)}, {sr(sPz)} offen{sc}"])
    weave(k, main, fill)
    st(8)
    I(f"ds_read_b128 {D(16, 4)}, {vr(vL)} offset:{LD_SEL}")
    I(f"v_cvt_pk_bf16_f32 {D(0)}, {D(0)}, {D(1)}")
    I(f"v_cvt_pk_bf16_f32 {D(1)}, {D(2)}, {D(3)}")
    I(f"v_bfi_b32 {D(0)}, 1, {sr(sPar)}, {D(0)}")
    I(f"v_cvt_pk_bf16_f32 {D(2)}, {D(40)}, {D(41)}")
    I(f"v_cvt_pk_bf16_f32 {D(3)}, {D(42)}, {D(43)}")
    late = not OPT.get("early")
    if late:
        I(f"s_mov_b32 m0, {sr(sKm)}")
    I(f"s_cmp_eq_u32 {sr(sRole)}, 0")
    I(f"buffer_store_dwordx4 {D(0, 4)}, {D(44)}, {sr(S_WS, 4)}, {sr(sPst)} offen offset:1024{sc}")
    I(f"s_cbranch_scc1 chain_h1a_{sfx}")
    I(f"s_cmp_eq_u32 {sr(sRole)}, 2")
    I(f"s_cbranch_scc1 chain_h1z_{sfx}")
    if late:
        I(kv(0))
        I(kv(1))
    I("s_waitcnt lgkmcnt(0)")
    k.join("noh1")
    I(f"s_branch chain_b3_{sfx}")

    def pl(b):
        for ld in range(4):
            I(f"buffer_load_dwordx4 {D(b + 4 * ld, 4)}, {D(46)}, {sr(S_WS, 4)}, {sr(sPld + ld)} offen sc1")

    def red(b, z, first=False):
        ne = lambda d, x, y: f"v_bitop3_b32 {D(d)}, {D(x)}, {D(y)}, {sr(sPar)} bitop3:0x7e"
        for ld in range(4):
            I(f"v_mfma_f32_16x16x32_bf16 {D(40, 4)}, {D(16, 4)}, {D(b + 4 * ld, 4)}, {'0' if ld == 0 else D(40, 4)}")
            if first and ld in (0, 3):
                st(14 if ld == 0 else 15)
            if z:
                I(ne(21, b + 4 * ld, b + 4 * ld + 1))
                I(ne(22, b + 4 * ld + 2, b + 4 * ld + 3))
                I(f"v_or3_b32 {D(20)}, {D(21)}, {D(22)}, {D(20) if ld else D(22)}")
            elif ld % 2:
                I(ne(20 + ld // 2, b + 4 * ld - 4, b + 4 * ld))
        if z:
            I(f"v_and_b32 {D(20)}, 1, {D(20)}")
        else:
            I(f"v_bitop3_b32 {D(20)}, {D(20)}, {D(21)}, 1 bitop3:0xa8")
        I(f"v_cmp_ne_u32 vcc, 0, {D(20)}")

    for z in (1, 0):
        x = "z" if z else "a"
        k.L(f"chain_h1{x}_{sfx}")
        st(9)
        for _ in range(OPT.get("d1", 0)):
            I("s_nop 7")
        if OPT.get("a1"):
            I("s_waitcnt vmcnt(0)")
        pl(24)
        if late:
            I(kv(0))
            I(kv(1))
        if OPT.get("one1"):
            st(3)
            I("s_waitcnt lgkmcnt(0)")
            if OPT.get("wst"):
                I("s_waitcnt vmcnt(4)")
                st(2)
            red(24, z, True)
            I(f"s_cbranch_vccz chain_h1d_{sfx}")
            k.L(f"chain_h1l{x}_{sfx}")
            pl(24)
            I(f"s_sub_u32 {sr(sBud)}, {sr(sBud)}, 1")
            I(f"s_cbranch_scc1 chain_end")
            red(24, z)
            I(f"s_cbranch_vccnz chain_h1l{x}_{sfx}")
        else:
            for _ in range(OPT.get("e1", 0)):
                I("s_nop 7")
            pl(0)
            I("s_waitcnt lgkmcnt(0)")
            red(24, z)
            I(f"s_cbranch_vccz chain_h1d_{sfx}")
            k.L(f"chain_h1l{x}_{sfx}")
            pl(24)
            I(f"s_sub_u32 {sr(sBud)}, {sr(sBud)}, 1")
            I(f"s_cbranch_scc1 chain_end")
            red(0, z)
            I(f"s_cbranch_vccz chain_h1d_{sfx}")
            pl(0)
            red(24, z)
            I(f"s_cbranch_vccnz chain_h1l{x}_{sfx}")
        if z:
            I(f"s_branch chain_h1d_{sfx}")
        k.forget("h1")
    k.L(f"chain_h1d_{sfx}")
    I(f"v_mov_b32 {D(20)}, -1")
    I(f"v_add_f32_dpp {D(40)}, {D(40)}, {D(40)} row_ror:8 row_mask:0xf bank_mask:0xf")
    I(f"v_add_f32_dpp {D(41)}, {D(41)}, {D(41)} row_ror:8 row_mask:0xf bank_mask:0xf")
    I(f"v_cvt_pk_bf16_f32 {D(40)}, {D(40)}, {D(41)}")
    I(f"buffer_store_dword {D(40)}, {D(47)}, {sr(S_WS, 4)}, {sr(sMw)} offen{sc}")
    st(10)
    I(f"buffer_store_dword {D(20)}, {D(47)}, {sr(S_WS, 4)}, {sr(sMrs)} offen{sc}")
    if OPT.get("a2"):
        I("s_waitcnt vmcnt(1)")
    k.L(f"chain_b3_{sfx}")
    I("s_barrier")
    st(11)
    I(f"s_add_u32 {sr(sStep)}, {sr(sStep)}, 1")
    I(f"s_add_u32 {sr(sKM)}, {sr(sKM)}, {32 * 8192}")
    for r in (sPst, sPz, sPld, sPld + 1, sPld + 2, sPld + 3):
        I(f"s_xor_b32 {sr(r)}, {sr(r)}, 0x80000")
    I(f"s_mov_b32 {sr(sMrs)}, {sr(sMw)}")
    I(f"s_bfe_u32 {sr(sPar)}, {sr(sStep)}, 0x10001")
    I(f"s_add_u32 {sr(sMw)}, {sr(sMw)}, 0x4000")
    I(f"s_and_b32 {sr(sMw)}, {sr(sMw)}, 0xfff0ffff")
    I(f"s_cmp_eq_u32 {sr(sW)}, 3")
    I(f"s_cbranch_scc0 chain_h2_{sfx}")
    if late:
        I(kv(2))
        I(kv(3))
        I("s_waitcnt vmcnt(2)")
    else:
        I("s_waitcnt vmcnt(0)")
    k.forget("w3")
    I(f"s_branch chain_j_{sfx}")
    k.L(f"chain_h2_{sfx}")

    rot = OPT.get("rot")
    if rot:
        for u in range(3):
            I(f"v_add_u32 {D(16 + u)}, {sr(sRot + u)}, {vr(vL)}")
            I(f"v_add_u32 {D(12 + u)}, {sr(sRot + u)}, {vr(vLW)}")

    def ml(b):
        for u in range(3):
            if rot:
                I(f"buffer_load_dwordx4 {D(b + 4 * u, 4)}, {D(16 + u)}, {sr(S_WS, 4)}, {sr(sMr)} offen sc1")
            else:
                I(f"buffer_load_dwordx4 {D(b + 4 * u, 4)}, {vr(vL)}, {sr(S_WS, 4)}, {sr(sMr)} offen offset:{u * 1024} sc1")

    def chk(b):
        wr = lambda u: f"ds_write_b128 {D(12 + u)}, {D(b + 4 * u, 4)}" if rot else \
            f"ds_write_b128 {vr(vLW)}, {D(b + 4 * u, 4)} offset:{1024 * u}"
        I(wr(0))
        I(f"v_max3_u32 {D(20)}, {D(b)}, {D(b + 1)}, {D(b + 2)}")
        I(wr(1))
        I(f"v_max3_u32 {D(20)}, {D(20)}, {D(b + 3)}, {D(b + 4)}")
        I(f"v_max3_u32 {D(21)}, {D(b + 5)}, {D(b + 6)}, {D(b + 7)}")
        I(wr(2))
        I(f"v_max3_u32 {D(20)}, {D(20)}, {D(b + 8)}, {D(b + 9)}")
        I(f"v_max3_u32 {D(21)}, {D(21)}, {D(b + 10)}, {D(b + 11)}")
        I(f"v_max_u32 {D(20)}, {D(20)}, {D(21)}")
        I(f"v_cmp_eq_u32 vcc, -1, {D(20)}")

    for _ in range(OPT.get("d2", 0)):
        I("s_nop 7")
    ml(24)
    if late:
        I(kv(2))
        I(kv(3))
    if OPT.get("one2"):
        chk(24)
        I(f"s_cbranch_vccz chain_j_{sfx}")
        k.L(f"chain_h2l_{sfx}")
        ml(24)
        I(f"s_sub_u32 {sr(sBud)}, {sr(sBud)}, 1")
        I(f"s_cbranch_scc1 chain_end")
        chk(24)
        I(f"s_cbranch_vccnz chain_h2l_{sfx}")
    else:
        for _ in range(OPT.get("e2", 0)):
            I("s_nop 7")
        ml(36)
        chk(24)
        I(f"s_cbranch_vccz chain_j_{sfx}")
        k.L(f"chain_h2l_{sfx}")
        ml(24)
        I(f"s_sub_u32 {sr(sBud)}, {sr(sBud)}, 1")
        I(f"s_cbranch_scc1 chain_end")
        chk(36)
        I(f"s_cbranch_vccz chain_j_{sfx}")
        ml(36)
        chk(24)
        I(f"s_cbranch_vccnz chain_h2l_{sfx}")
    k.forget("h2")
    k.L(f"chain_j_{sfx}")
    st(12)
    for r in range(0, 8, 2):
        I(f"v_mov_b64 {D(r, 2)}, 0")
    I(f"s_add_u32 {sr(sKV)}, {sr(sKV)}, {32 * 16384}")
    I(f"s_add_u32 {sr(sMr)}, {sr(sMr)}, 0x4000")
    I(f"s_and_b32 {sr(sMr)}, {sr(sMr)}, 0xfff0ffff")
    I("s_waitcnt lgkmcnt(0)")
    I("s_barrier")
    k.join("loop")
    st(13)
    if STAMP[0]:
        I(f"s_cmp_eq_u32 {sr(sStep)}, 41")
        I(f"s_cbranch_scc1 chain_end")
    I(f"s_branch chain_step_{sfx}")
    if OPT.get("full"):
        k.L(f"chain_kvw_{sfx}")
        I(f"buffer_load_dword {D(47)}, off, {sr(S_WS, 4)}, {sr(sKvF)} offset:{KVF_OFF} sc1")
        I(f"s_sub_u32 {sr(sBud)}, {sr(sBud)}, 1")
        I(f"s_cbranch_scc1 chain_end")
        I("s_waitcnt vmcnt(0)")
        I(f"v_readfirstlane_b32 {sr(sKnown)}, {D(47)}")
        I(f"s_cmp_lt_u32 {sr(sKnown)}, {sr(sT0)}")
        I(f"s_cbranch_scc1 chain_kvw_{sfx}")
        I(f"s_branch chain_kvok_{sfx}")


def chain_kernel(prof=False, timed=True, k=None):
    if k is None:
        k = K(timed=timed)
        k.I("s_and_b32 s3, s2, 7")
        k.I("s_cmp_lg_u32 s3, 0")
        k.I("s_cbranch_scc1 chain_exit")
        k.I("s_cmp_ge_u32 s2, 256")
        k.I("s_cbranch_scc1 chain_exit")
    prologue(k, "chain_tbl", prof=prof)
    step(k, "f", "")
    step(k, "s", " sc1")
    k.L("chain_end")
    k.I("s_waitcnt vmcnt(0) lgkmcnt(0)")
    if OPT.get("full"):
        k.I(f"s_add_u32 {sr(sT0)}, {sr(sStep)}, 1")
        roles.stamp(k, sr(sT0), D0 + 44, D0 + 45)
    if STAMP[0]:
        k.I(f"s_lshl_b32 {sr(sT0)}, {sr(sH)}, 2")
        k.I(f"s_add_u32 {sr(sT0)}, {sr(sT0)}, {sr(sW)}")
        k.I(f"s_lshl_b32 {sr(sT0)}, {sr(sT0)}, 6")
        k.I(f"s_add_u32 {sr(sT0)}, {sr(sT0)}, 0x3200000")
        k.I("v_mov_b32 v12, 0")
        for i in range(16):
            k.I(f"v_mov_b32 v8, s{60 + 2 * i}")
            k.I(f"buffer_store_dword v8, v12, {sr(S_WS, 4)}, {sr(sT0)} offen offset:{4 * i}")
        k.I("s_waitcnt vmcnt(0)")
    if prof:
        k.I(f"s_memtime {sr(sTm + 2, 2)}")
        k.I("s_waitcnt lgkmcnt(0)")
        k.I(f"s_sub_u32 {sr(sTm + 2)}, {sr(sTm + 2)}, {sr(sTm)}")
        k.I(f"s_cmp_lg_u32 s2, 0")
        k.I("s_cbranch_scc1 chain_exit")
        k.I(f"s_lshl_b32 {sr(sT0)}, {sr(sW)}, 4")
        k.I(f"v_mov_b32 v8, {sr(sTm + 2)}")
        k.I(f"v_mov_b32 v9, {sr(sBud)}")
        k.I(f"v_mov_b32 v10, {sr(sStep)}")
        k.I(f"v_mov_b32 v11, {sr(sT1)}")
        k.I(f"v_mov_b32 v12, {sr(sT0)}")
        k.I("s_mov_b64 exec, 1")
        k.I(f"global_store_dwordx4 v12, v[8:11], {sr(S_DBG, 2)} offset:64")
        k.I("s_waitcnt vmcnt(0)")
    k.L("chain_exit")
    return k
```

```python
import numpy as np

WS_KV = 0x0000000
WS_KM = 0x2000000
WS_P = 0x3000000
WS_M = 0x3100000
WS_F = 0x3300000
WS_XN = 0x3400000
WS_H = 0x3A00000
WS_S = 0x3D00000
WS_O = 0x4000000
WS_ACT = 0x5200000
WS_WP = 0x6600000
WS_DP = 0x7A00000
WS_Q = 0x9000000
WS_VC = 0xA000000
WS_TS = 0xD000000
WS_DUMP = 0xE000000
WS_BYTES = 0x10000000
FL_XN, FL_KV, FL_O, FL_WO, FL_HN, FL_GU, FL_DN, FL_Q, FL_END = 0, 64, 96, 128, 168, 180, 216, 256, 272
AHEAD = 4
fl = lambda line: WS_F + 128 * line


def slot8(g, s):
    return 16 * (g // 2) + 8 * (s // 4) + 4 * (g % 2) + s % 4


def rho(g, c):
    return 4 * (g % 2) + 2 * c + g // 2


def mcol(t, hA, gA, q, c):
    if t < 8:
        return 144 * (t // 2) + 64 * (t % 2) + 32 * hA + 16 * c + 4 * gA + q
    return 144 * (2 * hA + gA // 2) + 128 + 8 * (gA % 2) + 4 * (q // 2) + (q % 2) + 2 * c
```

```python
from gen import K, vr, ar, sr
from lay import *

R_CH, R_KV, R_Q, R_AT, R_WO, R_R1, R_GU, R_DN, R_R2, R_NONE = range(10)
TROW = {R_KV: 0, R_Q: 1, R_GU: 2, R_WO: 3, R_DN: 4, R_AT: 5, R_R1: 6, R_R2: 6, R_NONE: 6}

S_WS, S_A, S_B, S_X = 4, 8, 12, 16
S_DBG = 24
sW, sIdx, sSeg, sNeed, sSrc, sDst, sFlag, sPoll, sBud, sM0, sT0, sT1, sT2, sT3, sIss, sLn, sRole, sKn, sW4k = range(26, 45)
sDst2, sC0, sC1, sC2, sC3 = range(45, 50)
sMask = 60
vL = 0
C = lambda i: vr(100 + i)
BUFSZ = 36864
OPT = {}


def f32(x):
    return hex(int(np.float32(x).view(np.uint32)))


def role_map():
    m = [None] * 256
    groups = [(R_WO, g) for g in range(8)] + [(R_DN, g) for g in range(8)]
    order = [groups[(i // 2) + 8 * (i % 2)] for i in range(16)]
    rest = [(R_KV, i) for i in range(32)] + [(R_Q, i) for i in range(16)] + [(R_AT, i) for i in range(32)] + \
           [(R_GU, i) for i in range(36)] + [(R_R1, i) for i in range(12)] + [(R_R2, i) for i in range(12)] + \
           [(R_NONE, i) for i in range(4)]
    gi = 0
    for base, xs in ((0, range(1, 8)), (5, range(1, 8)), (10, (1, 2))):
        for x in xs:
            r, g = order[gi]
            gi += 1
            for j in range(5):
                m[(base + j) * 8 + x] = (r, g * 5 + j)
    for i in range(32):
        m[i * 8] = (R_CH, i)
    free = [wg for wg in range(256) if m[wg] is None]
    assert len(free) == len(rest)
    for wg, e in zip(free, rest):
        m[wg] = e
    ln = 0
    out = []
    lnidx = {}
    for r in (R_NONE, R_R2, R_R1, R_AT):
        for wg in range(256):
            if m[wg][0] == r:
                lnidx[wg] = ln
                ln += 1
    assert ln == 60
    for wg in range(256):
        r, i = m[wg]
        out.append(r | i << 8 | lnidx.get(wg, 255) << 16)
    return out


def lane_table():
    T = np.zeros((7, 64, 8), np.uint32)
    for l in range(64):
        q, p = l // 16, l % 16
        g, n16 = l // 16, l % 16
        r, c4 = n16 // 4, n16 % 4
        n, hi = l % 32, l // 32
        dm = lambda S: q * S + (p ^ (4 * q)) * 16
        tr = lambda HS: ((g // 2) * HS + r) * 256 + (4 * r + 2 * (g % 2) + c4 // 2) * 16 + (c4 % 2) * 8
        vk = ((n >> 3) & 1) * 1024 + hi * 256 + ((n >> 4) * 8 + (n & 7)) * 16
        vv = 2048 + (n // 16) * 1024 + hi * 256 + (n % 16) * 16
        vq = (n // 16) * 4096 + hi * 256 + (n % 16) * 16
        T[0, l, :5] = [dm(8192), tr(8), vk, vv, (l % 4) * 4]
        T[1, l, :5] = [dm(8192), tr(8), vq, vq + 8192, (l % 4) * 4]
        T[2, l, :5] = [dm(9216), tr(4), l * 16, 0, ((l % 36) // 3) * 128 + (l % 3) * 4]
        T[3, l, :5] = [dm(1152), tr(4), l * 16, 0, ((l % 16) // 4) * 128 + (l % 4) * 4]
        T[4, l, :5] = [dm(1152), tr(4), l * 16, 0, l % 18]
        T[5, l, :6] = [g * 512 + n16 * 16, (n16 - 16 * (g // 2) - 4 * (g % 2)) & 0xffffffff, (l % 4) * 4,
                       1 if l % 8 >= 4 else 0, l * 8, l * 16 if n16 >= 8 else 1024 + (g * 8 + n16) * 16]
        nn, pp = l // 8, l % 8
        T[6, l, :5] = [pp * 512 + nn * 16, nn * 1152 + (pp // 2) * 32 + (pp % 2) * 8, nn * 1152 + pp * 16,
                       (l % 40) * 128, nn * 8]
    return T


def tables_text():
    s = ".p2align 8\n.type role_tbl,@object\nrole_tbl:\n"
    rm = role_map()
    for i in range(0, 256, 8):
        s += ".long " + ",".join(hex(x) for x in rm[i:i + 8]) + "\n"
    T = lane_table()
    T2 = T.reshape(7, 64, 2, 4).transpose(0, 2, 1, 3).reshape(-1, 8)
    for row in T2:
        s += ".long " + ",".join(hex(int(x)) for x in row) + "\n"
    s += f".size role_tbl, {1024 + T.size * 4}\n"
    return s


def entry(k):
    I = k.I
    I("s_cmp_ge_u32 s2, 256")
    I("s_cbranch_scc1 all_exit")
    I("s_and_b32 s3, s2, 7")
    I("s_cmp_eq_u32 s3, 0")
    I("s_cbranch_scc1 chain_entry")
    I("s_getpc_b64 s[64:65]")
    k.L("role_pc")
    I("s_add_u32 s64, s64, role_tbl-role_pc")
    I("s_addc_u32 s65, s65, 0")
    I("s_lshl_b32 s3, s2, 2")
    I(f"s_load_dword {sr(sRole)}, s[64:65], s3")
    I(f"s_load_dwordx2 {sr(S_WS, 2)}, s[0:1], 104")
    I(f"s_load_dwordx2 {sr(S_DBG, 2)}, s[0:1], 96")
    I(f"s_load_dwordx2 {sr(S_X, 2)}, s[0:1], 0")
    I("v_lshrrev_b32 v8, 6, v0")
    I(f"v_readfirstlane_b32 {sr(sW)}, v8")
    I("v_and_b32 v0, 63, v0")
    I(f"v_lshlrev_b32 {vr(vL)}, 4, v0")
    I(f"s_mov_b32 {sr(S_WS + 2)}, {hex(WS_BYTES)}")
    I(f"s_mov_b32 {sr(S_WS + 3)}, 0x00020000")
    I(f"s_mov_b32 {sr(S_X + 2)}, {2048 * 1152}")
    I(f"s_mov_b32 {sr(S_X + 3)}, 0x00020000")
    I(f"s_mov_b32 {sr(sBud)}, 0x40000")
    I(f"s_lshl_b32 {sr(sW4k)}, {sr(sW)}, 12")
    I("s_waitcnt lgkmcnt(0)")
    I(f"s_bfe_u32 {sr(sIdx)}, {sr(sRole)}, 0x80008")
    I(f"s_bfe_u32 {sr(sLn)}, {sr(sRole)}, 0x80010")
    I(f"s_and_b32 {sr(sRole)}, {sr(sRole)}, 255")
    stamp_base(k, sW)
    stamp(k, 200)
    for r, nm in ((R_KV, "kv"), (R_Q, "q"), (R_GU, "gu"), (R_WO, "wo"), (R_DN, "dn")):
        I(f"s_cmp_eq_u32 {sr(sRole)}, {r}")
        I(f"s_cbranch_scc1 {nm}_entry")
    I("s_branch ln_entry")


def consts(k, row):
    I = k.I
    I(f"v_add_u32 v8, {1024 + row * 2048}, {vr(vL)}")
    I(f"global_load_dwordx4 {vr(100, 4)}, v8, s[64:65]")
    I(f"global_load_dwordx4 {vr(104, 4)}, v8, s[64:65] offset:1024")


def wait_init(k, p):
    I = k.I
    I("v_mov_b32 v8, 0")
    k.L(f"{p}_init")
    I(f"global_load_dword v9, v8, {sr(S_DBG, 2)} offset:8 sc1")
    I(f"s_sub_u32 {sr(sBud)}, {sr(sBud)}, 1")
    I("s_cbranch_scc1 all_exit")
    I("s_waitcnt vmcnt(0)")
    I(f"v_readfirstlane_b32 {sr(sT0)}, v9")
    I(f"s_cmp_eq_u32 {sr(sT0)}, 0")
    I(f"s_cbranch_scc1 {p}_init")


def stamp(k, val, t0=97, t1=99, add=0, src=None):
    if not OPT.get("ts"):
        return
    I = k.I
    if src is None:
        I("s_memrealtime s[52:53]")
    I(f"v_mov_b32 {vr(t1)}, {val}")
    I(f"v_lshlrev_b32 {vr(t1)}, 2, {vr(t1)}")
    I("s_waitcnt lgkmcnt(0)")
    I(f"v_mov_b32 {vr(t0)}, s{src or 52}")
    I(f"s_mov_b64 exec, 1")
    I(f"buffer_store_dword {vr(t0)}, {vr(t1)}, {sr(S_WS, 4)}, s54 offen offset:{4 * add}")
    I(f"s_mov_b64 exec, -1")


def stamp_base(k, sw):
    if not OPT.get("ts"):
        return
    k.I(f"s_lshl_b32 s54, s2, 13")
    k.I(f"s_lshl_b32 s55, {sr(sw)}, 11")
    k.I(f"s_add_u32 s54, s54, s55")
    k.I(f"s_add_u32 s54, s54, {hex(WS_TS)}")


def put_flag(k, val, tmp=98, add=0):
    I = k.I
    stamp(k, val, add=add)
    I(f"v_mov_b32 {vr(tmp)}, {val}")
    I(f"s_mov_b64 exec, 1")
    I(f"buffer_store_dword {vr(tmp)}, off, {sr(S_WS, 4)}, {sr(sFlag)} sc1")
    I(f"s_mov_b64 exec, -1")


def spin(k, lab, voff, soff, need, wide=False, dst=96):
    I = k.I
    k.L(lab)
    if wide:
        I(f"buffer_load_dwordx4 {vr(92, 4)}, {voff}, {sr(S_WS, 4)}, {soff} offen sc1")
    else:
        I(f"buffer_load_dword {vr(dst)}, {voff}, {sr(S_WS, 4)}, {soff} offen sc1")
    I(f"s_sub_u32 {sr(sBud)}, {sr(sBud)}, 1")
    I("s_cbranch_scc1 all_exit")
    I("s_waitcnt vmcnt(0)")
    if wide:
        I(f"v_min_u32 {vr(92)}, {vr(92)}, {vr(93)}")
        I(f"v_min3_u32 {vr(dst)}, {vr(92)}, {vr(94)}, {vr(95)}")
    I(f"v_cmp_gt_u32 vcc, {need}, {vr(dst)}")
    I(f"s_cbranch_vccnz {lab}")


def wreg(t, ks, off=0, n=4):
    i = (36 * t + ks) * 4
    if i < 256:
        return ar(i + off, n)
    return vr(112 + i - 256 + off, n)


ROWMAP = {
    "nat": lambda t, half: 16 * t + 4 * half,
    "std": lambda t, half: 16 * t + 8 * half,
    "o": lambda t, half: 32 * (t // 2) + 16 * half + 8 * (t % 2),
}


def load_weights(k, mats, nslab, S, perm):
    I = k.I
    N = len(mats) * nslab

    def dma(n):
        d, base = mats[n // nslab]
        sl = n % nslab
        for i in range(4):
            I(f"s_add_u32 {sr(sT0)}, {sr(base)}, {(64 * sl + 4 * i) * S}")
            I(f"s_add_u32 m0, {sr(sW4k)}, {(n % 10) * 16384 + i * 1024}")
            I(f"buffer_load_dwordx4 {C(0)}, {sr(d, 4)}, {sr(sT0)} offen nt lds")
        k.tag(f"slab{n}")

    for n in range(min(9, N)):
        dma(n)
    I(f"s_lshl_b32 {sr(sT0)}, {sr(sW)}, 6")
    I(f"v_xor_b32 {C(1)}, {sr(sT0)}, {C(1)}")
    for n in range(N):
        k.wait_tag(f"slab{n}")
        I("s_waitcnt lgkmcnt(0)")
        I("s_barrier")
        if n + 9 < N:
            dma(n + 9)
        I(f"v_add_u32 v8, {(n % 10) * 16384}, {C(1)}")
        for t in range(4):
            for half in range(2):
                I(f"ds_read_b64_tr_b16 {wreg(n // nslab, 4 * (n % nslab) + t, 2 * half, 2)}, v8 "
                  f"offset:{ROWMAP[perm](t, half) * 256}")
    I("s_waitcnt lgkmcnt(0)")
    I("s_barrier")


ACC = [8, 24]
BR = 40
EP = 72
vRd = 1


def gemm(k, p, ntile, per, swap, epilogue, src_step, poll_step, extra=None):
    I = k.I
    nk = 4 * sum(per)
    start = [0, 4 * per[0], 4 * (per[0] + per[1])]
    LA = 6 if ntile == 1 else 3

    def dma_all():
        for c in range(3):
            if c == 0:
                I(f"s_mov_b32 m0, {sr(sM0)}")
                so = sSrc
            else:
                d = start[c] * 1024
                if per[c] != per[0]:
                    I(f"s_mul_i32 {sr(sT1)}, {sr(sW)}, {(per[0] - per[c]) * 1024}")
                    I(f"s_sub_u32 {sr(sT1)}, {d}, {sr(sT1)}")
                    I(f"s_add_u32 m0, {sr(sM0)}, {sr(sT1)}")
                    I(f"s_add_u32 {sr(sT0)}, {sr(sSrc)}, {sr(sT1)}")
                else:
                    I(f"s_add_u32 m0, {sr(sM0)}, {d}")
                    I(f"s_add_u32 {sr(sT0)}, {sr(sSrc)}, {d}")
                so = sT0
            for j in range(per[c]):
                I(f"buffer_load_dwordx4 {vr(vL)}, {sr(S_WS, 4)}, {sr(so)} offen offset:{j * 1024} sc1 lds")
        I(f"s_add_u32 {sr(sSrc)}, {sr(sSrc)}, {src_step}")
        I(f"s_sub_u32 {sr(sM0)}, {sr(sC0)}, {sr(sM0)}")

    NS = epilogue(None)
    I(f"s_mul_i32 {sr(sT0)}, {sr(sW)}, {per[0] * 1024}")
    I(f"s_add_u32 {sr(sSrc)}, {sr(sSrc)}, {sr(sT0)}")
    I(f"s_mov_b32 {sr(sM0)}, {sr(sT0)}")
    I(f"s_lshl_b32 {sr(sC0)}, {sr(sT0)}, 1")
    I(f"s_add_u32 {sr(sC0)}, {sr(sC0)}, {BUFSZ}")
    I(f"v_mov_b32 {vr(vRd)}, {vr(vL)}")
    I(f"s_mov_b32 {sr(sSeg)}, 0")
    I(f"s_mov_b32 {sr(sNeed)}, 1")
    stamp(k, 201)
    wait_init(k, p)
    I(f"s_branch {p}_spin")
    k.L(f"{p}_loop")
    k.forget()
    I(f"s_waitcnt vmcnt({per[1] + per[2] + NS})")
    I("s_barrier")
    if OPT.get("ts"):
        I("s_memrealtime s[56:57]")
    I(f"buffer_load_dword {vr(96)}, {C(4)}, {sr(S_WS, 4)}, {sr(sPoll)} offen sc1")
    k.forget()

    def rd(t):
        if t == start[1]:
            I(f"s_waitcnt vmcnt({per[2] + NS + 1})")
            I("s_barrier")
        if t == start[2]:
            I(f"s_waitcnt vmcnt(0)")
            I("s_barrier")
            put_flag(k, sr(sSeg))
            I(f"v_cmp_gt_u32 vcc, {sr(sNeed)}, {vr(96)}")
            I(f"s_mov_b32 {sr(sIss)}, 0")
            I(f"s_cbranch_vccnz {p}_late")
            I(f"s_cmp_eq_u32 {sr(sSeg)}, 63")
            I(f"s_cbranch_scc1 {p}_late")
            dma_all()
            I(f"s_mov_b32 {sr(sIss)}, 1")
            k.L(f"{p}_late")
        I(f"ds_read_b128 {vr(BR + 4 * (t % 8), 4)}, {vr(vRd)} offset:{t * 1024}")

    for t in range(LA):
        rd(t)
    for t in range(nk):
        b = vr(BR + 4 * (t % 8), 4)
        for j in range(ntile):
            a = vr(ACC[j], 16)
            x, y = (b, wreg(j, t)) if swap[j] else (wreg(j, t), b)
            I(f"v_mfma_f32_32x32x16_bf16 {a}, {x}, {y}, {a if t else 0}")
            if j == 0 and t + LA < nk:
                rd(t + LA)
    I(f"v_xor_b32 {vr(vRd)}, {vr(2)}, {vr(vRd)}")
    epilogue(k)
    if OPT.get("ts"):
        I("s_memrealtime s[58:59]")
    I(f"s_add_u32 {sr(sSeg)}, {sr(sSeg)}, 1")
    I(f"s_add_u32 {sr(sNeed)}, {sr(sNeed)}, 1")
    poll_step(k)
    I(f"s_cmp_eq_u32 {sr(sIss)}, 1")
    I(f"s_cbranch_scc1 {p}_loop")
    I("s_waitcnt vmcnt(0)")
    put_flag(k, sr(sSeg), add=65)
    stamp(k, sr(sSeg), add=260, src=56)
    stamp(k, sr(sSeg), add=330, src=58)
    I(f"s_cmp_eq_u32 {sr(sSeg)}, 64")
    I("s_cbranch_scc1 all_exit")
    I(f"s_sub_u32 {sr(sNeed)}, {sr(sNeed)}, 1")
    poll_step(k, back=True)
    k.L(f"{p}_spin")
    spin(k, f"{p}_sp", C(4), sr(sPoll), sr(sNeed))
    stamp(k, sr(sNeed), add=130)
    dma_all()
    for _ in range(NS):
        I(f"buffer_load_dword {vr(97)}, {C(4)}, {sr(S_WS, 4)}, {sr(sPoll)} offen sc1")
    k.forget()
    I(f"s_add_u32 {sr(sNeed)}, {sr(sNeed)}, 1")
    poll_step(k)
    I(f"s_branch {p}_loop")


FF = 108


def empty(k):
    k.I(f"v_mov_b64 {vr(FF, 2)}, -1")
    k.I(f"v_mov_b64 {vr(FF + 2, 2)}, -1")


def ready(k, p):
    k.I("s_waitcnt vmcnt(0)")
    wait_init(k, p)
    put_flag(k, 1, add=201)


def gemm2(k, p, ntile, nb, epilogue, src_step, side=None):
    I = k.I
    nk = 4 * nb
    LA = 6 if ntile == 1 else 3

    def dma():
        out = []
        for j in range(nb):
            if j == 0:
                out.append(f"s_mov_b32 m0, {sr(sM0)}")
            elif j % 4 == 0:
                out.append(f"s_add_u32 m0, {sr(sM0)}, {j * 1024}")
                out.append(f"s_add_u32 {sr(sT0)}, {sr(sSrc)}, {j * 1024}")
            out.append(f"buffer_load_dwordx4 {vr(vL)}, {sr(S_WS, 4)}, {sr(sSrc if j < 4 else sT0)} offen "
                       f"offset:{(j % 4) * 1024} sc1 lds")
        return out

    NS = epilogue(None)
    I(f"s_mul_i32 {sr(sC1)}, {sr(sW)}, {nb * 1024}")
    I(f"s_add_u32 {sr(sSrc)}, {sr(sSrc)}, {sr(sC1)}")
    I(f"s_mov_b32 {sr(sM0)}, {sr(sC1)}")
    I(f"s_lshl_b32 {sr(sC0)}, {sr(sC1)}, 1")
    I(f"s_add_u32 {sr(sC0)}, {sr(sC0)}, {BUFSZ}")
    I(f"v_mov_b32 {vr(vRd)}, {vr(vL)}")
    I(f"s_mov_b32 {sr(sSeg)}, 0")
    spin(k, f"{p}_sp", C(4), sr(sPoll), 1)
    I(f"v_add_u32 v3, {sr(sC1)}, {vr(vRd)}")
    k.L(f"{p}_again")
    for x in dma() + (side["load"] if side else []):
        I(x)
    I(f"s_sub_u32 {sr(sBud)}, {sr(sBud)}, 1")
    I("s_cbranch_scc1 all_exit")
    I("s_waitcnt vmcnt(0)")
    k.L(f"{p}_loop")
    k.forget()
    I(f"s_waitcnt vmcnt({NS})")
    T = 88
    for j in range(0, nb, 2):
        if j + 1 < nb:
            I(f"ds_read2st64_b32 {vr(T + j, 2)}, v3 offset0:{4 * j} offset1:{4 * j + 4}")
        else:
            I(f"ds_read_b32 {vr(T + j)}, v3 offset:{1024 * j}")
    if side:
        c = side["check"]
        I(f"v_max3_u32 {vr(T + 10)}, {vr(c[0])}, {vr(c[1])}, {vr(c[2])}")
        I(f"v_max3_u32 {vr(T + 10)}, {vr(T + 10)}, {vr(c[3])}, {vr(c[4])}")
    I(f"v_max3_u32 {vr(T)}, {vr(T)}, {vr(T + 1)}, {vr(T + 2)}")
    I(f"v_max3_u32 {vr(T + 3)}, {vr(T + 3)}, {vr(T + 4)}, {vr(T + 5)}")
    I(f"v_max3_u32 {vr(T + 6)}, {vr(T + 6)}, {vr(T + 7)}, {vr(T + nb - 1)}")
    I(f"v_max3_u32 {vr(T)}, {vr(T)}, {vr(T + 3)}, {vr(T + 6)}")
    if side:
        I(f"v_max_u32 {vr(T)}, {vr(T)}, {vr(T + 10)}")
    I(f"v_cmp_eq_u32 vcc, -1, {vr(T)}")
    I(f"s_cbranch_vccnz {p}_again")
    stamp(k, sr(sSeg), add=131)
    I("s_barrier")
    stamp(k, sr(sSeg), add=261)
    rd = lambda t: I(f"ds_read_b128 {vr(BR + 4 * (t % 8), 4)}, {vr(vRd)} offset:{t * 1024}")
    for t in range(LA):
        rd(t)
    I(f"s_add_u32 {sr(sSrc)}, {sr(sSrc)}, {src_step}")
    I(f"s_sub_u32 {sr(sM0)}, {sr(sC0)}, {sr(sM0)}")
    nxt = dma() + (side["use"] + side["load"] if side else [])
    for t in range(nk):
        b = vr(BR + 4 * (t % 8), 4)
        for j in range(ntile):
            a = vr(ACC[j], 16)
            I(f"v_mfma_f32_32x32x16_bf16 {a}, {wreg(j, t)}, {b}, {a if t else 0}")
            if j == 0 and t + LA < nk:
                rd(t + LA)
            for _ in range(2):
                if nxt:
                    I(nxt.pop(0))
    I(f"v_xor_b32 {vr(vRd)}, {vr(2)}, {vr(vRd)}")
    I(f"v_add_u32 v3, {sr(sC1)}, {vr(vRd)}")
    epilogue(k)
    I(f"s_add_u32 {sr(sSeg)}, {sr(sSeg)}, 1")
    stamp(k, sr(sSeg))
    I(f"s_cmp_lt_u32 {sr(sSeg)}, 64")
    I(f"s_cbranch_scc1 {p}_loop")
    I("s_branch all_exit")


def cvt16(k, dst, src):
    for r in range(8):
        k.I(f"v_cvt_pk_bf16_f32 {vr(dst + r)}, {vr(src + 2 * r)}, {vr(src + 2 * r + 1)}")


def st16(k, reg, voff, soff, off):
    k.I(f"buffer_store_dwordx4 {vr(reg, 4)}, {voff}, {sr(S_WS, 4)}, {sr(soff)} offen offset:{off} sc1")


def srd(k, s, karg, nbytes):
    k.I(f"s_load_dwordx2 {sr(s, 2)}, s[0:1], {karg}")
    k.I(f"s_mov_b32 {sr(s + 2)}, {nbytes}")
    k.I(f"s_mov_b32 {sr(s + 3)}, 0x00020000")


def rd_toggle(k):
    k.I(f"v_add_u32 v2, {BUFSZ}, {vr(vL)}")
    k.I(f"v_xor_b32 v2, v2, {vr(vL)}")


def own_flag(k, line):
    k.I(f"s_lshl_b32 {sr(sFlag)}, {sr(sIdx)}, 7")
    k.I(f"s_lshl_b32 {sr(sT0)}, {sr(sW)}, 2")
    k.I(f"s_add_u32 {sr(sFlag)}, {sr(sFlag)}, {sr(sT0)}")
    k.I(f"s_add_u32 {sr(sFlag)}, {sr(sFlag)}, {hex(fl(line))}")


def role_proj(k, isq):
    I = k.I
    p = "q" if isq else "kv"
    k.L(f"{p}_entry")
    consts(k, TROW[R_Q if isq else R_KV])
    srd(k, S_A, 16 if isq else 24, 576 * 8192)
    srd(k, S_B, 16 if isq else 32, 576 * 8192)
    I(f"s_lshl_b32 {sr(sC2)}, {sr(sW)}, 17")
    I(f"s_lshl_b32 {sr(sT0)}, {sr(sIdx)}, {9 if isq else 8}")
    I(f"s_add_u32 {sr(sC2)}, {sr(sC2)}, {sr(sT0)}")
    I(f"s_add_u32 {sr(sC3)}, {sr(sC2)}, {256 if isq else 0}")
    I("s_waitcnt vmcnt(0) lgkmcnt(0)")
    load_weights(k, [(S_A, sC2), (S_B, sC3)], 9, 8192, "nat")
    rd_toggle(k)
    own_flag(k, FL_Q if isq else FL_KV)
    I(f"s_mov_b32 {sr(sSrc)}, {hex(WS_XN)}")
    I(f"s_mov_b32 {sr(sPoll)}, {hex(fl(FL_XN))}")
    I(f"s_lshl_b32 {sr(sDst)}, {sr(sIdx)}, 14")
    I(f"s_lshl_b32 {sr(sT0)}, {sr(sW)}, {10 if isq else 12}")
    I(f"s_add_u32 {sr(sDst)}, {sr(sDst)}, {sr(sT0)}")
    I(f"s_add_u32 {sr(sDst)}, {sr(sDst)}, {hex(WS_Q if isq else WS_KV)}")

    def ep(k):
        if k is None:
            return 4
        for j in range(2):
            cvt16(k, EP + 8 * j, ACC[j])
            st16(k, EP + 8 * j, C(2 + j), sDst, 0)
            st16(k, EP + 8 * j + 4, C(2 + j), sDst, 512)
        k.I(f"s_add_u32 {sr(sDst)}, {sr(sDst)}, {32 * (8192 if isq else 16384)}")

    def ps(k, back=False):
        k.I(f"s_{'sub' if back else 'add'}_u32 {sr(sPoll)}, {sr(sPoll)}, 128")

    gemm(k, p, 2, [3, 3, 3], [False, not isq], ep, BUFSZ, ps)


def out2(k, step):
    st16(k, EP, vr(vL), sDst, 0)
    st16(k, EP + 4, vr(vL), sDst, 1024)
    k.I(f"s_add_u32 {sr(sT0)}, {sr(sDst)}, {AHEAD * step}")
    st16(k, FF, vr(vL), sT0, 0)
    st16(k, FF, vr(vL), sT0, 1024)
    k.I(f"s_add_u32 {sr(sDst)}, {sr(sDst)}, {step}")


def first2(k, step):
    empty(k)
    for a in range(AHEAD):
        k.I(f"s_add_u32 {sr(sT0)}, {sr(sDst)}, {a * step}")
        st16(k, FF, vr(vL), sT0, 0)
        st16(k, FF, vr(vL), sT0, 1024)


def role_gu(k):
    I = k.I
    k.L("gu_entry")
    consts(k, TROW[R_GU])
    srd(k, S_A, 64, 576 * 9216)
    srd(k, S_B, 72, 576 * 9216)
    I(f"s_mul_i32 {sr(sC2)}, {sr(sW)}, {16 * 9216}")
    I(f"s_lshl_b32 {sr(sT0)}, {sr(sIdx)}, 8")
    I(f"s_add_u32 {sr(sC2)}, {sr(sC2)}, {sr(sT0)}")
    I("s_waitcnt vmcnt(0) lgkmcnt(0)")
    load_weights(k, [(S_A, sC2), (S_B, sC2)], 9, 9216, "std")
    rd_toggle(k)
    own_flag(k, FL_GU)
    I(f"s_mov_b32 {sr(sSrc)}, {hex(WS_H)}")
    I(f"s_mov_b32 {sr(sPoll)}, {hex(fl(FL_HN))}")
    I(f"s_lshl_b32 {sr(sDst)}, {sr(sIdx)}, 13")
    I(f"s_lshl_b32 {sr(sT0)}, {sr(sW)}, 11")
    I(f"s_add_u32 {sr(sDst)}, {sr(sDst)}, {sr(sT0)}")
    I(f"s_add_u32 {sr(sDst)}, {sr(sDst)}, {hex(WS_ACT)}")
    first2(k, 288 * 1024)
    CS, ST = 144, 176
    I(f"s_mov_b32 {sr(sC3)}, 0x3f803f80")
    for r in range(4):
        I(f"v_mov_b32 {vr(BR + r)}, {sr(sC3)}")
    for t in range(36):
        for j in range(2):
            a = vr(CS + 16 * j, 16)
            I(f"v_mfma_f32_32x32x16_bf16 {a}, {wreg(j, t)}, {vr(BR, 4)}, {a if t else 0}")
    I(f"v_and_b32 v4, {31 * 16}, {vr(vL)}")
    I(f"v_lshrrev_b32 v4, 1, v4")
    I(f"v_and_b32 v5, {32 * 16}, {vr(vL)}")
    I(f"v_lshl_add_u32 v5, v5, 1, v4")
    sS = sDst2
    I(f"s_mov_b32 {sr(sS)}, {hex(WS_S)}")
    ready(k, "gu")
    m, v = ST + 10, ST + 12
    load = [f"buffer_load_dwordx2 {vr(ST + 2 * j, 2)}, v5, {sr(S_WS, 4)}, {sr(sS)} offen offset:{256 * j} sc1"
            for j in range(4)]
    load.append(f"buffer_load_dwordx2 {vr(ST + 8, 2)}, v4, {sr(S_WS, 4)}, {sr(sS)} offen offset:2048 sc1")
    rn = lambda r: [f"v_cvt_pk_bf16_f32 {vr(r)}, {vr(r)}, {vr(r)}", f"v_lshlrev_b32 {vr(r)}, 16, {vr(r)}"]
    use = [f"v_pk_add_f32 {vr(ST, 2)}, {vr(ST, 2)}, {vr(ST + 2, 2)}",
           f"v_pk_add_f32 {vr(ST + 4, 2)}, {vr(ST + 4, 2)}, {vr(ST + 6, 2)}",
           f"v_pk_add_f32 {vr(ST + 2, 2)}, {vr(ST, 2)}, {vr(ST + 4, 2)}",
           f"v_pk_add_f32 {vr(ST, 2)}, {vr(ST, 2)}, {vr(ST + 4, 2)}",
           f"s_add_u32 {sr(sS)}, {sr(sS)}, 4096",
           f"v_permlane32_swap_b32 {vr(ST)}, {vr(ST + 2)}",
           f"v_permlane32_swap_b32 {vr(ST + 1)}, {vr(ST + 3)}",
           f"v_pk_add_f32 {vr(ST, 2)}, {vr(ST, 2)}, {vr(ST + 8, 2)}",
           f"v_pk_add_f32 {vr(ST, 2)}, {vr(ST, 2)}, {vr(ST + 2, 2)}",
           f"v_mul_f32 {vr(m)}, {f32(1 / 576)}, {vr(ST)}",
           f"v_mul_f32 {vr(v)}, {f32(1 / 576)}, {vr(ST + 1)}",
           f"v_fma_f32 {vr(v)}, -{vr(m)}, {vr(m)}, {vr(v)}",
           f"v_max_f32 {vr(v)}, 0, {vr(v)}"] + rn(m) + rn(v) + \
          [f"v_add_f32 {vr(v)}, {f32(1e-5)}, {vr(v)}"] + rn(v) + [f"v_sqrt_f32 {vr(v)}, {vr(v)}", "s_nop 0"] + rn(v) + \
          [f"v_rcp_f32 {vr(v)}, {vr(v)}", "s_nop 0", f"v_mul_f32 {vr(v)}, {vr(v)}, {vr(v)}"]

    def ep(k):
        if k is None:
            return 4
        for r in range(0, 32, 2):
            I(f"v_pk_fma_f32 {vr(ACC[0] + r, 2)}, {vr(CS + r, 2)}, {vr(m, 2)}, {vr(ACC[0] + r, 2)} op_sel_hi:[1,0,1] "
              f"neg_lo:[0,1,0] neg_hi:[0,1,0]")
        for r in range(0, 16, 2):
            I(f"v_pk_mul_f32 {vr(ACC[0] + r, 2)}, {vr(ACC[0] + r, 2)}, {vr(ACC[1] + r, 2)}")
        for r in range(0, 16, 2):
            I(f"v_pk_mul_f32 {vr(ACC[0] + r, 2)}, {vr(ACC[0] + r, 2)}, {vr(v, 2)} op_sel_hi:[1,0]")
        cvt16(k, EP, ACC[0])
        out2(k, 288 * 1024)

    gemm2(k, "gu", 2, 9, ep, BUFSZ, dict(load=load, use=use, check=[ST + 2 * j for j in range(5)]))


def role_red(k, dn):
    I = k.I
    p = "dn" if dn else "wo"
    rows = 576 if dn else 512
    k.L(f"{p}_entry")
    consts(k, TROW[R_DN if dn else R_WO])
    srd(k, S_A, 80 if dn else 40, 8 * rows * 1152)
    I(f"s_mul_i32 {sr(sC1)}, {sr(sIdx)}, 52")
    I(f"s_lshr_b32 {sr(sC1)}, {sr(sC1)}, 8")
    I(f"s_mul_i32 {sr(sT0)}, {sr(sC1)}, 5")
    I(f"s_sub_u32 {sr(sC3)}, {sr(sIdx)}, {sr(sT0)}")
    I(f"s_mul_i32 {sr(sC2)}, {sr(sC1)}, {rows * 1152}")
    I(f"s_mul_i32 {sr(sT0)}, {sr(sW)}, {16 * 1152}")
    I(f"s_add_u32 {sr(sC2)}, {sr(sC2)}, {sr(sT0)}")
    I(f"s_lshl_b32 {sr(sT0)}, {sr(sC3)}, 8")
    I(f"s_add_u32 {sr(sC2)}, {sr(sC2)}, {sr(sT0)}")
    I("s_waitcnt vmcnt(0) lgkmcnt(0)")
    load_weights(k, [(S_A, sC2)], rows // 64, 1152, "std" if dn else "o")
    rd_toggle(k)
    own_flag(k, FL_DN if dn else FL_WO)
    I(f"s_mul_i32 {sr(sSrc)}, {sr(sC1)}, {rows * 64}")
    I(f"s_add_u32 {sr(sSrc)}, {sr(sSrc)}, {hex(WS_ACT if dn else WS_O)}")
    if dn:
        I(f"s_mul_i32 {sr(sT0)}, {sr(sC1)}, 18")
        I(f"v_add_u32 {C(4)}, {sr(sT0)}, {C(4)}")
        I(f"v_lshrrev_b32 v8, 2, {C(4)}")
        I(f"v_and_b32 {C(4)}, 3, {C(4)}")
        I(f"v_lshlrev_b32 {C(4)}, 2, {C(4)}")
        I(f"v_lshl_add_u32 {C(4)}, v8, 7, {C(4)}")
        I(f"s_mov_b32 {sr(sPoll)}, {hex(fl(FL_GU))}")
    else:
        I(f"s_lshl_b32 {sr(sPoll)}, {sr(sC1)}, 9")
        I(f"s_add_u32 {sr(sPoll)}, {sr(sPoll)}, {hex(fl(FL_O))}")
    I(f"s_lshl_b32 {sr(sT0)}, {sr(sC3)}, 2")
    I(f"s_add_u32 {sr(sT0)}, {sr(sT0)}, {sr(sW)}")
    I(f"s_lshl_b32 {sr(sDst)}, {sr(sT0)}, 11")
    I(f"s_mul_i32 {sr(sT1)}, {sr(sC1)}, {BUFSZ}")
    I(f"s_add_u32 {sr(sDst)}, {sr(sDst)}, {sr(sT1)}")
    I(f"s_add_u32 {sr(sDst)}, {sr(sDst)}, {hex(WS_DP if dn else WS_WP)}")
    I(f"s_add_u32 {sr(sT1)}, {sr(sDst)}, 0x4000000")
    I(f"s_cmp_lt_u32 {sr(sT0)}, 18")
    I(f"s_cselect_b32 {sr(sDst)}, {sr(sDst)}, {sr(sT1)}")

    first2(k, 8 * BUFSZ)
    ready(k, p)

    def ep(k):
        if k is None:
            return 4
        cvt16(k, EP, ACC[0])
        out2(k, 8 * BUFSZ)

    gemm2(k, p, 1, rows // 64, ep, 8 * rows * 64)


def red8(k, op, r, t):
    I = k.I
    for m in ("quad_perm:[1,0,3,2]", "quad_perm:[2,3,0,1]", "row_half_mirror"):
        I(f"{op}_dpp {vr(t)}, {vr(r)}, {vr(r)} {m} row_mask:0xf bank_mask:0xf")
        r, t = t, r
    return r


def sum_regs(k, regs, a, sq=False):
    I = k.I
    for i, r in enumerate(regs):
        d = a + i % 4
        if sq:
            I(f"v_mul_f32 {vr(d)}, {vr(r)}, {vr(r)}" if i < 4 else f"v_fmac_f32 {vr(d)}, {vr(r)}, {vr(r)}")
        elif i < 4:
            continue
        elif i < 8:
            I(f"v_add_f32 {vr(d)}, {vr(regs[i - 4])}, {vr(r)}")
        else:
            I(f"v_add_f32 {vr(d)}, {vr(d)}, {vr(r)}")
    I(f"v_add_f32 {vr(a)}, {vr(a)}, {vr(a + 1)}")
    I(f"v_add_f32 {vr(a + 2)}, {vr(a + 2)}, {vr(a + 3)}")
    I(f"v_add_f32 {vr(a)}, {vr(a)}, {vr(a + 2)}")


def unpack(k, dst, src, n):
    for r in range(n):
        k.I(f"v_lshlrev_b32 {vr(dst + 2 * r)}, 16, {vr(src + r)}")
        k.I(f"v_and_b32 {vr(dst + 2 * r + 1)}, 0xffff0000, {vr(src + r)}")


def rnd(k, r):
    k.I(f"v_cvt_pk_bf16_f32 {vr(r)}, {vr(r)}, {vr(r)}")
    k.I(f"v_lshlrev_b32 {vr(r)}, 16, {vr(r)}")


def normalise(k, x, n, mean, var, pk):
    I = k.I
    rnd(k, mean)
    rnd(k, var)
    I(f"v_add_f32 {vr(var)}, {f32(1e-5)}, {vr(var)}")
    rnd(k, var)
    I(f"v_sqrt_f32 {vr(var)}, {vr(var)}")
    rnd(k, var)
    I(f"v_rcp_f32 {vr(var)}, {vr(var)}")
    for r in range(n):
        I(f"v_sub_f32 {vr(x + r)}, {vr(x + r)}, {vr(mean)}")
    for r in range(n // 2):
        I(f"v_cvt_pk_bf16_f32 {vr(pk + r)}, {vr(x + 2 * r)}, {vr(x + 2 * r + 1)}")
    unpack(k, x, pk, n // 2)
    for r in range(n):
        I(f"v_mul_f32 {vr(x + r)}, {vr(x + r)}, {vr(var)}")
    for r in range(n // 2):
        I(f"v_cvt_pk_bf16_f32 {vr(pk + r)}, {vr(x + 2 * r)}, {vr(x + 2 * r + 1)}")


def role_ln(k):
    I = k.I
    k.L("ln_entry")
    consts(k, 6)
    I(f"s_cmp_lg_u32 {sr(sLn)}, 0")
    I("s_cbranch_scc1 ln_go")
    k.snap("z")
    I("v_mov_b64 v[8:9], 0")
    I("v_mov_b64 v[10:11], 0")
    I(f"s_mul_i32 {sr(sT0)}, {sr(sW)}, 10240")
    I(f"s_add_u32 {sr(sT0)}, {sr(sT0)}, {hex(WS_F)}")
    for i in range(10):
        I(f"buffer_store_dwordx4 v[8:11], {vr(vL)}, {sr(S_WS, 4)}, {sr(sT0)} offen offset:{(i % 4) * 1024} sc1")
        if i % 4 == 3:
            I(f"s_add_u32 {sr(sT0)}, {sr(sT0)}, 4096")
    I("s_waitcnt vmcnt(0)")
    I("s_barrier")
    I("v_mov_b32 v9, 1")
    I("s_mov_b64 exec, 1")
    I(f"global_store_dword v8, v9, {sr(S_DBG, 2)} offset:8 sc1")
    I("s_mov_b64 exec, -1")
    k.L("ln_go")
    k.restore("z")
    I("s_waitcnt vmcnt(0)")
    k.L("ln_loop")
    I(f"s_lshl_b32 {sr(sT0)}, {sr(sLn)}, 2")
    I(f"s_add_u32 {sr(sT0)}, {sr(sT0)}, {sr(sW)}")
    I(f"s_mul_i32 {sr(sT0)}, {sr(sT0)}, {8 * 1152}")
    for i in range(9):
        I(f"buffer_load_dwordx4 {vr(8 + 4 * i, 4)}, {C(2)}, {sr(S_X, 4)}, {sr(sT0)} offen offset:{i * 128}")
    X = 112
    unpack(k, X, 8, 36)
    sum_regs(k, list(range(X, X + 72)), 44)
    r = red8(k, "v_add_f32", 44, 45)
    I(f"v_mul_f32 v48, {f32(1 / 576)}, {vr(r)}")
    for i in range(72):
        I(f"v_sub_f32 {vr(184 + i)}, {vr(X + i)}, v48")
    sum_regs(k, list(range(184, 256)), 44, sq=True)
    r = red8(k, "v_add_f32", 44, 45)
    I(f"v_mul_f32 v49, {f32(1 / 576)}, {vr(r)}")
    normalise(k, X, 72, 48, 49, 8)
    I(f"s_mul_i32 {sr(sT0)}, {sr(sLn)}, {BUFSZ}")
    I(f"s_lshl_b32 {sr(sT1)}, {sr(sW)}, 7")
    I(f"s_add_u32 {sr(sT0)}, {sr(sT0)}, {sr(sT1)}")
    I(f"s_add_u32 {sr(sT0)}, {sr(sT0)}, {hex(WS_XN)}")
    for i in range(9):
        st16(k, 8 + 4 * i, C(0), sT0, 0)
        I(f"s_add_u32 {sr(sT0)}, {sr(sT0)}, 4096")
    I("s_waitcnt vmcnt(0)")
    wait_init(k, "ln")
    I(f"s_lshl_b32 {sr(sFlag)}, {sr(sLn)}, 7")
    I(f"s_lshl_b32 {sr(sT0)}, {sr(sW)}, 2")
    I(f"s_add_u32 {sr(sFlag)}, {sr(sFlag)}, {sr(sT0)}")
    I(f"s_add_u32 {sr(sFlag)}, {sr(sFlag)}, {hex(fl(FL_XN))}")
    I(f"s_add_u32 {sr(sT0)}, {sr(sLn)}, 1")
    put_flag(k, sr(sT0), add=400)
    I(f"s_add_u32 {sr(sLn)}, {sr(sLn)}, 60")
    I(f"s_cmp_lt_u32 {sr(sLn)}, 64")
    k.forget()
    I("s_cbranch_scc1 ln_loop")
    for r, nm in ((R_AT, "at"), (R_R1, "r1"), (R_R2, "r2")):
        I(f"s_cmp_eq_u32 {sr(sRole)}, {r}")
        I(f"s_cbranch_scc1 {nm}_entry")
    I("s_branch all_exit")


def acc_parts(k, A, P, n, ns):
    I = k.I
    for s in range(ns):
        for i in range(n):
            for r in range(4):
                src = P + 4 * (n * s + i) + r
                d = A + 8 * i + 2 * r
                if s == 0:
                    I(f"v_lshlrev_b32 {vr(d)}, 16, {vr(src)}")
                    I(f"v_and_b32 {vr(d + 1)}, 0xffff0000, {vr(src)}")
                else:
                    I(f"v_dot2c_f32_bf16 {vr(d)}, {sr(sC0)}, {vr(src)}")
                    I(f"v_dot2c_f32_bf16 {vr(d + 1)}, {sr(sC1)}, {vr(src)}")


def role_sum(k, last):
    I = k.I
    p = "r2" if last else "r1"
    k.L(f"{p}_entry")
    I(f"s_cmp_eq_u32 {sr(sW)}, 3")
    I("s_cbranch_scc1 all_exit")
    if last:
        srd(k, S_A, 88, 2048 * 1152)
    I(f"s_mov_b32 {sr(sC0)}, 0x3f80")
    I(f"s_mov_b32 {sr(sC1)}, 0x3f800000")
    I(f"s_mov_b32 {sr(sKn)}, 0x3f803f80")
    I(f"s_mul_i32 {sr(sT0)}, {sr(sIdx)}, 3")
    I(f"s_add_u32 {sr(sT0)}, {sr(sT0)}, {sr(sW)}")
    I(f"s_mul_i32 {sr(sC2)}, {sr(sT0)}, 57")
    I(f"s_lshr_b32 {sr(sC2)}, {sr(sC2)}, 9")
    I(f"s_mul_i32 {sr(sT1)}, {sr(sC2)}, 9")
    I(f"s_sub_u32 {sr(sC3)}, {sr(sT0)}, {sr(sT1)}")
    I(f"s_lshl_b32 {sr(sT0)}, {sr(sC3)}, 12")
    I(f"s_lshl_b32 {sr(sT1)}, {sr(sC2)}, 7")
    I(f"s_add_u32 {sr(sT0)}, {sr(sT0)}, {sr(sT1)}")
    I(f"v_add_u32 v3, {sr(sT0)}, {C(0)}")
    I(f"s_lshl_b32 {sr(sT0)}, {sr(sC3)}, 7")
    I(f"s_mul_i32 {sr(sT1)}, {sr(sC2)}, {8 * 1152}")
    I(f"s_add_u32 {sr(sT0)}, {sr(sT0)}, {sr(sT1)}")
    I(f"v_add_u32 v6, {sr(sT0)}, {C(1)}")
    if not last:
        own_flag(k, FL_HN)
        empty(k)
        I(f"s_lshl_b32 {sr(sT0)}, {sr(sC3)}, 8")
        I(f"s_lshl_b32 {sr(sT1)}, {sr(sC2)}, 6")
        I(f"s_add_u32 {sr(sT0)}, {sr(sT0)}, {sr(sT1)}")
        I(f"v_add_u32 v7, {sr(sT0)}, {C(4)}")
        I(f"s_mov_b32 {sr(sM0)}, {hex(WS_S)}")
        I(f"s_mov_b32 s76, 0x01010101")
        I(f"s_mov_b32 s77, 0x01010101")
        for a in range(AHEAD):
            I(f"s_mov_b32 {sr(sT0)}, {hex(WS_H + a * BUFSZ)}")
            st16(k, FF, "v3", sT0, 0)
            I(f"s_mov_b32 {sr(sT0)}, {hex(WS_S + a * 4096)}")
            I(f"buffer_store_dwordx2 {vr(FF, 2)}, v7, {sr(S_WS, 4)}, {sr(sT0)} offen sc1")
        I("s_waitcnt vmcnt(0)")
        put_flag(k, 1, add=201)
    I(f"s_mov_b32 {sr(sPoll)}, {hex(fl(FL_DN if last else FL_WO))}")
    I("s_waitcnt lgkmcnt(0)")
    spin(k, f"{p}_sp", C(3), sr(sPoll), 1, wide=True)
    sRow, sH = sSrc, sDst2
    I(f"s_mov_b32 {sr(sSeg)}, 0")
    I(f"s_mov_b32 {sr(sRow)}, 0")
    I(f"s_mov_b32 {sr(sH)}, {hex(WS_H)}")
    I(f"s_mov_b32 {sr(sDst)}, {hex(WS_DP if last else WS_WP)}")
    P, A = 112, 24
    k.L(f"{p}_loop")
    if not last:
        for u in range(2):
            I(f"buffer_load_dwordx2 {vr(8 + 2 * u, 2)}, v6, {sr(S_X, 4)}, {sr(sRow)} offen offset:{16 * u}")
    k.L(f"{p}_again")
    if last:
        I(f"buffer_load_dwordx4 v[8:11], v3, {sr(S_WS, 4)}, {sr(sH)} offen sc1")
    for s_ in range(8):
        if s_:
            I(f"s_add_u32 {sr(sT0)}, {sr(sDst)}, {s_ * BUFSZ}")
        I(f"buffer_load_dwordx4 {vr(P + 4 * s_, 4)}, v3, {sr(S_WS, 4)}, {sr(sT0 if s_ else sDst)} offen sc1")
    I(f"s_sub_u32 {sr(sBud)}, {sr(sBud)}, 1")
    I("s_cbranch_scc1 all_exit")
    unpack(k, 60, 8, 4)
    I(f"v_max3_u32 v20, {vr(P)}, {vr(P + 4)}, {vr(8 if last else P)}")
    for s_ in range(1, 4):
        I(f"v_max3_u32 v20, v20, {vr(P + 8 * s_)}, {vr(P + 8 * s_ + 4)}")
    I(f"v_cmp_eq_u32 vcc, -1, v20")
    I(f"s_cbranch_vccnz {p}_again")
    stamp(k, sr(sSeg), add=131)
    acc_parts(k, A, P, 1, 8)
    for r in range(4):
        I(f"v_cvt_pk_bf16_f32 {vr(48 + r)}, {vr(A + 2 * r)}, {vr(A + 2 * r + 1)}")
    unpack(k, A, 48, 4)
    for r in range(8):
        I(f"v_add_f32 {vr(A + r)}, {vr(A + r)}, {vr(60 + r)}")
    for r in range(4):
        I(f"v_cvt_pk_bf16_f32 {vr(48 + r)}, {vr(A + 2 * r)}, {vr(A + 2 * r + 1)}")
    if last:
        I(f"buffer_store_dwordx2 v[48:49], v6, {sr(S_A, 4)}, {sr(sRow)} offen")
        I(f"buffer_store_dwordx2 v[50:51], v6, {sr(S_A, 4)}, {sr(sRow)} offen offset:16")
    else:
        st16(k, 48, "v3", sH, 0)
        I(f"v_mov_b64 v[52:53], 0")
        for r in range(4):
            I(f"v_dot2c_f32_bf16 v52, {sr(sKn)}, {vr(48 + r)}")
            I(f"v_dot2c_f32_bf16 v53, {vr(48 + r)}, {vr(48 + r)}")
        a_, b_ = 52, 54
        for m in ("quad_perm:[1,0,3,2]", "quad_perm:[2,3,0,1]", "row_half_mirror"):
            for e in range(2):
                I(f"v_add_f32_dpp {vr(b_ + e)}, {vr(a_ + e)}, {vr(a_ + e)} {m} row_mask:0xf bank_mask:0xf")
            a_, b_ = b_, a_
        I(f"s_add_u32 {sr(sT0)}, {sr(sH)}, {AHEAD * BUFSZ}")
        I(f"s_add_u32 {sr(sT1)}, {sr(sM0)}, {AHEAD * 4096}")
        I("s_mov_b64 exec, s[76:77]")
        I(f"buffer_store_dwordx2 {vr(a_, 2)}, v7, {sr(S_WS, 4)}, {sr(sM0)} offen sc1")
        I(f"buffer_store_dwordx2 {vr(FF, 2)}, v7, {sr(S_WS, 4)}, {sr(sT1)} offen sc1")
        I("s_mov_b64 exec, -1")
        st16(k, FF, "v3", sT0, 0)
        I(f"s_add_u32 {sr(sM0)}, {sr(sM0)}, 4096")
    I(f"s_add_u32 {sr(sSeg)}, {sr(sSeg)}, 1")
    I(f"s_add_u32 {sr(sRow)}, {sr(sRow)}, {BUFSZ}")
    I(f"s_add_u32 {sr(sH)}, {sr(sH)}, {BUFSZ}")
    I(f"s_add_u32 {sr(sDst)}, {sr(sDst)}, {8 * BUFSZ}")
    stamp(k, sr(sSeg))
    I(f"s_cmp_lt_u32 {sr(sSeg)}, 64")
    k.forget()
    I(f"s_cbranch_scc1 {p}_loop")
    I("s_branch all_exit")


def role_at(k):
    I = k.I
    k.L("at_entry")
    consts(k, TROW[R_AT])
    own_flag(k, FL_O)
    empty(k)
    Q, KK, V, X, VM, S, SM, O, PK = 8, 24, 56, 112, 128, 136, 144, 152, 184
    sQ, sK, sKM = sSrc, sM0, sC3
    I(f"s_and_b32 {sr(sC1)}, {sr(sW)}, 1")
    I(f"s_lshr_b32 {sr(sSeg)}, {sr(sW)}, 1")
    I(f"s_lshl_b32 {sr(sT1)}, {sr(sIdx)}, 13")
    I(f"s_lshl_b32 {sr(sT0)}, {sr(sW)}, 11")
    I(f"s_add_u32 {sr(sT0)}, {sr(sT0)}, {sr(sT1)}")
    I(f"s_add_u32 {sr(sT0)}, {sr(sT0)}, {hex(WS_KM)}")
    I(f"s_mov_b32 {sr(sT2)}, 64")
    I("s_waitcnt vmcnt(0)")
    k.L("at_mark")
    st16(k, FF, C(5), sT0, 0)
    I(f"s_add_u32 {sr(sT0)}, {sr(sT0)}, {32 * 8192}")
    I(f"s_sub_u32 {sr(sT2)}, {sr(sT2)}, 1")
    I(f"s_cmp_lg_u32 {sr(sT2)}, 0")
    I("s_cbranch_scc1 at_mark")
    I(f"s_lshl_b32 {sr(sT0)}, {sr(sSeg)}, 18")
    I(f"s_add_u32 {sr(sT1)}, {sr(sT1)}, {sr(sT0)}")
    I(f"s_add_u32 {sr(sKM)}, {sr(sT1)}, {hex(WS_KM)}")
    I(f"s_lshl_b32 {sr(sK)}, {sr(sT1)}, 1")
    I(f"s_lshl_b32 {sr(sT0)}, {sr(sC1)}, 12")
    I(f"s_add_u32 {sr(sQ)}, {sr(sT1)}, {sr(sT0)}")
    I(f"s_add_u32 {sr(sQ)}, {sr(sQ)}, {hex(WS_Q)}")
    I(f"s_lshl_b32 {sr(sT0)}, {sr(sC1)}, 8")
    I(f"s_add_u32 {sr(sDst)}, {sr(sT1)}, {sr(sT0)}")
    I(f"s_add_u32 {sr(sDst)}, {sr(sDst)}, {hex(WS_O)}")
    I(f"s_mov_b32 {sr(sC0)}, {f32(128 ** -0.5 * 1.4426950408889634)}")
    for u in range(1, 4):
        I(f"v_add_u32 {vr(2 + u)}, {4096 * u}, {vr(vL)}")
    I(f"v_add_u32 {C(6)}, 4096, {C(0)}")
    I(f"v_add_u32 {C(7)}, 4096, {C(4)}")

    def st_o(reg, sd):
        for u in range(4):
            st16(k, reg if reg == FF else reg + 4 * u, C(6 if u // 2 else 0), sd, (u % 2) * 2048)

    for a in range(0, AHEAD, 2):
        I(f"s_add_u32 {sr(sT0)}, {sr(sDst)}, {a * 256 * 1024}")
        st_o(FF, sT0)
    I(f"s_lshl_b32 {sr(sT0)}, {sr(sC1)}, 4")
    I(f"v_add_u32 {C(1)}, {sr(sT0)}, {C(1)}")
    for j in range(8):
        I(f"v_cmp_le_i32 {sr(sMask + 2 * j, 2)}, {8 * (j // 4) + j % 4}, {C(1)}")
    I(f"s_sub_u32 {sr(sT0)}, {FL_Q - FL_KV}, {sr(sIdx)}")
    I(f"s_lshr_b32 {sr(sT1)}, {sr(sIdx)}, 1")
    I(f"s_add_u32 {sr(sT0)}, {sr(sT0)}, {sr(sT1)}")
    I(f"s_lshl_b32 {sr(sT0)}, {sr(sT0)}, 7")
    I(f"v_mul_lo_u32 {C(3)}, {C(3)}, {sr(sT0)}")
    I(f"v_add_u32 {C(3)}, {C(3)}, {C(2)}")
    I(f"s_lshl_b32 {sr(sT0)}, {sr(sIdx)}, 7")
    I(f"s_add_u32 {sr(sPoll)}, {sr(sT0)}, {hex(fl(FL_KV))}")
    I(f"v_mov_b32 v6, {f32(-1e30)}")
    I(f"s_mov_b32 {sr(sKn)}, 0")
    I(f"s_mov_b32 s76, 0xff00ff00")
    I(f"s_mov_b32 s77, 0xff00ff00")
    I(f"v_mov_b64 {vr(X, 2)}, 0")
    for r in range(2, 16, 2):
        I(f"v_mov_b64 {vr(X + r, 2)}, 0")
    I("s_waitcnt vmcnt(0)")
    put_flag(k, 1, add=201)
    off = lambda u: vr(vL) if u == 0 else vr(2 + u)

    def known(lab, need):
        I(f"s_cmp_ge_u32 {sr(sKn)}, {need}")
        I(f"s_cbranch_scc1 {lab}_ok")
        spin(k, lab, C(3), sr(sPoll), need)
        r = red8(k, "v_min_u32", 96, 97)
        I(f"v_readfirstlane_b32 {sr(sKn)}, {vr(r)}")
        k.L(f"{lab}_ok")

    def ld_qk():
        for u in range(4):
            I(f"buffer_load_dwordx4 {vr(Q + 4 * u, 4)}, {vr(vL)}, {sr(S_WS, 4)}, {sr(sQ)} offen offset:{u * 1024} sc1")
            for kt in range(2):
                I(f"buffer_load_dwordx4 {vr(KK + 8 * u + 4 * kt, 4)}, {off(u)}, {sr(S_WS, 4)}, {sr(sK)} offen "
                  f"offset:{kt * 1024} sc1")

    def ld_v():
        for u in range(4):
            for et in range(2):
                I(f"buffer_load_dwordx4 {vr(V + 8 * u + 4 * et, 4)}, {off(u)}, {sr(S_WS, 4)}, {sr(sK)} offen "
                  f"offset:{2048 + et * 1024} sc1")

    I(f"s_add_u32 {sr(sNeed)}, {sr(sSeg)}, 1")
    known("at_k0", sr(sNeed))
    ld_qk()
    ld_v()
    I("s_waitcnt vmcnt(0)")
    k.L("at_loop")
    k.forget()
    for u in range(4):
        I(f"s_waitcnt vmcnt({12 + 3 * (3 - u)})")
        for kt in range(2):
            I(f"v_mfma_f32_16x16x32_bf16 {vr(S + 4 * kt, 4)}, {vr(KK + 8 * u + 4 * kt, 4)}, {vr(Q + 4 * u, 4)}, "
              f"{vr(S + 4 * kt, 4) if u else 0}")
    I(f"s_add_u32 {sr(sQ)}, {sr(sQ)}, {2 * 32 * 8192}")
    I(f"s_add_u32 {sr(sK)}, {sr(sK)}, {2 * 32 * 16384}")
    for j in range(8):
        I(f"v_cndmask_b32_e64 {vr(S + j)}, v6, {vr(S + j)}, {sr(sMask + 2 * j, 2)}")
    I(f"v_max3_f32 v2, {vr(S)}, {vr(S + 1)}, {vr(S + 2)}")
    I(f"v_max3_f32 v2, v2, {vr(S + 3)}, {vr(S + 4)}")
    I(f"v_max3_f32 v2, v2, {vr(S + 5)}, {vr(S + 6)}")
    I(f"v_max_f32 v2, v2, {vr(S + 7)}")
    I(f"s_add_u32 {sr(sNeed)}, {sr(sSeg)}, 3")
    I(f"s_min_u32 {sr(sNeed)}, {sr(sNeed)}, 64")
    known("at_k1", sr(sNeed))
    k.L("at_again")
    I("s_mov_b64 exec, s[76:77]")
    for u in range(4):
        I(f"buffer_load_dwordx4 {vr(X + 4 * u, 4)}, {off(u // 2)}, {sr(S_WS, 4)}, {sr(sKM)} offen "
          f"offset:{(u % 2) * 2048} sc1")
    I("s_mov_b64 exec, -1")
    for u in range(4):
        I(f"buffer_load_dwordx2 {vr(VM + 2 * u, 2)}, {C(7 if u // 2 else 4)}, {sr(S_WS, 4)}, {sr(sKM)} offen "
          f"offset:{1024 + (u % 2) * 2048} sc1")
    I(f"s_sub_u32 {sr(sBud)}, {sr(sBud)}, 1")
    I("s_cbranch_scc1 all_exit")
    for u in range(4):
        I(f"v_mfma_f32_16x16x32_bf16 {vr(SM, 4)}, {vr(X + 4 * u, 4)}, {vr(Q + 4 * u, 4)}, {vr(SM, 4) if u else 0}")
    I(f"v_max3_u32 v92, {vr(X)}, {vr(X + 4)}, {vr(X + 8)}")
    I(f"v_max3_u32 v92, v92, {vr(X + 12)}, {vr(VM)}")
    I(f"v_max3_u32 v92, v92, {vr(VM + 2)}, {vr(VM + 4)}")
    I(f"v_max_u32 v92, v92, {vr(VM + 6)}")
    I(f"v_cmp_eq_u32 vcc, -1, v92")
    I(f"s_cbranch_vccnz at_again")
    stamp(k, sr(sSeg), add=131)
    I(f"s_add_u32 {sr(sKM)}, {sr(sKM)}, {2 * 32 * 8192}")
    I("s_mov_b32 exec_hi, 0")
    for r in range(4):
        I(f"v_mov_b32 {vr(SM + r)}, v6")
    I("s_mov_b32 exec_hi, -1")
    I(f"v_max3_f32 v2, v2, {vr(SM)}, {vr(SM + 1)}")
    I(f"v_max3_f32 v92, v2, {vr(SM + 2)}, {vr(SM + 3)}")
    I(f"v_max3_f32 v93, v2, {vr(SM + 2)}, {vr(SM + 3)}")
    I("v_permlane16_swap_b32 v92, v93")
    I("v_max_f32 v2, v92, v93")
    I("v_max_f32 v92, v92, v93")
    I("v_permlane32_swap_b32 v2, v92")
    I("v_max_f32 v2, v2, v92")
    I(f"v_mul_f32 v2, {sr(sC0)}, v2")
    for r in range(12):
        I(f"v_fma_f32 {vr(S + r)}, {vr(S + r)}, {sr(sC0)}, -v2")
    for r in range(12):
        I(f"v_exp_f32 {vr(S + r)}, {vr(S + r)}")
    for r in range(4):
        I(f"v_cvt_pk_bf16_f32 {vr(148 + r)}, {vr(S + 2 * r)}, {vr(S + 2 * r + 1)}")
    I(f"v_cvt_pk_bf16_f32 v92, {vr(SM)}, {vr(SM + 2)}")
    I(f"v_cvt_pk_bf16_f32 v94, {vr(SM + 1)}, {vr(SM + 3)}")
    Z = 88
    red = [f"v_add_f32 {vr(Z + i)}, {vr(S + i)}, {vr(S + 4 + i)}" for i in range(4)]
    red += [f"v_add_f32 {vr(Z + i)}, {vr(Z + i)}, {vr(S + 8 + i)}" for i in range(4)]
    red += [f"v_add_f32 {vr(Z)}, {vr(Z)}, {vr(Z + 1)}", f"v_add_f32 {vr(Z + 2)}, {vr(Z + 2)}, {vr(Z + 3)}",
            f"v_add_f32 {vr(Z + 1)}, {vr(Z)}, {vr(Z + 2)}", f"v_add_f32 {vr(Z)}, {vr(Z)}, {vr(Z + 2)}",
            f"v_permlane16_swap_b32 {vr(Z)}, {vr(Z + 1)}", f"v_add_f32 {vr(Z + 2)}, {vr(Z)}, {vr(Z + 1)}",
            f"v_add_f32 {vr(Z)}, {vr(Z)}, {vr(Z + 1)}", f"v_permlane32_swap_b32 {vr(Z)}, {vr(Z + 2)}",
            f"v_add_f32 {vr(Z)}, {vr(Z)}, {vr(Z + 2)}", f"v_rcp_f32 {vr(Z)}, {vr(Z)}"]
    red = ["v_permlane32_swap_b32 v92, v94", "v_mov_b32 v95, 0", "v_mov_b32 v93, v94", "v_mov_b32 v92, 0"] + red
    for u in range(4):
        for et in range(2):
            I(f"v_mfma_f32_16x16x32_bf16 {vr(O + 8 * u + 4 * et, 4)}, {vr(V + 8 * u + 4 * et, 4)}, {vr(148, 4)}, 0")
            for _ in range(2):
                I(red.pop(0))
    for u in range(4):
        for et in range(2):
            I(f"v_mfma_f32_16x16x16_bf16 {vr(O + 8 * u + 4 * et, 4)}, {vr(VM + 2 * u, 2)}, "
              f"{vr(94 - 2 * et, 2)}, {vr(O + 8 * u + 4 * et, 4)}")
            if red:
                I(red.pop(0))
    for u in range(4):
        for r in range(0, 8, 2):
            I(f"v_pk_mul_f32 {vr(O + 8 * u + r, 2)}, {vr(O + 8 * u + r, 2)}, {vr(Z, 2)} op_sel_hi:[1,0]")
        for r in range(4):
            I(f"v_cvt_pk_bf16_f32 {vr(PK + 4 * u + r)}, {vr(O + 8 * u + 2 * r)}, {vr(O + 8 * u + 2 * r + 1)}")
        st16(k, PK + 4 * u, C(6 if u // 2 else 0), sDst, (u % 2) * 2048)
    I(f"s_add_u32 {sr(sSeg)}, {sr(sSeg)}, 2")
    I(f"s_sub_u32 {sr(sT1)}, {sr(sSeg)}, 1")
    stamp(k, sr(sT1))
    I(f"s_cmp_ge_u32 {sr(sSeg)}, 64")
    I("s_cbranch_scc1 all_exit")
    ld_qk()
    ld_v()
    I(f"s_add_u32 {sr(sT0)}, {sr(sDst)}, {AHEAD * 256 * 1024}")
    st_o(FF, sT0)
    I(f"s_add_u32 {sr(sDst)}, {sr(sDst)}, {2 * 256 * 1024}")
    I("s_branch at_loop")


def all_roles(k):
    role_proj(k, False)
    role_proj(k, True)
    role_gu(k)
    role_red(k, False)
    role_red(k, True)
    role_ln(k)
    role_sum(k, False)
    role_sum(k, True)
    role_at(k)
```

```python
from gen import K, vr, ar, sr
from lay import *

R_CH, R_KV, R_Q, R_AT, R_WO, R_R1, R_GU, R_DN, R_R2, R_NONE = range(10)
TROW = {R_KV: 0, R_Q: 1, R_GU: 2, R_WO: 3, R_DN: 4, R_AT: 5, R_R1: 6, R_R2: 6, R_NONE: 6}

S_WS, S_A, S_B, S_X = 4, 8, 12, 16
S_DBG = 24
sW, sIdx, sSeg, sNeed, sSrc, sDst, sFlag, sPoll, sBud, sM0, sT0, sT1, sT2, sT3, sIss, sLn, sRole, sKn, sW4k = range(26, 45)
sDst2, sC0, sC1, sC2, sC3 = range(45, 50)
sMask = 60
vL = 0
C = lambda i: vr(100 + i)
BUFSZ = 36864
OPT = {}


def f32(x):
    return hex(int(np.float32(x).view(np.uint32)))


def role_map():
    m = [None] * 256
    groups = [(R_WO, g) for g in range(8)] + [(R_DN, g) for g in range(8)]
    order = [groups[(i // 2) + 8 * (i % 2)] for i in range(16)]
    rest = [(R_KV, i) for i in range(32)] + [(R_Q, i) for i in range(16)] + [(R_AT, i) for i in range(32)] + \
           [(R_GU, i) for i in range(36)] + [(R_R1, i) for i in range(12)] + [(R_R2, i) for i in range(12)] + \
           [(R_NONE, i) for i in range(4)]
    gi = 0
    for base, xs in ((0, range(1, 8)), (5, range(1, 8)), (10, (1, 2))):
        for x in xs:
            r, g = order[gi]
            gi += 1
            for j in range(5):
                m[(base + j) * 8 + x] = (r, g * 5 + j)
    for i in range(32):
        m[i * 8] = (R_CH, i)
    free = [wg for wg in range(256) if m[wg] is None]
    assert len(free) == len(rest)
    for wg, e in zip(free, rest):
        m[wg] = e
    ln = 0
    out = []
    lnidx = {}
    for r in (R_NONE, R_R2, R_R1, R_AT):
        for wg in range(256):
            if m[wg][0] == r:
                lnidx[wg] = ln
                ln += 1
    assert ln == 60
    for wg in range(256):
        r, i = m[wg]
        out.append(r | i << 8 | lnidx.get(wg, 255) << 16)
    return out


def lane_table():
    T = np.zeros((7, 64, 8), np.uint32)
    for l in range(64):
        q, p = l // 16, l % 16
        g, n16 = l // 16, l % 16
        r, c4 = n16 // 4, n16 % 4
        n, hi = l % 32, l // 32
        dm = lambda S: q * S + (p ^ (4 * q)) * 16
        tr = lambda HS: ((g // 2) * HS + r) * 256 + (4 * r + 2 * (g % 2) + c4 // 2) * 16 + (c4 % 2) * 8
        vk = ((n >> 3) & 1) * 1024 + hi * 256 + ((n >> 4) * 8 + (n & 7)) * 16
        vv = 2048 + (n // 16) * 1024 + hi * 256 + (n % 16) * 16
        vq = (n // 16) * 4096 + hi * 256 + (n % 16) * 16
        T[0, l, :6] = [dm(8192), tr(8), vk, vv, (l % 4) * 4, l * 16 if n16 >= 8 else 1024 + (g * 8 + n16) * 16]
        T[1, l, :5] = [dm(8192), tr(8), vq, vq + 8192, (l % 4) * 4]
        T[2, l, :5] = [dm(9216), tr(4), l * 16, 0, ((l % 36) // 3) * 128 + (l % 3) * 4]
        T[3, l, :5] = [dm(1152), tr(4), l * 16, 0, ((l % 16) // 4) * 128 + (l % 4) * 4]
        T[4, l, :5] = [dm(1152), tr(4), l * 16, 0, l % 18]
        T[5, l, :6] = [g * 512 + n16 * 16, (n16 - 16 * (g // 2) - 4 * (g % 2)) & 0xffffffff, (l % 4) * 4,
                       1 if l % 8 >= 4 else 0, l * 8, l * 16 if n16 >= 8 else 1024 + (g * 8 + n16) * 16]
        nn, pp = l // 8, l % 8
        T[6, l, :5] = [pp * 512 + nn * 16, nn * 1152 + (pp // 2) * 32 + (pp % 2) * 8, nn * 1152 + pp * 16,
                       (l % 40) * 128, nn * 8]
    return T


def tables_text():
    s = ".p2align 8\n.type role_tbl,@object\nrole_tbl:\n"
    rm = role_map()
    for i in range(0, 256, 8):
        s += ".long " + ",".join(hex(x) for x in rm[i:i + 8]) + "\n"
    T = lane_table()
    T2 = T.reshape(7, 64, 2, 4).transpose(0, 2, 1, 3).reshape(-1, 8)
    for row in T2:
        s += ".long " + ",".join(hex(int(x)) for x in row) + "\n"
    s += f".size role_tbl, {1024 + T.size * 4}\n"
    return s


def entry(k):
    I = k.I
    I("s_cmp_ge_u32 s2, 256")
    I("s_cbranch_scc1 all_exit")
    I("s_and_b32 s3, s2, 7")
    I("s_cmp_eq_u32 s3, 0")
    I("s_cbranch_scc1 chain_entry")
    I("s_getpc_b64 s[64:65]")
    k.L("role_pc")
    I("s_add_u32 s64, s64, role_tbl-role_pc")
    I("s_addc_u32 s65, s65, 0")
    I("s_lshl_b32 s3, s2, 2")
    I(f"s_load_dword {sr(sRole)}, s[64:65], s3")
    I(f"s_load_dwordx2 {sr(S_WS, 2)}, s[0:1], 104")
    I(f"s_load_dwordx2 {sr(S_DBG, 2)}, s[0:1], 96")
    I(f"s_load_dwordx2 {sr(S_X, 2)}, s[0:1], 0")
    I("v_lshrrev_b32 v8, 6, v0")
    I(f"v_readfirstlane_b32 {sr(sW)}, v8")
    I("v_and_b32 v0, 63, v0")
    I(f"v_lshlrev_b32 {vr(vL)}, 4, v0")
    I(f"s_mov_b32 {sr(S_WS + 2)}, {hex(WS_BYTES)}")
    I(f"s_mov_b32 {sr(S_WS + 3)}, 0x00020000")
    I(f"s_mov_b32 {sr(S_X + 2)}, {2048 * 1152}")
    I(f"s_mov_b32 {sr(S_X + 3)}, 0x00020000")
    I(f"s_mov_b32 {sr(sBud)}, 0x40000")
    I(f"s_lshl_b32 {sr(sW4k)}, {sr(sW)}, 12")
    I("s_waitcnt lgkmcnt(0)")
    I(f"s_bfe_u32 {sr(sIdx)}, {sr(sRole)}, 0x80008")
    I(f"s_bfe_u32 {sr(sLn)}, {sr(sRole)}, 0x80010")
    I(f"s_and_b32 {sr(sRole)}, {sr(sRole)}, 255")
    stamp_base(k, sW)
    stamp(k, 200)
    for r, nm in ((R_KV, "kv"), (R_Q, "q"), (R_GU, "gu"), (R_WO, "wo"), (R_DN, "dn")):
        I(f"s_cmp_eq_u32 {sr(sRole)}, {r}")
        I(f"s_cbranch_scc1 {nm}_entry")
    I("s_branch ln_entry")


def consts(k, row):
    I = k.I
    I(f"v_add_u32 v8, {1024 + row * 2048}, {vr(vL)}")
    I(f"global_load_dwordx4 {vr(100, 4)}, v8, s[64:65]")
    I(f"global_load_dwordx4 {vr(104, 4)}, v8, s[64:65] offset:1024")


def wait_init(k, p):
    I = k.I
    I("v_mov_b32 v8, 0")
    k.L(f"{p}_init")
    I(f"global_load_dword v9, v8, {sr(S_DBG, 2)} offset:8 sc1")
    I(f"s_sub_u32 {sr(sBud)}, {sr(sBud)}, 1")
    I("s_cbranch_scc1 all_exit")
    I("s_waitcnt vmcnt(0)")
    I(f"v_readfirstlane_b32 {sr(sT0)}, v9")
    I(f"s_cmp_eq_u32 {sr(sT0)}, 0")
    I(f"s_cbranch_scc1 {p}_init")


def stamp(k, val, t0=97, t1=99, add=0, src=None):
    if not OPT.get("ts"):
        return
    I = k.I
    if src is None:
        I("s_memrealtime s[52:53]")
    I(f"v_mov_b32 {vr(t1)}, {val}")
    I(f"v_lshlrev_b32 {vr(t1)}, 2, {vr(t1)}")
    I("s_waitcnt lgkmcnt(0)")
    I(f"v_mov_b32 {vr(t0)}, s{src or 52}")
    I(f"s_mov_b64 exec, 1")
    I(f"buffer_store_dword {vr(t0)}, {vr(t1)}, {sr(S_WS, 4)}, s54 offen offset:{4 * add}")
    I(f"s_mov_b64 exec, -1")


def stamp_base(k, sw):
    if not OPT.get("ts"):
        return
    k.I(f"s_lshl_b32 s54, s2, 13")
    k.I(f"s_lshl_b32 s55, {sr(sw)}, 11")
    k.I(f"s_add_u32 s54, s54, s55")
    k.I(f"s_add_u32 s54, s54, {hex(WS_TS)}")


def put_flag(k, val, tmp=98, add=0):
    I = k.I
    stamp(k, val, add=add)
    I(f"v_mov_b32 {vr(tmp)}, {val}")
    I(f"s_mov_b64 exec, 1")
    I(f"buffer_store_dword {vr(tmp)}, off, {sr(S_WS, 4)}, {sr(sFlag)} sc1")
    I(f"s_mov_b64 exec, -1")


def spin(k, lab, voff, soff, need, wide=False, dst=96):
    I = k.I
    k.L(lab)
    if wide:
        I(f"buffer_load_dwordx4 {vr(92, 4)}, {voff}, {sr(S_WS, 4)}, {soff} offen sc1")
    else:
        I(f"buffer_load_dword {vr(dst)}, {voff}, {sr(S_WS, 4)}, {soff} offen sc1")
    I(f"s_sub_u32 {sr(sBud)}, {sr(sBud)}, 1")
    I("s_cbranch_scc1 all_exit")
    I("s_waitcnt vmcnt(0)")
    if wide:
        I(f"v_min_u32 {vr(92)}, {vr(92)}, {vr(93)}")
        I(f"v_min3_u32 {vr(dst)}, {vr(92)}, {vr(94)}, {vr(95)}")
    I(f"v_cmp_gt_u32 vcc, {need}, {vr(dst)}")
    I(f"s_cbranch_vccnz {lab}")


def wreg(t, ks, off=0, n=4):
    i = (36 * t + ks) * 4
    if i < 256:
        return ar(i + off, n)
    return vr(112 + i - 256 + off, n)


ROWMAP = {
    "nat": lambda t, half: 16 * t + 4 * half,
    "std": lambda t, half: 16 * t + 8 * half,
    "o": lambda t, half: 32 * (t // 2) + 16 * half + 8 * (t % 2),
}


def load_weights(k, mats, nslab, S, perm):
    I = k.I
    N = len(mats) * nslab

    def dma(n):
        d, base = mats[n // nslab]
        sl = n % nslab
        for i in range(4):
            I(f"s_add_u32 {sr(sT0)}, {sr(base)}, {(64 * sl + 4 * i) * S}")
            I(f"s_add_u32 m0, {sr(sW4k)}, {(n % 10) * 16384 + i * 1024}")
            I(f"buffer_load_dwordx4 {C(0)}, {sr(d, 4)}, {sr(sT0)} offen nt lds")
        k.tag(f"slab{n}")

    for n in range(min(9, N)):
        dma(n)
    I(f"s_lshl_b32 {sr(sT0)}, {sr(sW)}, 6")
    I(f"v_xor_b32 {C(1)}, {sr(sT0)}, {C(1)}")
    for n in range(N):
        k.wait_tag(f"slab{n}")
        I("s_waitcnt lgkmcnt(0)")
        I("s_barrier")
        if n + 9 < N:
            dma(n + 9)
        I(f"v_add_u32 v8, {(n % 10) * 16384}, {C(1)}")
        for t in range(4):
            for half in range(2):
                I(f"ds_read_b64_tr_b16 {wreg(n // nslab, 4 * (n % nslab) + t, 2 * half, 2)}, v8 "
                  f"offset:{ROWMAP[perm](t, half) * 256}")
    I("s_waitcnt lgkmcnt(0)")
    I("s_barrier")


ACC = [8, 24]
BR = 40
EP = 72
vRd = 1


def gemm(k, p, ntile, per, swap, epilogue, src_step, poll_step, extra=None):
    I = k.I
    nk = 4 * sum(per)
    start = [0, 4 * per[0], 4 * (per[0] + per[1])]
    LA = 6 if ntile == 1 else 3

    def dma_all():
        for c in range(3):
            if c == 0:
                I(f"s_mov_b32 m0, {sr(sM0)}")
                so = sSrc
            else:
                d = start[c] * 1024
                if per[c] != per[0]:
                    I(f"s_mul_i32 {sr(sT1)}, {sr(sW)}, {(per[0] - per[c]) * 1024}")
                    I(f"s_sub_u32 {sr(sT1)}, {d}, {sr(sT1)}")
                    I(f"s_add_u32 m0, {sr(sM0)}, {sr(sT1)}")
                    I(f"s_add_u32 {sr(sT0)}, {sr(sSrc)}, {sr(sT1)}")
                else:
                    I(f"s_add_u32 m0, {sr(sM0)}, {d}")
                    I(f"s_add_u32 {sr(sT0)}, {sr(sSrc)}, {d}")
                so = sT0
            for j in range(per[c]):
                I(f"buffer_load_dwordx4 {vr(vL)}, {sr(S_WS, 4)}, {sr(so)} offen offset:{j * 1024} sc1 lds")
        I(f"s_add_u32 {sr(sSrc)}, {sr(sSrc)}, {src_step}")
        I(f"s_sub_u32 {sr(sM0)}, {sr(sC0)}, {sr(sM0)}")

    NS = epilogue(None)
    I(f"s_mul_i32 {sr(sT0)}, {sr(sW)}, {per[0] * 1024}")
    I(f"s_add_u32 {sr(sSrc)}, {sr(sSrc)}, {sr(sT0)}")
    I(f"s_mov_b32 {sr(sM0)}, {sr(sT0)}")
    I(f"s_lshl_b32 {sr(sC0)}, {sr(sT0)}, 1")
    I(f"s_add_u32 {sr(sC0)}, {sr(sC0)}, {BUFSZ}")
    I(f"v_mov_b32 {vr(vRd)}, {vr(vL)}")
    I(f"s_mov_b32 {sr(sSeg)}, 0")
    I(f"s_mov_b32 {sr(sNeed)}, 1")
    stamp(k, 201)
    wait_init(k, p)
    I(f"s_branch {p}_spin")
    k.L(f"{p}_loop")
    k.forget()
    I(f"s_waitcnt vmcnt({per[1] + per[2] + NS})")
    I("s_barrier")
    if OPT.get("ts"):
        I("s_memrealtime s[56:57]")
    I(f"buffer_load_dword {vr(96)}, {C(4)}, {sr(S_WS, 4)}, {sr(sPoll)} offen sc1")
    k.forget()

    def rd(t):
        if t == start[1]:
            I(f"s_waitcnt vmcnt({per[2] + NS + 1})")
            I("s_barrier")
        if t == start[2]:
            I(f"s_waitcnt vmcnt(0)")
            I("s_barrier")
            put_flag(k, sr(sSeg))
            I(f"v_cmp_gt_u32 vcc, {sr(sNeed)}, {vr(96)}")
            I(f"s_mov_b32 {sr(sIss)}, 0")
            I(f"s_cbranch_vccnz {p}_late")
            I(f"s_cmp_eq_u32 {sr(sSeg)}, 63")
            I(f"s_cbranch_scc1 {p}_late")
            dma_all()
            I(f"s_mov_b32 {sr(sIss)}, 1")
            k.L(f"{p}_late")
        I(f"ds_read_b128 {vr(BR + 4 * (t % 8), 4)}, {vr(vRd)} offset:{t * 1024}")

    for t in range(LA):
        rd(t)
    for t in range(nk):
        b = vr(BR + 4 * (t % 8), 4)
        for j in range(ntile):
            a = vr(ACC[j], 16)
            x, y = (b, wreg(j, t)) if swap[j] else (wreg(j, t), b)
            I(f"v_mfma_f32_32x32x16_bf16 {a}, {x}, {y}, {a if t else 0}")
            if j == 0 and t + LA < nk:
                rd(t + LA)
    I(f"v_xor_b32 {vr(vRd)}, {vr(2)}, {vr(vRd)}")
    epilogue(k)
    if OPT.get("ts"):
        I("s_memrealtime s[58:59]")
    I(f"s_add_u32 {sr(sSeg)}, {sr(sSeg)}, 1")
    I(f"s_add_u32 {sr(sNeed)}, {sr(sNeed)}, 1")
    poll_step(k)
    I(f"s_cmp_eq_u32 {sr(sIss)}, 1")
    I(f"s_cbranch_scc1 {p}_loop")
    I("s_waitcnt vmcnt(0)")
    put_flag(k, sr(sSeg), add=65)
    stamp(k, sr(sSeg), add=260, src=56)
    stamp(k, sr(sSeg), add=330, src=58)
    I(f"s_cmp_eq_u32 {sr(sSeg)}, 64")
    I("s_cbranch_scc1 all_exit")
    I(f"s_sub_u32 {sr(sNeed)}, {sr(sNeed)}, 1")
    poll_step(k, back=True)
    k.L(f"{p}_spin")
    spin(k, f"{p}_sp", C(4), sr(sPoll), sr(sNeed))
    stamp(k, sr(sNeed), add=130)
    dma_all()
    for _ in range(NS):
        I(f"buffer_load_dword {vr(97)}, {C(4)}, {sr(S_WS, 4)}, {sr(sPoll)} offen sc1")
    k.forget()
    I(f"s_add_u32 {sr(sNeed)}, {sr(sNeed)}, 1")
    poll_step(k)
    I(f"s_branch {p}_loop")


FF = 108


def empty(k):
    k.I(f"v_mov_b64 {vr(FF, 2)}, -1")
    k.I(f"v_mov_b64 {vr(FF + 2, 2)}, -1")


def ready(k, p):
    k.I("s_waitcnt vmcnt(0)")
    wait_init(k, p)
    put_flag(k, 1, add=201)


def gemm2(k, p, ntile, nb, epilogue, src_step, side=None):
    I = k.I
    nk = 4 * nb
    LA = 6 if ntile == 1 else 3

    def dma():
        out = []
        for j in range(nb):
            if j == 0:
                out.append(f"s_mov_b32 m0, {sr(sM0)}")
            elif j % 4 == 0:
                out.append(f"s_add_u32 m0, {sr(sM0)}, {j * 1024}")
                out.append(f"s_add_u32 {sr(sT0)}, {sr(sSrc)}, {j * 1024}")
            out.append(f"buffer_load_dwordx4 {vr(vL)}, {sr(S_WS, 4)}, {sr(sSrc if j < 4 else sT0)} offen "
                       f"offset:{(j % 4) * 1024} sc1 lds")
        return out

    NS = epilogue(None)
    I(f"s_mul_i32 {sr(sC1)}, {sr(sW)}, {nb * 1024}")
    I(f"s_add_u32 {sr(sSrc)}, {sr(sSrc)}, {sr(sC1)}")
    I(f"s_mov_b32 {sr(sM0)}, {sr(sC1)}")
    I(f"s_lshl_b32 {sr(sC0)}, {sr(sC1)}, 1")
    I(f"s_add_u32 {sr(sC0)}, {sr(sC0)}, {BUFSZ}")
    I(f"v_mov_b32 {vr(vRd)}, {vr(vL)}")
    I(f"s_mov_b32 {sr(sSeg)}, 0")
    spin(k, f"{p}_sp", C(4), sr(sPoll), 1)
    I(f"v_add_u32 v3, {sr(sC1)}, {vr(vRd)}")
    k.L(f"{p}_again")
    for x in dma() + (side["load"] if side else []):
        I(x)
    I(f"s_sub_u32 {sr(sBud)}, {sr(sBud)}, 1")
    I("s_cbranch_scc1 all_exit")
    I("s_waitcnt vmcnt(0)")
    k.L(f"{p}_loop")
    k.forget()
    I(f"s_waitcnt vmcnt({NS})")
    T = 88
    for j in range(0, nb, 2):
        if j + 1 < nb:
            I(f"ds_read2st64_b32 {vr(T + j, 2)}, v3 offset0:{4 * j} offset1:{4 * j + 4}")
        else:
            I(f"ds_read_b32 {vr(T + j)}, v3 offset:{1024 * j}")
    if side:
        c = side["check"]
        I(f"v_max3_u32 {vr(T + 10)}, {vr(c[0])}, {vr(c[1])}, {vr(c[2])}")
        I(f"v_max3_u32 {vr(T + 10)}, {vr(T + 10)}, {vr(c[3])}, {vr(c[4])}")
    I(f"v_max3_u32 {vr(T)}, {vr(T)}, {vr(T + 1)}, {vr(T + 2)}")
    I(f"v_max3_u32 {vr(T + 3)}, {vr(T + 3)}, {vr(T + 4)}, {vr(T + 5)}")
    I(f"v_max3_u32 {vr(T + 6)}, {vr(T + 6)}, {vr(T + 7)}, {vr(T + nb - 1)}")
    I(f"v_max3_u32 {vr(T)}, {vr(T)}, {vr(T + 3)}, {vr(T + 6)}")
    if side:
        I(f"v_max_u32 {vr(T)}, {vr(T)}, {vr(T + 10)}")
    I(f"v_cmp_eq_u32 vcc, -1, {vr(T)}")
    I(f"s_cbranch_vccnz {p}_again")
    stamp(k, sr(sSeg), add=131)
    I("s_barrier")
    stamp(k, sr(sSeg), add=261)
    rd = lambda t: I(f"ds_read_b128 {vr(BR + 4 * (t % 8), 4)}, {vr(vRd)} offset:{t * 1024}")
    for t in range(LA):
        rd(t)
    I(f"s_add_u32 {sr(sSrc)}, {sr(sSrc)}, {src_step}")
    I(f"s_sub_u32 {sr(sM0)}, {sr(sC0)}, {sr(sM0)}")
    nxt = dma()
    if side:
        nxt = side["use"] + [None] * OPT.get("gl", 0) + nxt + side["load"]
    for t in range(nk):
        b = vr(BR + 4 * (t % 8), 4)
        for j in range(ntile):
            a = vr(ACC[j], 16)
            I(f"v_mfma_f32_32x32x16_bf16 {a}, {wreg(j, t)}, {b}, {a if t else 0}")
            if j == 0 and t + LA < nk:
                rd(t + LA)
            for _ in range(2):
                if nxt:
                    x = nxt.pop(0)
                    if x:
                        I(x)
    I(f"v_xor_b32 {vr(vRd)}, {vr(2)}, {vr(vRd)}")
    I(f"v_add_u32 v3, {sr(sC1)}, {vr(vRd)}")
    epilogue(k)
    I(f"s_add_u32 {sr(sSeg)}, {sr(sSeg)}, 1")
    stamp(k, sr(sSeg))
    I(f"s_cmp_lt_u32 {sr(sSeg)}, 64")
    I(f"s_cbranch_scc1 {p}_loop")
    I("s_branch all_exit")


def cvt16(k, dst, src):
    for r in range(8):
        k.I(f"v_cvt_pk_bf16_f32 {vr(dst + r)}, {vr(src + 2 * r)}, {vr(src + 2 * r + 1)}")


def st16(k, reg, voff, soff, off):
    k.I(f"buffer_store_dwordx4 {vr(reg, 4)}, {voff}, {sr(S_WS, 4)}, {sr(soff)} offen offset:{off} sc1")


def srd(k, s, karg, nbytes):
    k.I(f"s_load_dwordx2 {sr(s, 2)}, s[0:1], {karg}")
    k.I(f"s_mov_b32 {sr(s + 2)}, {nbytes}")
    k.I(f"s_mov_b32 {sr(s + 3)}, 0x00020000")


def rd_toggle(k):
    k.I(f"v_add_u32 v2, {BUFSZ}, {vr(vL)}")
    k.I(f"v_xor_b32 v2, v2, {vr(vL)}")


def own_flag(k, line):
    k.I(f"s_lshl_b32 {sr(sFlag)}, {sr(sIdx)}, 7")
    k.I(f"s_lshl_b32 {sr(sT0)}, {sr(sW)}, 2")
    k.I(f"s_add_u32 {sr(sFlag)}, {sr(sFlag)}, {sr(sT0)}")
    k.I(f"s_add_u32 {sr(sFlag)}, {sr(sFlag)}, {hex(fl(line))}")


def role_proj(k, isq):
    I = k.I
    p = "q" if isq else "kv"
    k.L(f"{p}_entry")
    consts(k, TROW[R_Q if isq else R_KV])
    srd(k, S_A, 16 if isq else 24, 576 * 8192)
    srd(k, S_B, 16 if isq else 32, 576 * 8192)
    I(f"s_lshl_b32 {sr(sC2)}, {sr(sW)}, 17")
    I(f"s_lshl_b32 {sr(sT0)}, {sr(sIdx)}, {9 if isq else 8}")
    I(f"s_add_u32 {sr(sC2)}, {sr(sC2)}, {sr(sT0)}")
    I(f"s_add_u32 {sr(sC3)}, {sr(sC2)}, {256 if isq else 0}")
    I("s_waitcnt vmcnt(0) lgkmcnt(0)")
    load_weights(k, [(S_A, sC2), (S_B, sC3)], 9, 8192, "nat")
    rd_toggle(k)
    own_flag(k, FL_Q if isq else FL_KV)
    I(f"s_mov_b32 {sr(sSrc)}, {hex(WS_XN)}")
    I(f"s_mov_b32 {sr(sPoll)}, {hex(fl(FL_XN))}")
    I(f"s_lshl_b32 {sr(sDst)}, {sr(sIdx)}, 14")
    I(f"s_lshl_b32 {sr(sT0)}, {sr(sW)}, {10 if isq else 12}")
    I(f"s_add_u32 {sr(sDst)}, {sr(sDst)}, {sr(sT0)}")
    I(f"s_add_u32 {sr(sDst)}, {sr(sDst)}, {hex(WS_Q if isq else WS_KV)}")

    if not isq:
        empty(k)
        I(f"s_lshl_b32 {sr(sDst2)}, {sr(sIdx)}, 13")
        I(f"s_lshl_b32 {sr(sT0)}, {sr(sW)}, 11")
        I(f"s_add_u32 {sr(sDst2)}, {sr(sDst2)}, {sr(sT0)}")
        I(f"s_add_u32 {sr(sDst2)}, {sr(sDst2)}, {hex(WS_KM)}")

    def ep(k):
        if k is None:
            return 4 if isq else 6
        if not isq:
            st16(k, FF, vr(vL), sDst2, 0)
            st16(k, FF, vr(vL), sDst2, 1024)
            k.I(f"s_add_u32 {sr(sDst2)}, {sr(sDst2)}, {32 * 8192}")
        for j in range(2):
            cvt16(k, EP + 8 * j, ACC[j])
            st16(k, EP + 8 * j, C(2 + j), sDst, 0)
            st16(k, EP + 8 * j + 4, C(2 + j), sDst, 512)
        k.I(f"s_add_u32 {sr(sDst)}, {sr(sDst)}, {32 * (8192 if isq else 16384)}")

    def ps(k, back=False):
        k.I(f"s_{'sub' if back else 'add'}_u32 {sr(sPoll)}, {sr(sPoll)}, 128")

    gemm(k, p, 2, [3, 3, 3], [False, not isq], ep, BUFSZ, ps)


def out2(k, step):
    st16(k, EP, vr(vL), sDst, 0)
    st16(k, EP + 4, vr(vL), sDst, 1024)
    k.I(f"s_add_u32 {sr(sT0)}, {sr(sDst)}, {AHEAD * step}")
    st16(k, FF, vr(vL), sT0, 0)
    st16(k, FF, vr(vL), sT0, 1024)
    k.I(f"s_add_u32 {sr(sDst)}, {sr(sDst)}, {step}")


def first2(k, step):
    empty(k)
    for a in range(AHEAD):
        k.I(f"s_add_u32 {sr(sT0)}, {sr(sDst)}, {a * step}")
        st16(k, FF, vr(vL), sT0, 0)
        st16(k, FF, vr(vL), sT0, 1024)


def role_gu(k):
    I = k.I
    k.L("gu_entry")
    consts(k, TROW[R_GU])
    srd(k, S_A, 64, 576 * 9216)
    srd(k, S_B, 72, 576 * 9216)
    I(f"s_mul_i32 {sr(sC2)}, {sr(sW)}, {16 * 9216}")
    I(f"s_lshl_b32 {sr(sT0)}, {sr(sIdx)}, 8")
    I(f"s_add_u32 {sr(sC2)}, {sr(sC2)}, {sr(sT0)}")
    I("s_waitcnt vmcnt(0) lgkmcnt(0)")
    load_weights(k, [(S_A, sC2), (S_B, sC2)], 9, 9216, "std")
    rd_toggle(k)
    own_flag(k, FL_GU)
    I(f"s_mov_b32 {sr(sSrc)}, {hex(WS_H)}")
    I(f"s_mov_b32 {sr(sPoll)}, {hex(fl(FL_HN))}")
    I(f"s_lshl_b32 {sr(sDst)}, {sr(sIdx)}, 13")
    I(f"s_lshl_b32 {sr(sT0)}, {sr(sW)}, 11")
    I(f"s_add_u32 {sr(sDst)}, {sr(sDst)}, {sr(sT0)}")
    I(f"s_add_u32 {sr(sDst)}, {sr(sDst)}, {hex(WS_ACT)}")
    first2(k, 288 * 1024)
    CS, ST = 144, 176
    I(f"s_mov_b32 {sr(sC3)}, 0x3f803f80")
    for r in range(4):
        I(f"v_mov_b32 {vr(BR + r)}, {sr(sC3)}")
    for t in range(36):
        for j in range(2):
            a = vr(CS + 16 * j, 16)
            I(f"v_mfma_f32_32x32x16_bf16 {a}, {wreg(j, t)}, {vr(BR, 4)}, {a if t else 0}")
    I(f"v_and_b32 v4, {31 * 16}, {vr(vL)}")
    I(f"v_lshrrev_b32 v4, 1, v4")
    I(f"v_and_b32 v5, {32 * 16}, {vr(vL)}")
    I(f"v_lshl_add_u32 v5, v5, 1, v4")
    sS = sDst2
    I(f"s_mov_b32 {sr(sS)}, {hex(WS_S)}")
    ready(k, "gu")
    m, v = ST + 10, ST + 12
    load = [f"buffer_load_dwordx2 {vr(ST + 2 * j, 2)}, v5, {sr(S_WS, 4)}, {sr(sS)} offen offset:{256 * j} sc1"
            for j in range(4)]
    load.append(f"buffer_load_dwordx2 {vr(ST + 8, 2)}, v4, {sr(S_WS, 4)}, {sr(sS)} offen offset:2048 sc1")
    rn = lambda r: [f"v_cvt_pk_bf16_f32 {vr(r)}, {vr(r)}, {vr(r)}", f"v_lshlrev_b32 {vr(r)}, 16, {vr(r)}"]
    use = [f"v_pk_add_f32 {vr(ST, 2)}, {vr(ST, 2)}, {vr(ST + 2, 2)}",
           f"v_pk_add_f32 {vr(ST + 4, 2)}, {vr(ST + 4, 2)}, {vr(ST + 6, 2)}",
           f"v_pk_add_f32 {vr(ST + 2, 2)}, {vr(ST, 2)}, {vr(ST + 4, 2)}",
           f"v_pk_add_f32 {vr(ST, 2)}, {vr(ST, 2)}, {vr(ST + 4, 2)}",
           f"s_add_u32 {sr(sS)}, {sr(sS)}, 4096",
           f"v_permlane32_swap_b32 {vr(ST)}, {vr(ST + 2)}",
           f"v_permlane32_swap_b32 {vr(ST + 1)}, {vr(ST + 3)}",
           f"v_pk_add_f32 {vr(ST, 2)}, {vr(ST, 2)}, {vr(ST + 8, 2)}",
           f"v_pk_add_f32 {vr(ST, 2)}, {vr(ST, 2)}, {vr(ST + 2, 2)}",
           f"v_mul_f32 {vr(m)}, {f32(1 / 576)}, {vr(ST)}",
           f"v_mul_f32 {vr(v)}, {f32(1 / 576)}, {vr(ST + 1)}",
           f"v_fma_f32 {vr(v)}, -{vr(m)}, {vr(m)}, {vr(v)}",
           f"v_max_f32 {vr(v)}, 0, {vr(v)}"] + rn(m) + rn(v) + \
          [f"v_add_f32 {vr(v)}, {f32(1e-5)}, {vr(v)}"] + rn(v) + [f"v_sqrt_f32 {vr(v)}, {vr(v)}", "s_nop 0"] + rn(v) + \
          [f"v_rcp_f32 {vr(v)}, {vr(v)}", "s_nop 0", f"v_mul_f32 {vr(v)}, {vr(v)}, {vr(v)}"]

    def ep(k):
        if k is None:
            return 4
        for r in range(0, 32, 2):
            I(f"v_pk_fma_f32 {vr(ACC[0] + r, 2)}, {vr(CS + r, 2)}, {vr(m, 2)}, {vr(ACC[0] + r, 2)} op_sel_hi:[1,0,1] "
              f"neg_lo:[0,1,0] neg_hi:[0,1,0]")
        for r in range(0, 16, 2):
            I(f"v_pk_mul_f32 {vr(ACC[0] + r, 2)}, {vr(ACC[0] + r, 2)}, {vr(ACC[1] + r, 2)}")
        for r in range(0, 16, 2):
            I(f"v_pk_mul_f32 {vr(ACC[0] + r, 2)}, {vr(ACC[0] + r, 2)}, {vr(v, 2)} op_sel_hi:[1,0]")
        cvt16(k, EP, ACC[0])
        out2(k, 288 * 1024)

    gemm2(k, "gu", 2, 9, ep, BUFSZ, dict(load=load, use=use, check=[ST + 2 * j for j in range(5)]))


def role_red(k, dn):
    I = k.I
    p = "dn" if dn else "wo"
    rows = 576 if dn else 512
    k.L(f"{p}_entry")
    consts(k, TROW[R_DN if dn else R_WO])
    srd(k, S_A, 80 if dn else 40, 8 * rows * 1152)
    I(f"s_mul_i32 {sr(sC1)}, {sr(sIdx)}, 52")
    I(f"s_lshr_b32 {sr(sC1)}, {sr(sC1)}, 8")
    I(f"s_mul_i32 {sr(sT0)}, {sr(sC1)}, 5")
    I(f"s_sub_u32 {sr(sC3)}, {sr(sIdx)}, {sr(sT0)}")
    I(f"s_mul_i32 {sr(sC2)}, {sr(sC1)}, {rows * 1152}")
    I(f"s_mul_i32 {sr(sT0)}, {sr(sW)}, {16 * 1152}")
    I(f"s_add_u32 {sr(sC2)}, {sr(sC2)}, {sr(sT0)}")
    I(f"s_lshl_b32 {sr(sT0)}, {sr(sC3)}, 8")
    I(f"s_add_u32 {sr(sC2)}, {sr(sC2)}, {sr(sT0)}")
    I("s_waitcnt vmcnt(0) lgkmcnt(0)")
    load_weights(k, [(S_A, sC2)], rows // 64, 1152, "std" if dn else "o")
    rd_toggle(k)
    own_flag(k, FL_DN if dn else FL_WO)
    I(f"s_mul_i32 {sr(sSrc)}, {sr(sC1)}, {rows * 64}")
    I(f"s_add_u32 {sr(sSrc)}, {sr(sSrc)}, {hex(WS_ACT if dn else WS_O)}")
    if dn:
        I(f"s_mul_i32 {sr(sT0)}, {sr(sC1)}, 18")
        I(f"v_add_u32 {C(4)}, {sr(sT0)}, {C(4)}")
        I(f"v_lshrrev_b32 v8, 2, {C(4)}")
        I(f"v_and_b32 {C(4)}, 3, {C(4)}")
        I(f"v_lshlrev_b32 {C(4)}, 2, {C(4)}")
        I(f"v_lshl_add_u32 {C(4)}, v8, 7, {C(4)}")
        I(f"s_mov_b32 {sr(sPoll)}, {hex(fl(FL_GU))}")
    else:
        I(f"s_lshl_b32 {sr(sPoll)}, {sr(sC1)}, 9")
        I(f"s_add_u32 {sr(sPoll)}, {sr(sPoll)}, {hex(fl(FL_O))}")
    I(f"s_lshl_b32 {sr(sT0)}, {sr(sC3)}, 2")
    I(f"s_add_u32 {sr(sT0)}, {sr(sT0)}, {sr(sW)}")
    I(f"s_lshl_b32 {sr(sDst)}, {sr(sT0)}, 11")
    I(f"s_mul_i32 {sr(sT1)}, {sr(sC1)}, {BUFSZ}")
    I(f"s_add_u32 {sr(sDst)}, {sr(sDst)}, {sr(sT1)}")
    I(f"s_add_u32 {sr(sDst)}, {sr(sDst)}, {hex(WS_DP if dn else WS_WP)}")
    I(f"s_add_u32 {sr(sT1)}, {sr(sDst)}, 0x4000000")
    I(f"s_cmp_lt_u32 {sr(sT0)}, 18")
    I(f"s_cselect_b32 {sr(sDst)}, {sr(sDst)}, {sr(sT1)}")

    first2(k, 8 * BUFSZ)
    ready(k, p)

    def ep(k):
        if k is None:
            return 4
        cvt16(k, EP, ACC[0])
        out2(k, 8 * BUFSZ)

    gemm2(k, p, 1, rows // 64, ep, 8 * rows * 64)


def red8(k, op, r, t):
    I = k.I
    for m in ("quad_perm:[1,0,3,2]", "quad_perm:[2,3,0,1]", "row_half_mirror"):
        I(f"{op}_dpp {vr(t)}, {vr(r)}, {vr(r)} {m} row_mask:0xf bank_mask:0xf")
        r, t = t, r
    return r


def sum_regs(k, regs, a, sq=False):
    I = k.I
    for i, r in enumerate(regs):
        d = a + i % 4
        if sq:
            I(f"v_mul_f32 {vr(d)}, {vr(r)}, {vr(r)}" if i < 4 else f"v_fmac_f32 {vr(d)}, {vr(r)}, {vr(r)}")
        elif i < 4:
            continue
        elif i < 8:
            I(f"v_add_f32 {vr(d)}, {vr(regs[i - 4])}, {vr(r)}")
        else:
            I(f"v_add_f32 {vr(d)}, {vr(d)}, {vr(r)}")
    I(f"v_add_f32 {vr(a)}, {vr(a)}, {vr(a + 1)}")
    I(f"v_add_f32 {vr(a + 2)}, {vr(a + 2)}, {vr(a + 3)}")
    I(f"v_add_f32 {vr(a)}, {vr(a)}, {vr(a + 2)}")


def unpack(k, dst, src, n):
    for r in range(n):
        k.I(f"v_lshlrev_b32 {vr(dst + 2 * r)}, 16, {vr(src + r)}")
        k.I(f"v_and_b32 {vr(dst + 2 * r + 1)}, 0xffff0000, {vr(src + r)}")


def rnd(k, r):
    k.I(f"v_cvt_pk_bf16_f32 {vr(r)}, {vr(r)}, {vr(r)}")
    k.I(f"v_lshlrev_b32 {vr(r)}, 16, {vr(r)}")


def normalise(k, x, n, mean, var, pk):
    I = k.I
    rnd(k, mean)
    rnd(k, var)
    I(f"v_add_f32 {vr(var)}, {f32(1e-5)}, {vr(var)}")
    rnd(k, var)
    I(f"v_sqrt_f32 {vr(var)}, {vr(var)}")
    rnd(k, var)
    I(f"v_rcp_f32 {vr(var)}, {vr(var)}")
    for r in range(n):
        I(f"v_sub_f32 {vr(x + r)}, {vr(x + r)}, {vr(mean)}")
    for r in range(n // 2):
        I(f"v_cvt_pk_bf16_f32 {vr(pk + r)}, {vr(x + 2 * r)}, {vr(x + 2 * r + 1)}")
    unpack(k, x, pk, n // 2)
    for r in range(n):
        I(f"v_mul_f32 {vr(x + r)}, {vr(x + r)}, {vr(var)}")
    for r in range(n // 2):
        I(f"v_cvt_pk_bf16_f32 {vr(pk + r)}, {vr(x + 2 * r)}, {vr(x + 2 * r + 1)}")


def role_ln(k):
    I = k.I
    k.L("ln_entry")
    consts(k, 6)
    I(f"s_cmp_lg_u32 {sr(sLn)}, 0")
    I("s_cbranch_scc1 ln_go")
    k.snap("z")
    I("v_mov_b64 v[8:9], 0")
    I("v_mov_b64 v[10:11], 0")
    I(f"s_mul_i32 {sr(sT0)}, {sr(sW)}, 10240")
    I(f"s_add_u32 {sr(sT0)}, {sr(sT0)}, {hex(WS_F)}")
    for i in range(10):
        I(f"buffer_store_dwordx4 v[8:11], {vr(vL)}, {sr(S_WS, 4)}, {sr(sT0)} offen offset:{(i % 4) * 1024} sc1")
        if i % 4 == 3:
            I(f"s_add_u32 {sr(sT0)}, {sr(sT0)}, 4096")
    I("s_waitcnt vmcnt(0)")
    I("s_barrier")
    I("v_mov_b32 v9, 1")
    I("s_mov_b64 exec, 1")
    I(f"global_store_dword v8, v9, {sr(S_DBG, 2)} offset:8 sc1")
    I("s_mov_b64 exec, -1")
    k.L("ln_go")
    k.restore("z")
    I("s_waitcnt vmcnt(0)")
    k.L("ln_loop")
    I(f"s_lshl_b32 {sr(sT0)}, {sr(sLn)}, 2")
    I(f"s_add_u32 {sr(sT0)}, {sr(sT0)}, {sr(sW)}")
    I(f"s_mul_i32 {sr(sT0)}, {sr(sT0)}, {8 * 1152}")
    for i in range(9):
        I(f"buffer_load_dwordx4 {vr(8 + 4 * i, 4)}, {C(2)}, {sr(S_X, 4)}, {sr(sT0)} offen offset:{i * 128}")
    X = 112
    unpack(k, X, 8, 36)
    sum_regs(k, list(range(X, X + 72)), 44)
    r = red8(k, "v_add_f32", 44, 45)
    I(f"v_mul_f32 v48, {f32(1 / 576)}, {vr(r)}")
    for i in range(72):
        I(f"v_sub_f32 {vr(184 + i)}, {vr(X + i)}, v48")
    sum_regs(k, list(range(184, 256)), 44, sq=True)
    r = red8(k, "v_add_f32", 44, 45)
    I(f"v_mul_f32 v49, {f32(1 / 576)}, {vr(r)}")
    normalise(k, X, 72, 48, 49, 8)
    I(f"s_mul_i32 {sr(sT0)}, {sr(sLn)}, {BUFSZ}")
    I(f"s_lshl_b32 {sr(sT1)}, {sr(sW)}, 7")
    I(f"s_add_u32 {sr(sT0)}, {sr(sT0)}, {sr(sT1)}")
    I(f"s_add_u32 {sr(sT0)}, {sr(sT0)}, {hex(WS_XN)}")
    for i in range(9):
        st16(k, 8 + 4 * i, C(0), sT0, 0)
        I(f"s_add_u32 {sr(sT0)}, {sr(sT0)}, 4096")
    I("s_waitcnt vmcnt(0)")
    wait_init(k, "ln")
    I(f"s_lshl_b32 {sr(sFlag)}, {sr(sLn)}, 7")
    I(f"s_lshl_b32 {sr(sT0)}, {sr(sW)}, 2")
    I(f"s_add_u32 {sr(sFlag)}, {sr(sFlag)}, {sr(sT0)}")
    I(f"s_add_u32 {sr(sFlag)}, {sr(sFlag)}, {hex(fl(FL_XN))}")
    I(f"s_add_u32 {sr(sT0)}, {sr(sLn)}, 1")
    put_flag(k, sr(sT0), add=400)
    I(f"s_add_u32 {sr(sLn)}, {sr(sLn)}, 60")
    I(f"s_cmp_lt_u32 {sr(sLn)}, 64")
    k.forget()
    I("s_cbranch_scc1 ln_loop")
    for r, nm in ((R_AT, "at"), (R_R1, "r1"), (R_R2, "r2")):
        I(f"s_cmp_eq_u32 {sr(sRole)}, {r}")
        I(f"s_cbranch_scc1 {nm}_entry")
    I("s_branch all_exit")


def acc_parts(k, A, P, n, ns):
    I = k.I
    for s in range(ns):
        for i in range(n):
            for r in range(4):
                src = P + 4 * (n * s + i) + r
                d = A + 8 * i + 2 * r
                if s == 0:
                    I(f"v_lshlrev_b32 {vr(d)}, 16, {vr(src)}")
                    I(f"v_and_b32 {vr(d + 1)}, 0xffff0000, {vr(src)}")
                else:
                    I(f"v_dot2c_f32_bf16 {vr(d)}, {sr(sC0)}, {vr(src)}")
                    I(f"v_dot2c_f32_bf16 {vr(d + 1)}, {sr(sC1)}, {vr(src)}")


def role_sum(k, last):
    I = k.I
    p = "r2" if last else "r1"
    k.L(f"{p}_entry")
    I(f"s_cmp_eq_u32 {sr(sW)}, 3")
    I("s_cbranch_scc1 all_exit")
    if last:
        srd(k, S_A, 88, 2048 * 1152)
    I(f"s_mov_b32 {sr(sC0)}, 0x3f80")
    I(f"s_mov_b32 {sr(sC1)}, 0x3f800000")
    I(f"s_mov_b32 {sr(sKn)}, 0x3f803f80")
    I(f"s_mul_i32 {sr(sT0)}, {sr(sIdx)}, 3")
    I(f"s_add_u32 {sr(sT0)}, {sr(sT0)}, {sr(sW)}")
    I(f"s_mul_i32 {sr(sC2)}, {sr(sT0)}, 57")
    I(f"s_lshr_b32 {sr(sC2)}, {sr(sC2)}, 9")
    I(f"s_mul_i32 {sr(sT1)}, {sr(sC2)}, 9")
    I(f"s_sub_u32 {sr(sC3)}, {sr(sT0)}, {sr(sT1)}")
    I(f"s_lshl_b32 {sr(sT0)}, {sr(sC3)}, 12")
    I(f"s_lshl_b32 {sr(sT1)}, {sr(sC2)}, 7")
    I(f"s_add_u32 {sr(sT0)}, {sr(sT0)}, {sr(sT1)}")
    I(f"v_add_u32 v3, {sr(sT0)}, {C(0)}")
    I(f"s_lshl_b32 {sr(sT0)}, {sr(sC3)}, 7")
    I(f"s_mul_i32 {sr(sT1)}, {sr(sC2)}, {8 * 1152}")
    I(f"s_add_u32 {sr(sT0)}, {sr(sT0)}, {sr(sT1)}")
    I(f"v_add_u32 v6, {sr(sT0)}, {C(1)}")
    if not last:
        own_flag(k, FL_HN)
        empty(k)
        I(f"s_lshl_b32 {sr(sT0)}, {sr(sC3)}, 8")
        I(f"s_lshl_b32 {sr(sT1)}, {sr(sC2)}, 6")
        I(f"s_add_u32 {sr(sT0)}, {sr(sT0)}, {sr(sT1)}")
        I(f"v_add_u32 v7, {sr(sT0)}, {C(4)}")
        I(f"s_mov_b32 {sr(sM0)}, {hex(WS_S)}")
        I(f"s_mov_b32 s76, 0x01010101")
        I(f"s_mov_b32 s77, 0x01010101")
        for a in range(AHEAD):
            I(f"s_mov_b32 {sr(sT0)}, {hex(WS_H + a * BUFSZ)}")
            st16(k, FF, "v3", sT0, 0)
            I(f"s_mov_b32 {sr(sT0)}, {hex(WS_S + a * 4096)}")
            I(f"buffer_store_dwordx2 {vr(FF, 2)}, v7, {sr(S_WS, 4)}, {sr(sT0)} offen sc1")
        I("s_waitcnt vmcnt(0)")
        put_flag(k, 1, add=201)
    I(f"s_mov_b32 {sr(sPoll)}, {hex(fl(FL_DN if last else FL_WO))}")
    I("s_waitcnt lgkmcnt(0)")
    spin(k, f"{p}_sp", C(3), sr(sPoll), 1, wide=True)
    sRow, sH = sSrc, sDst2
    I(f"s_mov_b32 {sr(sSeg)}, 0")
    I(f"s_mov_b32 {sr(sRow)}, 0")
    I(f"s_mov_b32 {sr(sH)}, {hex(WS_H)}")
    I(f"s_mov_b32 {sr(sDst)}, {hex(WS_DP if last else WS_WP)}")
    P, A = 112, 24
    k.L(f"{p}_loop")
    if not last:
        for u in range(2):
            I(f"buffer_load_dwordx2 {vr(8 + 2 * u, 2)}, v6, {sr(S_X, 4)}, {sr(sRow)} offen offset:{16 * u}")
    k.L(f"{p}_again")
    if last:
        I(f"buffer_load_dwordx4 v[8:11], v3, {sr(S_WS, 4)}, {sr(sH)} offen sc1")
    for s_ in range(8):
        if s_:
            I(f"s_add_u32 {sr(sT0)}, {sr(sDst)}, {s_ * BUFSZ}")
        I(f"buffer_load_dwordx4 {vr(P + 4 * s_, 4)}, v3, {sr(S_WS, 4)}, {sr(sT0 if s_ else sDst)} offen sc1")
    I(f"s_sub_u32 {sr(sBud)}, {sr(sBud)}, 1")
    I("s_cbranch_scc1 all_exit")
    unpack(k, 60, 8, 4)
    I(f"v_max3_u32 v20, {vr(P)}, {vr(P + 4)}, {vr(8 if last else P)}")
    for s_ in range(1, 4):
        I(f"v_max3_u32 v20, v20, {vr(P + 8 * s_)}, {vr(P + 8 * s_ + 4)}")
    I(f"v_cmp_eq_u32 vcc, -1, v20")
    I(f"s_cbranch_vccnz {p}_again")
    stamp(k, sr(sSeg), add=131)
    acc_parts(k, A, P, 1, 8)
    for r in range(4):
        I(f"v_cvt_pk_bf16_f32 {vr(48 + r)}, {vr(A + 2 * r)}, {vr(A + 2 * r + 1)}")
    unpack(k, A, 48, 4)
    for r in range(8):
        I(f"v_add_f32 {vr(A + r)}, {vr(A + r)}, {vr(60 + r)}")
    for r in range(4):
        I(f"v_cvt_pk_bf16_f32 {vr(48 + r)}, {vr(A + 2 * r)}, {vr(A + 2 * r + 1)}")
    if last:
        I(f"buffer_store_dwordx2 v[48:49], v6, {sr(S_A, 4)}, {sr(sRow)} offen")
        I(f"buffer_store_dwordx2 v[50:51], v6, {sr(S_A, 4)}, {sr(sRow)} offen offset:16")
    else:
        st16(k, 48, "v3", sH, 0)
        I(f"v_mov_b64 v[52:53], 0")
        for r in range(4):
            I(f"v_dot2c_f32_bf16 v52, {sr(sKn)}, {vr(48 + r)}")
            I(f"v_dot2c_f32_bf16 v53, {vr(48 + r)}, {vr(48 + r)}")
        a_, b_ = 52, 54
        for m in ("quad_perm:[1,0,3,2]", "quad_perm:[2,3,0,1]", "row_half_mirror"):
            for e in range(2):
                I(f"v_add_f32_dpp {vr(b_ + e)}, {vr(a_ + e)}, {vr(a_ + e)} {m} row_mask:0xf bank_mask:0xf")
            a_, b_ = b_, a_
        I(f"s_add_u32 {sr(sT0)}, {sr(sH)}, {AHEAD * BUFSZ}")
        I(f"s_add_u32 {sr(sT1)}, {sr(sM0)}, {AHEAD * 4096}")
        I("s_mov_b64 exec, s[76:77]")
        I(f"buffer_store_dwordx2 {vr(a_, 2)}, v7, {sr(S_WS, 4)}, {sr(sM0)} offen sc1")
        I(f"buffer_store_dwordx2 {vr(FF, 2)}, v7, {sr(S_WS, 4)}, {sr(sT1)} offen sc1")
        I("s_mov_b64 exec, -1")
        st16(k, FF, "v3", sT0, 0)
        I(f"s_add_u32 {sr(sM0)}, {sr(sM0)}, 4096")
    I(f"s_add_u32 {sr(sSeg)}, {sr(sSeg)}, 1")
    I(f"s_add_u32 {sr(sRow)}, {sr(sRow)}, {BUFSZ}")
    I(f"s_add_u32 {sr(sH)}, {sr(sH)}, {BUFSZ}")
    I(f"s_add_u32 {sr(sDst)}, {sr(sDst)}, {8 * BUFSZ}")
    stamp(k, sr(sSeg))
    I(f"s_cmp_lt_u32 {sr(sSeg)}, 64")
    k.forget()
    I(f"s_cbranch_scc1 {p}_loop")
    I("s_branch all_exit")


def role_at(k):
    I = k.I
    k.L("at_entry")
    consts(k, TROW[R_AT])
    own_flag(k, FL_O)
    empty(k)
    Q, KK, V, X, VM, S, SM, O, PK = 8, 24, 56, 112, 200, 136, 144, 152, 184
    sQ, sK, sKM = sSrc, sM0, sC3
    I(f"s_and_b32 {sr(sC1)}, {sr(sW)}, 1")
    I(f"s_lshr_b32 {sr(sSeg)}, {sr(sW)}, 1")
    I(f"s_lshl_b32 {sr(sT1)}, {sr(sIdx)}, 13")
    I("s_waitcnt vmcnt(0)")
    I(f"s_lshl_b32 {sr(sT0)}, {sr(sSeg)}, 18")
    I(f"s_add_u32 {sr(sT1)}, {sr(sT1)}, {sr(sT0)}")
    I(f"s_add_u32 {sr(sKM)}, {sr(sT1)}, {hex(WS_KM)}")
    I(f"s_lshl_b32 {sr(sK)}, {sr(sT1)}, 1")
    I(f"s_lshl_b32 {sr(sT0)}, {sr(sC1)}, 12")
    I(f"s_add_u32 {sr(sQ)}, {sr(sT1)}, {sr(sT0)}")
    I(f"s_add_u32 {sr(sQ)}, {sr(sQ)}, {hex(WS_Q)}")
    I(f"s_lshl_b32 {sr(sT0)}, {sr(sC1)}, 8")
    I(f"s_add_u32 {sr(sDst)}, {sr(sT1)}, {sr(sT0)}")
    I(f"s_add_u32 {sr(sDst)}, {sr(sDst)}, {hex(WS_O)}")
    I(f"s_mov_b32 {sr(sC0)}, {f32(128 ** -0.5 * 1.4426950408889634)}")
    for u in range(1, 4):
        I(f"v_add_u32 {vr(2 + u)}, {4096 * u}, {vr(vL)}")
    I(f"v_add_u32 {C(6)}, 4096, {C(0)}")
    I(f"v_add_u32 {C(7)}, 4096, {C(4)}")

    def st_o(reg, sd):
        for u in range(4):
            st16(k, reg if reg == FF else reg + 4 * u, C(6 if u // 2 else 0), sd, (u % 2) * 2048)

    for a in range(0, AHEAD, 2):
        I(f"s_add_u32 {sr(sT0)}, {sr(sDst)}, {a * 256 * 1024}")
        st_o(FF, sT0)
    I(f"s_lshl_b32 {sr(sT0)}, {sr(sC1)}, 4")
    I(f"v_add_u32 {C(1)}, {sr(sT0)}, {C(1)}")
    for j in range(8):
        I(f"v_cmp_le_i32 {sr(sMask + 2 * j, 2)}, {8 * (j // 4) + j % 4}, {C(1)}")
    I(f"s_sub_u32 {sr(sT0)}, {FL_Q - FL_KV}, {sr(sIdx)}")
    I(f"s_lshr_b32 {sr(sT1)}, {sr(sIdx)}, 1")
    I(f"s_add_u32 {sr(sT0)}, {sr(sT0)}, {sr(sT1)}")
    I(f"s_lshl_b32 {sr(sT0)}, {sr(sT0)}, 7")
    I(f"v_mul_lo_u32 {C(3)}, {C(3)}, {sr(sT0)}")
    I(f"v_add_u32 {C(3)}, {C(3)}, {C(2)}")
    I(f"s_lshl_b32 {sr(sT0)}, {sr(sIdx)}, 7")
    I(f"s_add_u32 {sr(sPoll)}, {sr(sT0)}, {hex(fl(FL_KV))}")
    I(f"v_mov_b32 v6, {f32(-1e30)}")
    I(f"s_mov_b32 {sr(sKn)}, 0")
    I(f"s_mov_b32 s76, 0xff00ff00")
    I(f"s_mov_b32 s77, 0xff00ff00")
    I(f"v_mov_b64 {vr(X, 2)}, 0")
    for r in range(2, 16, 2):
        I(f"v_mov_b64 {vr(X + r, 2)}, 0")
    I("s_waitcnt vmcnt(0)")
    put_flag(k, 1, add=201)
    off = lambda u: vr(vL) if u == 0 else vr(2 + u)

    def known(lab, need):
        I(f"s_cmp_ge_u32 {sr(sKn)}, {need}")
        I(f"s_cbranch_scc1 {lab}_ok")
        spin(k, lab, C(3), sr(sPoll), need)
        r = red8(k, "v_min_u32", 96, 97)
        I(f"v_readfirstlane_b32 {sr(sKn)}, {vr(r)}")
        k.L(f"{lab}_ok")

    def ld_qk():
        for u in range(4):
            I(f"buffer_load_dwordx4 {vr(Q + 4 * u, 4)}, {vr(vL)}, {sr(S_WS, 4)}, {sr(sQ)} offen offset:{u * 1024} sc1")
            for kt in range(2):
                I(f"buffer_load_dwordx4 {vr(KK + 8 * u + 4 * kt, 4)}, {off(u)}, {sr(S_WS, 4)}, {sr(sK)} offen "
                  f"offset:{kt * 1024} sc1")

    def ld_v():
        for u in range(4):
            for et in range(2):
                I(f"buffer_load_dwordx4 {vr(V + 8 * u + 4 * et, 4)}, {off(u)}, {sr(S_WS, 4)}, {sr(sK)} offen "
                  f"offset:{2048 + et * 1024} sc1")

    I(f"s_add_u32 {sr(sNeed)}, {sr(sSeg)}, 1")
    known("at_k0", sr(sNeed))
    ld_qk()
    ld_v()
    I("s_waitcnt vmcnt(0)")
    k.L("at_loop")
    k.forget()
    for u in range(4):
        I(f"s_waitcnt vmcnt({12 + 3 * (3 - u)})")
        for kt in range(2):
            I(f"v_mfma_f32_16x16x32_bf16 {vr(S + 4 * kt, 4)}, {vr(KK + 8 * u + 4 * kt, 4)}, {vr(Q + 4 * u, 4)}, "
              f"{vr(S + 4 * kt, 4) if u else 0}")
    I(f"s_add_u32 {sr(sQ)}, {sr(sQ)}, {2 * 32 * 8192}")
    I(f"s_add_u32 {sr(sK)}, {sr(sK)}, {2 * 32 * 16384}")
    for j in range(8):
        I(f"v_cndmask_b32_e64 {vr(S + j)}, v6, {vr(S + j)}, {sr(sMask + 2 * j, 2)}")
    I(f"v_max3_f32 v2, {vr(S)}, {vr(S + 1)}, {vr(S + 2)}")
    I(f"v_max3_f32 v2, v2, {vr(S + 3)}, {vr(S + 4)}")
    I(f"v_max3_f32 v2, v2, {vr(S + 5)}, {vr(S + 6)}")
    I(f"v_max_f32 v2, v2, {vr(S + 7)}")
    I(f"s_add_u32 {sr(sNeed)}, {sr(sSeg)}, 3")
    I(f"s_min_u32 {sr(sNeed)}, {sr(sNeed)}, 64")
    known("at_k1", sr(sNeed))
    k.L("at_again")
    I("s_mov_b64 exec, s[76:77]")
    for u in range(4):
        I(f"buffer_load_dwordx4 {vr(X + 4 * u, 4)}, {off(u // 2)}, {sr(S_WS, 4)}, {sr(sKM)} offen "
          f"offset:{(u % 2) * 2048} sc1")
    I("s_mov_b64 exec, -1")
    for u in range(4):
        I(f"buffer_load_dwordx4 {vr(VM + 4 * u, 4)}, {off(u // 2)}, {sr(S_WS, 4)}, {sr(sKM)} offen "
          f"offset:{1024 + (u % 2) * 2048} sc1")
    I(f"s_sub_u32 {sr(sBud)}, {sr(sBud)}, 1")
    I("s_cbranch_scc1 all_exit")
    for u in range(4):
        I(f"v_mfma_f32_16x16x32_bf16 {vr(SM, 4)}, {vr(X + 4 * u, 4)}, {vr(Q + 4 * u, 4)}, {vr(SM, 4) if u else 0}")
    I(f"v_max3_u32 v92, {vr(X)}, {vr(X + 4)}, {vr(X + 8)}")
    I(f"v_max3_u32 v92, v92, {vr(X + 12)}, {vr(VM)}")
    I(f"v_max3_u32 v92, v92, {vr(VM + 4)}, {vr(VM + 8)}")
    I(f"v_max_u32 v92, v92, {vr(VM + 12)}")
    I(f"v_cmp_eq_u32 vcc, -1, v92")
    I(f"s_cbranch_vccnz at_again")
    stamp(k, sr(sSeg), add=131)
    I(f"s_add_u32 {sr(sKM)}, {sr(sKM)}, {2 * 32 * 8192}")
    I("s_mov_b32 exec_hi, 0")
    for r in range(4):
        I(f"v_mov_b32 {vr(SM + r)}, v6")
    I("s_mov_b32 exec_hi, -1")
    I(f"v_max3_f32 v2, v2, {vr(SM)}, {vr(SM + 1)}")
    I(f"v_max3_f32 v92, v2, {vr(SM + 2)}, {vr(SM + 3)}")
    I(f"v_max3_f32 v93, v2, {vr(SM + 2)}, {vr(SM + 3)}")
    I("v_permlane16_swap_b32 v92, v93")
    I("v_max_f32 v2, v92, v93")
    I("v_max_f32 v92, v92, v93")
    I("v_permlane32_swap_b32 v2, v92")
    I("v_max_f32 v2, v2, v92")
    I(f"v_mul_f32 v2, {sr(sC0)}, v2")
    for r in range(12):
        I(f"v_fma_f32 {vr(S + r)}, {vr(S + r)}, {sr(sC0)}, -v2")
    for r in range(12):
        I(f"v_exp_f32 {vr(S + r)}, {vr(S + r)}")
    for r in range(4):
        I(f"v_cvt_pk_bf16_f32 {vr(148 + r)}, {vr(S + 2 * r)}, {vr(S + 2 * r + 1)}")
    for r in (92, 94):
        I(f"v_cvt_pk_bf16_f32 {vr(r)}, {vr(SM)}, {vr(SM + 2)}")
        I(f"v_cvt_pk_bf16_f32 {vr(r + 1)}, {vr(SM + 1)}, {vr(SM + 3)}")
    Z = 88
    red = [f"v_add_f32 {vr(Z + i)}, {vr(S + i)}, {vr(S + 4 + i)}" for i in range(4)]
    red += [f"v_add_f32 {vr(Z + i)}, {vr(Z + i)}, {vr(S + 8 + i)}" for i in range(4)]
    red += [f"v_add_f32 {vr(Z)}, {vr(Z)}, {vr(Z + 1)}", f"v_add_f32 {vr(Z + 2)}, {vr(Z + 2)}, {vr(Z + 3)}",
            f"v_add_f32 {vr(Z + 1)}, {vr(Z)}, {vr(Z + 2)}", f"v_add_f32 {vr(Z)}, {vr(Z)}, {vr(Z + 2)}",
            f"v_permlane16_swap_b32 {vr(Z)}, {vr(Z + 1)}", f"v_add_f32 {vr(Z + 2)}, {vr(Z)}, {vr(Z + 1)}",
            f"v_add_f32 {vr(Z)}, {vr(Z)}, {vr(Z + 1)}", f"v_permlane32_swap_b32 {vr(Z)}, {vr(Z + 2)}",
            f"v_add_f32 {vr(Z)}, {vr(Z)}, {vr(Z + 2)}", f"v_rcp_f32 {vr(Z)}, {vr(Z)}"]
    red = ["v_permlane32_swap_b32 v92, v94", "v_permlane32_swap_b32 v93, v95"] + red
    for u in range(4):
        for et in range(2):
            I(f"v_mfma_f32_16x16x32_bf16 {vr(O + 8 * u + 4 * et, 4)}, {vr(V + 8 * u + 4 * et, 4)}, {vr(148, 4)}, 0")
            for _ in range(2):
                I(red.pop(0))
    for u in range(4):
        for et in range(2):
            I(f"v_mfma_f32_16x16x16_bf16 {vr(O + 8 * u + 4 * et, 4)}, {vr(VM + 4 * u + 2 * et, 2)}, "
              f"v[94:95], {vr(O + 8 * u + 4 * et, 4)}")
            if red:
                I(red.pop(0))
    for u in range(4):
        for r in range(0, 8, 2):
            I(f"v_pk_mul_f32 {vr(O + 8 * u + r, 2)}, {vr(O + 8 * u + r, 2)}, {vr(Z, 2)} op_sel_hi:[1,0]")
        for r in range(4):
            I(f"v_cvt_pk_bf16_f32 {vr(PK + 4 * u + r)}, {vr(O + 8 * u + 2 * r)}, {vr(O + 8 * u + 2 * r + 1)}")
        st16(k, PK + 4 * u, C(6 if u // 2 else 0), sDst, (u % 2) * 2048)
    I(f"s_add_u32 {sr(sSeg)}, {sr(sSeg)}, 2")
    I(f"s_sub_u32 {sr(sT1)}, {sr(sSeg)}, 1")
    stamp(k, sr(sT1))
    I(f"s_cmp_ge_u32 {sr(sSeg)}, 64")
    I("s_cbranch_scc1 all_exit")
    ld_qk()
    ld_v()
    I(f"s_add_u32 {sr(sT0)}, {sr(sDst)}, {AHEAD * 256 * 1024}")
    st_o(FF, sT0)
    I(f"s_add_u32 {sr(sDst)}, {sr(sDst)}, {2 * 256 * 1024}")
    I("s_branch at_loop")


def all_roles(k):
    role_proj(k, False)
    role_proj(k, True)
    role_gu(k)
    role_red(k, False)
    role_red(k, True)
    role_ln(k)
    role_sum(k, False)
    role_sum(k, True)
    role_at(k)
```

```python
import sys
sys.path.insert(0, 'exp')
import h
import os, importlib, roles
chain = importlib.import_module(os.environ.get('CH', 'chain5'))
BEST = ['full', 'gb=2', 'pd=3', 'e3=1', 'e1=1', 'la=1', 'lb=9', 'xa=2', 'ya=1', 'za=0', 'zb=9', 'hold=3', 'hb=12', 'lk=12', 'sp=3']
from gen import K

NAME = "sequential_preLN__memory_aug_recurrent_mem_tr__glu_gated_bilinear__prompt_kernel"


def full_asm(name=NAME, opts=BEST, prof=False):
    chain.OPT.clear()
    chain.OPT.update({x.split('=')[0]: int(x.split('=')[1]) if '=' in x else 1 for x in opts})
    roles.OPT.clear()
    roles.OPT.update(chain.OPT)
    k = K(timed=True)
    roles.entry(k)
    k.L("chain_entry")
    chain.chain_kernel(prof=prof, k=k)
    k.I("s_branch all_exit")
    k.forget()
    roles.all_roles(k)
    k.L("all_exit")
    k.I("s_waitcnt vmcnt(0)")
    body = k.render()
    s = "; @launch grid=(256,1,1) block=(256,1,1) lds=163840\n"
    s += '.amdgcn_target "amdgcn-amd-amdhsa--gfx950"\n.text\n'
    s += f".globl {name}\n.p2align 8\n.type {name},@function\n{name}:\n"
    s += body + "\ts_endpgm\n" + chain.table_text("chain_tbl") + roles.tables_text()
    s += h.KD.format(name=name, vgpr=512, acc=256, ka=14 * 8)
    return s, k


if __name__ == "__main__":
    s, k = full_asm()
    co = h.build(s, NAME, 14, "full", launch_lists=True)
    print(co, k.nops, len(s), h.L.address_register_problem(co, NAME, None))
    if len(sys.argv) > 1:
        open(sys.argv[1], "w").write(s)
```

```python
from gen import K, vr, ar, sr
from lay import *

R_CH, R_KV, R_Q, R_AT, R_WO, R_R1, R_GU, R_DN, R_R2, R_NONE = range(10)
TROW = {R_KV: 0, R_Q: 1, R_GU: 2, R_WO: 3, R_DN: 4, R_AT: 5, R_R1: 6, R_R2: 6, R_NONE: 6}

S_WS, S_A, S_B, S_X = 4, 8, 12, 16
S_DBG = 24
sW, sIdx, sSeg, sNeed, sSrc, sDst, sFlag, sPoll, sBud, sM0, sT0, sT1, sT2, sT3, sIss, sLn, sRole, sKn, sW4k = range(26, 45)
sDst2, sC0, sC1, sC2, sC3 = range(45, 50)
sMask = 60
vL = 0
C = lambda i: vr(100 + i)
BUFSZ = 36864
OPT = {}
NL = [0]


def f32(x):
    return hex(int(np.float32(x).view(np.uint32)))


def role_map():
    m = [None] * 256
    groups = [(R_WO, g) for g in range(8)] + [(R_DN, g) for g in range(8)]
    order = [groups[(i // 2) + 8 * (i % 2)] for i in range(16)]
    rest = [(R_KV, i) for i in range(32)] + [(R_Q, i) for i in range(16)] + [(R_AT, i) for i in range(32)] + \
           [(R_GU, i) for i in range(36)] + [(R_R1, i) for i in range(12)] + [(R_R2, i) for i in range(12)] + \
           [(R_NONE, i) for i in range(4)]
    gi = 0
    for base, xs in ((0, range(1, 8)), (5, range(1, 8)), (10, (1, 2))):
        for x in xs:
            r, g = order[gi]
            gi += 1
            for j in range(5):
                m[(base + j) * 8 + x] = (r, g * 5 + j)
    for i in range(32):
        m[i * 8] = (R_CH, i)
    free = [wg for wg in range(256) if m[wg] is None]
    assert len(free) == len(rest)
    for wg, e in zip(free, rest):
        m[wg] = e
    ln = 0
    out = []
    lnidx = {}
    for r in (R_NONE, R_R2, R_R1, R_AT):
        for wg in range(256):
            if m[wg][0] == r:
                lnidx[wg] = ln
                ln += 1
    assert ln == 60
    for wg in range(256):
        r, i = m[wg]
        out.append(r | i << 8 | lnidx.get(wg, 255) << 16)
    return out


def lane_table():
    T = np.zeros((7, 64, 8), np.uint32)
    for l in range(64):
        q, p = l // 16, l % 16
        g, n16 = l // 16, l % 16
        r, c4 = n16 // 4, n16 % 4
        n, hi = l % 32, l // 32
        dm = lambda S: q * S + (p ^ (4 * q)) * 16
        tr = lambda HS: ((g // 2) * HS + r) * 256 + (4 * r + 2 * (g % 2) + c4 // 2) * 16 + (c4 % 2) * 8
        vk = ((n >> 3) & 1) * 1024 + hi * 256 + ((n >> 4) * 8 + (n & 7)) * 16
        vv = 2048 + (n // 16) * 1024 + hi * 256 + (n % 16) * 16
        vq = (n // 16) * 4096 + hi * 256 + (n % 16) * 16
        T[0, l, :6] = [dm(8192), tr(8), vk, vv, (l % 4) * 4, l * 16 if n16 >= 8 else 1024 + (g * 8 + n16) * 16]
        T[1, l, :5] = [dm(8192), tr(8), vq, vq + 8192, (l % 4) * 4]
        T[2, l, :6] = [dm(9216), tr(4), l * 16, 0, ((l % 36) // 3) * 128 + (l % 3) * 4, min(l // 4, 8) * 1024 + l % 4 * 128]
        T[3, l, :6] = [dm(1152), tr(4), l * 16, 0, ((l % 16) // 4) * 128 + (l % 4) * 4, l // 2 % 8 * 1024 + l % 2 * 256]
        T[4, l, :6] = [dm(1152), tr(4), l * 16, 0, l % 18, min(l, 8) * 1024]
        T[5, l, :6] = [g * 512 + n16 * 16, (n16 - 16 * (g // 2) - 4 * (g % 2)) & 0xffffffff, (l % 4) * 4,
                       1 if l % 8 >= 4 else 0, l * 8, l * 16 if n16 >= 8 else 1024 + (g * 8 + n16) * 16]
        nn, pp = l // 8, l % 8
        T[6, l, :6] = [pp * 512 + nn * 16, nn * 1152 + (pp // 2) * 32 + (pp % 2) * 8, nn * 1152 + pp * 16,
                       (l % 40) * 128, nn * 8, pp * BUFSZ + nn % 4 * 1024]
    return T


def tables_text():
    s = ".p2align 8\n.type role_tbl,@object\nrole_tbl:\n"
    rm = role_map()
    for i in range(0, 256, 8):
        s += ".long " + ",".join(hex(x) for x in rm[i:i + 8]) + "\n"
    T = lane_table()
    T2 = T.reshape(7, 64, 2, 4).transpose(0, 2, 1, 3).reshape(-1, 8)
    for row in T2:
        s += ".long " + ",".join(hex(int(x)) for x in row) + "\n"
    s += f".size role_tbl, {1024 + T.size * 4}\n"
    return s


def entry(k):
    I = k.I
    I("s_cmp_ge_u32 s2, 256")
    I("s_cbranch_scc1 all_exit")
    I("s_and_b32 s3, s2, 7")
    I("s_cmp_eq_u32 s3, 0")
    I("s_cbranch_scc1 chain_entry")
    I("s_getpc_b64 s[64:65]")
    k.L("role_pc")
    I("s_add_u32 s64, s64, role_tbl-role_pc")
    I("s_addc_u32 s65, s65, 0")
    I("s_lshl_b32 s3, s2, 2")
    I(f"s_load_dword {sr(sRole)}, s[64:65], s3")
    I(f"s_load_dwordx2 {sr(S_WS, 2)}, s[0:1], 104")
    I(f"s_load_dwordx2 {sr(S_DBG, 2)}, s[0:1], 96")
    I(f"s_load_dwordx2 {sr(S_X, 2)}, s[0:1], 0")
    I("v_lshrrev_b32 v8, 6, v0")
    I(f"v_readfirstlane_b32 {sr(sW)}, v8")
    I("v_and_b32 v0, 63, v0")
    I(f"v_lshlrev_b32 {vr(vL)}, 4, v0")
    I(f"s_mov_b32 {sr(S_WS + 2)}, {hex(WS_BYTES)}")
    I(f"s_mov_b32 {sr(S_WS + 3)}, 0x00020000")
    I(f"s_mov_b32 {sr(S_X + 2)}, {2048 * 1152}")
    I(f"s_mov_b32 {sr(S_X + 3)}, 0x00020000")
    I(f"s_mov_b32 {sr(sBud)}, 0x40000")
    I(f"s_lshl_b32 {sr(sW4k)}, {sr(sW)}, 12")
    I("s_waitcnt lgkmcnt(0)")
    I(f"s_bfe_u32 {sr(sIdx)}, {sr(sRole)}, 0x80008")
    I(f"s_bfe_u32 {sr(sLn)}, {sr(sRole)}, 0x80010")
    I(f"s_and_b32 {sr(sRole)}, {sr(sRole)}, 255")
    stamp_base(k, sW)
    stamp(k, 200)
    for r in range(10):
        if OPT.get("off", 0) >> r & 1:
            I(f"s_cmp_eq_u32 {sr(sRole)}, {r}")
            I(f"s_cbranch_scc1 {'all_exit' if r in (R_KV, R_Q, R_GU, R_WO, R_DN) else 'role_off'}")
    for r, nm in ((R_KV, "kv"), (R_Q, "q"), (R_GU, "gu"), (R_WO, "wo"), (R_DN, "dn")):
        I(f"s_cmp_eq_u32 {sr(sRole)}, {r}")
        I(f"s_cbranch_scc1 {nm}_entry")
    I("s_branch ln_entry")
    k.L("role_off")
    I(f"s_mov_b32 {sr(sRole)}, {R_NONE}")
    I("s_branch ln_entry")


def consts(k, row):
    I = k.I
    I(f"v_add_u32 v8, {1024 + row * 2048}, {vr(vL)}")
    I(f"global_load_dwordx4 {vr(100, 4)}, v8, s[64:65]")
    I(f"global_load_dwordx4 {vr(104, 4)}, v8, s[64:65] offset:1024")


def wait_init(k, p):
    I = k.I
    I("v_mov_b32 v8, 0")
    k.L(f"{p}_init")
    I(f"global_load_dword v9, v8, {sr(S_DBG, 2)} offset:8 sc1")
    I(f"s_sub_u32 {sr(sBud)}, {sr(sBud)}, 1")
    I("s_cbranch_scc1 all_exit")
    I("s_waitcnt vmcnt(0)")
    I(f"v_readfirstlane_b32 {sr(sT0)}, v9")
    I(f"s_cmp_eq_u32 {sr(sT0)}, 0")
    I(f"s_cbranch_scc1 {p}_init")


def hold(k, p):
    if not OPT.get("hold", 0) >> {"gu": 0, "dn": 1, "wo": 2, "q": 3}[p] & 1:
        return
    I = k.I
    I("v_mov_b32 v8, 0")
    k.L(f"{p}_hold")
    I(f"global_load_dword v9, v8, {sr(S_DBG, 2)} offset:128 sc1")
    I(f"s_sub_u32 {sr(sBud)}, {sr(sBud)}, 1")
    I("s_cbranch_scc1 all_exit")
    I("s_waitcnt vmcnt(0)")
    I(f"v_readfirstlane_b32 {sr(sT0)}, v9")
    I(f"s_cmp_lt_u32 {sr(sT0)}, {OPT.get('hn', 32)}")
    I(f"s_cbranch_scc1 {p}_hold")


def stamp(k, val, t0=97, t1=99, add=0, src=None):
    if not OPT.get("ts"):
        return
    I = k.I
    if OPT["ts"] == 2 and isinstance(val, str):
        if src is not None or add not in (0, 65, 400):
            return
        NL[0] += 1
        for x in (f"s_and_b32 s55, {val}, 7", f"s_cbranch_scc1 lst_{NL[0]}", "s_memrealtime s[52:53]", "s_nop 4",
                  f"v_mov_b32 {vr(t1)}, {val}", f"v_lshlrev_b32 {vr(t1)}, 2, {vr(t1)}", "s_waitcnt lgkmcnt(0)",
                  f"v_mov_b32 {vr(t0)}, s52", "s_mov_b64 exec, 1", "s_nop 1",
                  f"buffer_store_dword {vr(t0)}, {vr(t1)}, {sr(S_WS, 4)}, s54 offen offset:{4 * add}",
                  "s_mov_b64 exec, -1", "s_waitcnt vmcnt(0)", f"lst_{NL[0]}:"):
            k.raw("\t" + x)
        return
    if src is None:
        I("s_memrealtime s[52:53]")
    I(f"v_mov_b32 {vr(t1)}, {val}")
    I(f"v_lshlrev_b32 {vr(t1)}, 2, {vr(t1)}")
    I("s_waitcnt lgkmcnt(0)")
    I(f"v_mov_b32 {vr(t0)}, s{src or 52}")
    I(f"s_mov_b64 exec, 1")
    I(f"buffer_store_dword {vr(t0)}, {vr(t1)}, {sr(S_WS, 4)}, s54 offen offset:{4 * add}")
    I(f"s_mov_b64 exec, -1")


def stamp_base(k, sw):
    if not OPT.get("ts"):
        return
    k.I(f"s_lshl_b32 s54, s2, 13")
    k.I(f"s_lshl_b32 s55, {sr(sw)}, 11")
    k.I(f"s_add_u32 s54, s54, s55")
    k.I(f"s_add_u32 s54, s54, {hex(WS_TS)}")


def put_flag(k, val, tmp=98, add=0):
    I = k.I
    stamp(k, val, add=add)
    I(f"v_mov_b32 {vr(tmp)}, {val}")
    I(f"s_mov_b64 exec, 1")
    I(f"buffer_store_dword {vr(tmp)}, off, {sr(S_WS, 4)}, {sr(sFlag)} sc1")
    I(f"s_mov_b64 exec, -1")


def spin(k, lab, voff, soff, need, wide=False, dst=96):
    I = k.I
    k.L(lab)
    if wide:
        I(f"buffer_load_dwordx4 {vr(92, 4)}, {voff}, {sr(S_WS, 4)}, {soff} offen sc1")
    else:
        I(f"buffer_load_dword {vr(dst)}, {voff}, {sr(S_WS, 4)}, {soff} offen sc1")
    I(f"s_sub_u32 {sr(sBud)}, {sr(sBud)}, 1")
    I("s_cbranch_scc1 all_exit")
    I("s_waitcnt vmcnt(0)")
    if wide:
        I(f"v_min_u32 {vr(92)}, {vr(92)}, {vr(93)}")
        I(f"v_min3_u32 {vr(dst)}, {vr(92)}, {vr(94)}, {vr(95)}")
    I(f"v_cmp_gt_u32 vcc, {need}, {vr(dst)}")
    I(f"s_cbranch_vccnz {lab}")


def look(k, lab, voff, soff, off=0):
    I = k.I
    k.L(lab)
    I(f"buffer_load_dword v92, {voff}, {sr(S_WS, 4)}, {sr(soff)} offen offset:{off} sc1")
    I(f"s_sub_u32 {sr(sBud)}, {sr(sBud)}, 1")
    I("s_cbranch_scc1 all_exit")
    I("s_waitcnt vmcnt(0)")
    I(f"v_cmp_eq_u32 vcc, -1, v92")
    I(f"s_cbranch_vccnz {lab}")


def wreg(t, ks, off=0, n=4):
    i = (36 * t + ks) * 4
    if i < 256:
        return ar(i + off, n)
    return vr(112 + i - 256 + off, n)


ROWMAP = {
    "nat": lambda t, half: 16 * t + 4 * half,
    "std": lambda t, half: 16 * t + 8 * half,
    "o": lambda t, half: 32 * (t // 2) + 16 * half + 8 * (t % 2),
}


def load_weights(k, mats, nslab, S, perm):
    I = k.I
    N = len(mats) * nslab

    def dma(n):
        d, base = mats[n // nslab]
        sl = n % nslab
        for i in range(4):
            I(f"s_add_u32 {sr(sT0)}, {sr(base)}, {(64 * sl + 4 * i) * S}")
            I(f"s_add_u32 m0, {sr(sW4k)}, {(n % 10) * 16384 + i * 1024}")
            I(f"buffer_load_dwordx4 {C(0)}, {sr(d, 4)}, {sr(sT0)} offen nt lds")
        k.tag(f"slab{n}")

    for n in range(min(9, N)):
        dma(n)
    I(f"s_lshl_b32 {sr(sT0)}, {sr(sW)}, 6")
    I(f"v_xor_b32 {C(1)}, {sr(sT0)}, {C(1)}")
    for n in range(N):
        k.wait_tag(f"slab{n}")
        I("s_waitcnt lgkmcnt(0)")
        I("s_barrier")
        if n + 9 < N:
            dma(n + 9)
        I(f"v_add_u32 v8, {(n % 10) * 16384}, {C(1)}")
        for t in range(4):
            for half in range(2):
                I(f"ds_read_b64_tr_b16 {wreg(n // nslab, 4 * (n % nslab) + t, 2 * half, 2)}, v8 "
                  f"offset:{ROWMAP[perm](t, half) * 256}")
    I("s_waitcnt lgkmcnt(0)")
    I("s_barrier")


ACC = [8, 24]
BR = 40
EP = 72
vRd = 1


def gemm(k, p, ntile, per, swap, epilogue, src_step, poll_step, extra=None):
    I = k.I
    nk = 4 * sum(per)
    start = [0, 4 * per[0], 4 * (per[0] + per[1])]
    LA = 6 if ntile == 1 else 3

    def dma_all():
        for c in range(3):
            if c == 0:
                I(f"s_mov_b32 m0, {sr(sM0)}")
                so = sSrc
            else:
                d = start[c] * 1024
                if per[c] != per[0]:
                    I(f"s_mul_i32 {sr(sT1)}, {sr(sW)}, {(per[0] - per[c]) * 1024}")
                    I(f"s_sub_u32 {sr(sT1)}, {d}, {sr(sT1)}")
                    I(f"s_add_u32 m0, {sr(sM0)}, {sr(sT1)}")
                    I(f"s_add_u32 {sr(sT0)}, {sr(sSrc)}, {sr(sT1)}")
                else:
                    I(f"s_add_u32 m0, {sr(sM0)}, {d}")
                    I(f"s_add_u32 {sr(sT0)}, {sr(sSrc)}, {d}")
                so = sT0
            for j in range(per[c]):
                I(f"buffer_load_dwordx4 {vr(vL)}, {sr(S_WS, 4)}, {sr(so)} offen offset:{j * 1024} sc1 lds")
        I(f"s_add_u32 {sr(sSrc)}, {sr(sSrc)}, {src_step}")
        I(f"s_sub_u32 {sr(sM0)}, {sr(sC0)}, {sr(sM0)}")

    NS = epilogue(None)
    I(f"s_mul_i32 {sr(sT0)}, {sr(sW)}, {per[0] * 1024}")
    I(f"s_add_u32 {sr(sSrc)}, {sr(sSrc)}, {sr(sT0)}")
    I(f"s_mov_b32 {sr(sM0)}, {sr(sT0)}")
    I(f"s_lshl_b32 {sr(sC0)}, {sr(sT0)}, 1")
    I(f"s_add_u32 {sr(sC0)}, {sr(sC0)}, {BUFSZ}")
    I(f"v_mov_b32 {vr(vRd)}, {vr(vL)}")
    I(f"s_mov_b32 {sr(sSeg)}, 0")
    I(f"s_mov_b32 {sr(sNeed)}, 1")
    stamp(k, 201)
    wait_init(k, p)
    I(f"s_branch {p}_spin")
    k.L(f"{p}_loop")
    k.forget()
    I(f"s_waitcnt vmcnt({per[1] + per[2] + NS})")
    I("s_barrier")
    if OPT.get("ts"):
        I("s_memrealtime s[56:57]")
    I(f"buffer_load_dword {vr(96)}, {C(4)}, {sr(S_WS, 4)}, {sr(sPoll)} offen sc1")
    k.forget()

    def rd(t):
        if t == start[1]:
            I(f"s_waitcnt vmcnt({per[2] + NS + 1})")
            I("s_barrier")
        if t == start[2]:
            I(f"s_waitcnt vmcnt(0)")
            I("s_barrier")
            put_flag(k, sr(sSeg))
            I(f"v_cmp_gt_u32 vcc, {sr(sNeed)}, {vr(96)}")
            I(f"s_mov_b32 {sr(sIss)}, 0")
            I(f"s_cbranch_vccnz {p}_late")
            I(f"s_cmp_eq_u32 {sr(sSeg)}, 63")
            I(f"s_cbranch_scc1 {p}_late")
            dma_all()
            I(f"s_mov_b32 {sr(sIss)}, 1")
            k.L(f"{p}_late")
        I(f"ds_read_b128 {vr(BR + 4 * (t % 8), 4)}, {vr(vRd)} offset:{t * 1024}")

    for t in range(LA):
        rd(t)
    for t in range(nk):
        b = vr(BR + 4 * (t % 8), 4)
        for j in range(ntile):
            a = vr(ACC[j], 16)
            x, y = (b, wreg(j, t)) if swap[j] else (wreg(j, t), b)
            I(f"v_mfma_f32_32x32x16_bf16 {a}, {x}, {y}, {a if t else 0}")
            if j == 0 and t + LA < nk:
                rd(t + LA)
    I(f"v_xor_b32 {vr(vRd)}, {vr(2)}, {vr(vRd)}")
    epilogue(k)
    if OPT.get("ts"):
        I("s_memrealtime s[58:59]")
    I(f"s_add_u32 {sr(sSeg)}, {sr(sSeg)}, 1")
    I(f"s_add_u32 {sr(sNeed)}, {sr(sNeed)}, 1")
    poll_step(k)
    I(f"s_cmp_eq_u32 {sr(sIss)}, 1")
    I(f"s_cbranch_scc1 {p}_loop")
    I("s_waitcnt vmcnt(0)")
    put_flag(k, sr(sSeg), add=65)
    stamp(k, sr(sSeg), add=260, src=56)
    stamp(k, sr(sSeg), add=330, src=58)
    I(f"s_cmp_eq_u32 {sr(sSeg)}, 64")
    I("s_cbranch_scc1 all_exit")
    I(f"s_sub_u32 {sr(sNeed)}, {sr(sNeed)}, 1")
    poll_step(k, back=True)
    k.L(f"{p}_spin")
    spin(k, f"{p}_sp", C(4), sr(sPoll), sr(sNeed))
    stamp(k, sr(sNeed), add=130)
    dma_all()
    for _ in range(NS):
        I(f"buffer_load_dword {vr(97)}, {C(4)}, {sr(S_WS, 4)}, {sr(sPoll)} offen sc1")
    k.forget()
    I(f"s_add_u32 {sr(sNeed)}, {sr(sNeed)}, 1")
    poll_step(k)
    I(f"s_branch {p}_loop")


FF = 108


def empty(k):
    k.I(f"v_mov_b64 {vr(FF, 2)}, -1")
    k.I(f"v_mov_b64 {vr(FF + 2, 2)}, -1")


def ready(k, p):
    k.I("s_waitcnt vmcnt(0)")
    wait_init(k, p)
    put_flag(k, 1, add=201)


def gemm2(k, p, ntile, nb, epilogue, src_step, side=None):
    I = k.I
    nk = 4 * nb
    LA = 6 if ntile == 1 else 3

    def dma():
        out = []
        for j in range(nb):
            if j == 0:
                out.append(f"s_mov_b32 m0, {sr(sM0)}")
            elif j % 4 == 0:
                out.append(f"s_add_u32 m0, {sr(sM0)}, {j * 1024}")
                out.append(f"s_add_u32 {sr(sT0)}, {sr(sSrc)}, {j * 1024}")
            out.append(f"buffer_load_dwordx4 {vr(vL)}, {sr(S_WS, 4)}, {sr(sSrc if j < 4 else sT0)} offen "
                       f"offset:{(j % 4) * 1024} sc1 lds")
        return out

    NS = epilogue(None)
    I(f"s_mul_i32 {sr(sC1)}, {sr(sW)}, {nb * 1024}")
    I(f"s_add_u32 {sr(sSrc)}, {sr(sSrc)}, {sr(sC1)}")
    I(f"s_mov_b32 {sr(sM0)}, {sr(sC1)}")
    I(f"s_lshl_b32 {sr(sC0)}, {sr(sC1)}, 1")
    I(f"s_add_u32 {sr(sC0)}, {sr(sC0)}, {BUFSZ}")
    I(f"v_mov_b32 {vr(vRd)}, {vr(vL)}")
    I(f"s_mov_b32 {sr(sSeg)}, 0")
    spin(k, f"{p}_sp", C(4), sr(sPoll), 1)
    I(f"v_add_u32 v3, {sr(sC1)}, {vr(vRd)}")
    k.L(f"{p}_again")
    if OPT.get("lk", 0) >> {"wo": 0, "gu": 2, "dn": 3}[p] & 1:
        look(k, f"{p}_look", C(5), sSrc)
    for x in dma() + (side["load"] if side else []):
        I(x)
    I(f"s_sub_u32 {sr(sBud)}, {sr(sBud)}, 1")
    I("s_cbranch_scc1 all_exit")
    I("s_waitcnt vmcnt(0)")
    k.L(f"{p}_loop")
    k.forget()
    I(f"s_waitcnt vmcnt({NS})")
    T = 88
    for j in range(0, nb, 2):
        if j + 1 < nb:
            I(f"ds_read2st64_b32 {vr(T + j, 2)}, v3 offset0:{4 * j} offset1:{4 * j + 4}")
        else:
            I(f"ds_read_b32 {vr(T + j)}, v3 offset:{1024 * j}")
    if side:
        c = side["check"]
        I(f"v_max3_u32 {vr(T + 10)}, {vr(c[0])}, {vr(c[1])}, {vr(c[2])}")
        I(f"v_max3_u32 {vr(T + 10)}, {vr(T + 10)}, {vr(c[3])}, {vr(c[4])}")
    I(f"v_max3_u32 {vr(T)}, {vr(T)}, {vr(T + 1)}, {vr(T + 2)}")
    I(f"v_max3_u32 {vr(T + 3)}, {vr(T + 3)}, {vr(T + 4)}, {vr(T + 5)}")
    I(f"v_max3_u32 {vr(T + 6)}, {vr(T + 6)}, {vr(T + 7)}, {vr(T + nb - 1)}")
    I(f"v_max3_u32 {vr(T)}, {vr(T)}, {vr(T + 3)}, {vr(T + 6)}")
    if side:
        I(f"v_max_u32 {vr(T)}, {vr(T)}, {vr(T + 10)}")
    I(f"v_cmp_eq_u32 vcc, -1, {vr(T)}")
    I(f"s_cbranch_vccnz {p}_again")
    stamp(k, sr(sSeg), add=131)
    I("s_barrier")
    stamp(k, sr(sSeg), add=261)
    rd = lambda t: I(f"ds_read_b128 {vr(BR + 4 * (t % 8), 4)}, {vr(vRd)} offset:{t * 1024}")
    for t in range(LA):
        rd(t)
    I(f"s_add_u32 {sr(sSrc)}, {sr(sSrc)}, {src_step}")
    I(f"s_sub_u32 {sr(sM0)}, {sr(sC0)}, {sr(sM0)}")
    nxt = dma()
    if side:
        nxt = side["use"] + [None] * OPT.get("gl", 0) + nxt + side["load"]
    for t in range(nk):
        b = vr(BR + 4 * (t % 8), 4)
        for j in range(ntile):
            a = vr(ACC[j], 16)
            I(f"v_mfma_f32_32x32x16_bf16 {a}, {wreg(j, t)}, {b}, {a if t else 0}")
            if j == 0 and t + LA < nk:
                rd(t + LA)
            for _ in range(2):
                if nxt:
                    x = nxt.pop(0)
                    if x:
                        I(x)
    I(f"v_xor_b32 {vr(vRd)}, {vr(2)}, {vr(vRd)}")
    I(f"v_add_u32 v3, {sr(sC1)}, {vr(vRd)}")
    epilogue(k)
    I(f"s_add_u32 {sr(sSeg)}, {sr(sSeg)}, 1")
    stamp(k, sr(sSeg))
    I(f"s_cmp_lt_u32 {sr(sSeg)}, 64")
    I(f"s_cbranch_scc1 {p}_loop")
    I("s_branch all_exit")


def cvt16(k, dst, src):
    for r in range(8):
        k.I(f"v_cvt_pk_bf16_f32 {vr(dst + r)}, {vr(src + 2 * r)}, {vr(src + 2 * r + 1)}")


def st16(k, reg, voff, soff, off):
    k.I(f"buffer_store_dwordx4 {vr(reg, 4)}, {voff}, {sr(S_WS, 4)}, {sr(soff)} offen offset:{off} sc1")


def srd(k, s, karg, nbytes):
    k.I(f"s_load_dwordx2 {sr(s, 2)}, s[0:1], {karg}")
    k.I(f"s_mov_b32 {sr(s + 2)}, {nbytes}")
    k.I(f"s_mov_b32 {sr(s + 3)}, 0x00020000")


def rd_toggle(k):
    k.I(f"v_add_u32 v2, {BUFSZ}, {vr(vL)}")
    k.I(f"v_xor_b32 v2, v2, {vr(vL)}")


def own_flag(k, line):
    k.I(f"s_lshl_b32 {sr(sFlag)}, {sr(sIdx)}, 7")
    k.I(f"s_lshl_b32 {sr(sT0)}, {sr(sW)}, 2")
    k.I(f"s_add_u32 {sr(sFlag)}, {sr(sFlag)}, {sr(sT0)}")
    k.I(f"s_add_u32 {sr(sFlag)}, {sr(sFlag)}, {hex(fl(line))}")


def role_proj(k, isq):
    I = k.I
    p = "q" if isq else "kv"
    k.L(f"{p}_entry")
    consts(k, TROW[R_Q if isq else R_KV])
    srd(k, S_A, 16 if isq else 24, 576 * 8192)
    srd(k, S_B, 16 if isq else 32, 576 * 8192)
    I(f"s_lshl_b32 {sr(sC2)}, {sr(sW)}, 17")
    I(f"s_lshl_b32 {sr(sT0)}, {sr(sIdx)}, {9 if isq else 8}")
    I(f"s_add_u32 {sr(sC2)}, {sr(sC2)}, {sr(sT0)}")
    I(f"s_add_u32 {sr(sC3)}, {sr(sC2)}, {256 if isq else 0}")
    I("s_waitcnt vmcnt(0) lgkmcnt(0)")
    if isq:
        hold(k, "q")
    load_weights(k, [(S_A, sC2), (S_B, sC3)], 9, 8192, "nat")
    rd_toggle(k)
    own_flag(k, FL_Q if isq else FL_KV)
    I(f"s_mov_b32 {sr(sSrc)}, {hex(WS_XN)}")
    I(f"s_mov_b32 {sr(sPoll)}, {hex(fl(FL_XN))}")
    I(f"s_lshl_b32 {sr(sDst)}, {sr(sIdx)}, 14")
    I(f"s_lshl_b32 {sr(sT0)}, {sr(sW)}, {10 if isq else 12}")
    I(f"s_add_u32 {sr(sDst)}, {sr(sDst)}, {sr(sT0)}")
    I(f"s_add_u32 {sr(sDst)}, {sr(sDst)}, {hex(WS_Q if isq else WS_KV)}")

    if not isq:
        empty(k)
        I(f"s_lshl_b32 {sr(sDst2)}, {sr(sIdx)}, 13")
        I(f"s_lshl_b32 {sr(sT0)}, {sr(sW)}, 11")
        I(f"s_add_u32 {sr(sDst2)}, {sr(sDst2)}, {sr(sT0)}")
        I(f"s_add_u32 {sr(sDst2)}, {sr(sDst2)}, {hex(WS_KM)}")

    def ep(k):
        if k is None:
            return 4 if isq else 6
        if not isq:
            st16(k, FF, vr(vL), sDst2, 0)
            st16(k, FF, vr(vL), sDst2, 1024)
            k.I(f"s_add_u32 {sr(sDst2)}, {sr(sDst2)}, {32 * 8192}")
        for j in range(2):
            cvt16(k, EP + 8 * j, ACC[j])
            st16(k, EP + 8 * j, C(2 + j), sDst, 0)
            st16(k, EP + 8 * j + 4, C(2 + j), sDst, 512)
        k.I(f"s_add_u32 {sr(sDst)}, {sr(sDst)}, {32 * (8192 if isq else 16384)}")

    def ps(k, back=False):
        k.I(f"s_{'sub' if back else 'add'}_u32 {sr(sPoll)}, {sr(sPoll)}, 128")

    gemm(k, p, 2, [3, 3, 3], [False, not isq], ep, BUFSZ, ps)


def out2(k, step):
    st16(k, EP, vr(vL), sDst, 0)
    st16(k, EP + 4, vr(vL), sDst, 1024)
    k.I(f"s_add_u32 {sr(sT0)}, {sr(sDst)}, {AHEAD * step}")
    st16(k, FF, vr(vL), sT0, 0)
    st16(k, FF, vr(vL), sT0, 1024)
    k.I(f"s_add_u32 {sr(sDst)}, {sr(sDst)}, {step}")


def first2(k, step):
    empty(k)
    for a in range(AHEAD):
        k.I(f"s_add_u32 {sr(sT0)}, {sr(sDst)}, {a * step}")
        st16(k, FF, vr(vL), sT0, 0)
        st16(k, FF, vr(vL), sT0, 1024)


def role_gu(k):
    I = k.I
    k.L("gu_entry")
    consts(k, TROW[R_GU])
    srd(k, S_A, 64, 576 * 9216)
    srd(k, S_B, 72, 576 * 9216)
    I(f"s_mul_i32 {sr(sC2)}, {sr(sW)}, {16 * 9216}")
    I(f"s_lshl_b32 {sr(sT0)}, {sr(sIdx)}, 8")
    I(f"s_add_u32 {sr(sC2)}, {sr(sC2)}, {sr(sT0)}")
    I("s_waitcnt vmcnt(0) lgkmcnt(0)")
    hold(k, "gu")
    load_weights(k, [(S_A, sC2), (S_B, sC2)], 9, 9216, "std")
    rd_toggle(k)
    own_flag(k, FL_GU)
    I(f"s_mov_b32 {sr(sSrc)}, {hex(WS_H)}")
    I(f"s_mov_b32 {sr(sPoll)}, {hex(fl(FL_HN))}")
    I(f"s_lshl_b32 {sr(sDst)}, {sr(sIdx)}, 13")
    I(f"s_lshl_b32 {sr(sT0)}, {sr(sW)}, 11")
    I(f"s_add_u32 {sr(sDst)}, {sr(sDst)}, {sr(sT0)}")
    I(f"s_add_u32 {sr(sDst)}, {sr(sDst)}, {hex(WS_ACT)}")
    first2(k, 288 * 1024)
    CS, ST = 144, 176
    I(f"s_mov_b32 {sr(sC3)}, 0x3f803f80")
    for r in range(4):
        I(f"v_mov_b32 {vr(BR + r)}, {sr(sC3)}")
    for t in range(36):
        for j in range(2):
            a = vr(CS + 16 * j, 16)
            I(f"v_mfma_f32_32x32x16_bf16 {a}, {wreg(j, t)}, {vr(BR, 4)}, {a if t else 0}")
    I(f"v_and_b32 v4, {31 * 16}, {vr(vL)}")
    I(f"v_lshrrev_b32 v4, 1, v4")
    I(f"v_and_b32 v5, {32 * 16}, {vr(vL)}")
    I(f"v_lshl_add_u32 v5, v5, 1, v4")
    sS = sDst2
    I(f"s_mov_b32 {sr(sS)}, {hex(WS_S)}")
    ready(k, "gu")
    m, v = ST + 10, ST + 12
    load = [f"buffer_load_dwordx2 {vr(ST + 2 * j, 2)}, v5, {sr(S_WS, 4)}, {sr(sS)} offen offset:{256 * j} sc1"
            for j in range(4)]
    load.append(f"buffer_load_dwordx2 {vr(ST + 8, 2)}, v4, {sr(S_WS, 4)}, {sr(sS)} offen offset:2048 sc1")
    rn = lambda r: [f"v_cvt_pk_bf16_f32 {vr(r)}, {vr(r)}, {vr(r)}", f"v_lshlrev_b32 {vr(r)}, 16, {vr(r)}"]
    use = [f"v_pk_add_f32 {vr(ST, 2)}, {vr(ST, 2)}, {vr(ST + 2, 2)}",
           f"v_pk_add_f32 {vr(ST + 4, 2)}, {vr(ST + 4, 2)}, {vr(ST + 6, 2)}",
           f"v_pk_add_f32 {vr(ST + 2, 2)}, {vr(ST, 2)}, {vr(ST + 4, 2)}",
           f"v_pk_add_f32 {vr(ST, 2)}, {vr(ST, 2)}, {vr(ST + 4, 2)}",
           f"s_add_u32 {sr(sS)}, {sr(sS)}, 4096",
           f"v_permlane32_swap_b32 {vr(ST)}, {vr(ST + 2)}",
           f"v_permlane32_swap_b32 {vr(ST + 1)}, {vr(ST + 3)}",
           f"v_pk_add_f32 {vr(ST, 2)}, {vr(ST, 2)}, {vr(ST + 8, 2)}",
           f"v_pk_add_f32 {vr(ST, 2)}, {vr(ST, 2)}, {vr(ST + 2, 2)}",
           f"v_mul_f32 {vr(m)}, {f32(1 / 576)}, {vr(ST)}",
           f"v_mul_f32 {vr(v)}, {f32(1 / 576)}, {vr(ST + 1)}",
           f"v_fma_f32 {vr(v)}, -{vr(m)}, {vr(m)}, {vr(v)}",
           f"v_max_f32 {vr(v)}, 0, {vr(v)}"] + rn(m) + rn(v) + \
          [f"v_add_f32 {vr(v)}, {f32(1e-5)}, {vr(v)}"] + rn(v) + [f"v_sqrt_f32 {vr(v)}, {vr(v)}", "s_nop 0"] + rn(v) + \
          [f"v_rcp_f32 {vr(v)}, {vr(v)}", "s_nop 0", f"v_mul_f32 {vr(v)}, {vr(v)}, {vr(v)}"]

    def ep(k):
        if k is None:
            return 4
        for r in range(0, 32, 2):
            I(f"v_pk_fma_f32 {vr(ACC[0] + r, 2)}, {vr(CS + r, 2)}, {vr(m, 2)}, {vr(ACC[0] + r, 2)} op_sel_hi:[1,0,1] "
              f"neg_lo:[0,1,0] neg_hi:[0,1,0]")
        for r in range(0, 16, 2):
            I(f"v_pk_mul_f32 {vr(ACC[0] + r, 2)}, {vr(ACC[0] + r, 2)}, {vr(ACC[1] + r, 2)}")
        for r in range(0, 16, 2):
            I(f"v_pk_mul_f32 {vr(ACC[0] + r, 2)}, {vr(ACC[0] + r, 2)}, {vr(v, 2)} op_sel_hi:[1,0]")
        cvt16(k, EP, ACC[0])
        out2(k, 288 * 1024)

    gemm2(k, "gu", 2, 9, ep, BUFSZ, dict(load=load, use=use, check=[ST + 2 * j for j in range(5)]))


def role_red(k, dn):
    I = k.I
    p = "dn" if dn else "wo"
    rows = 576 if dn else 512
    k.L(f"{p}_entry")
    consts(k, TROW[R_DN if dn else R_WO])
    srd(k, S_A, 80 if dn else 40, 8 * rows * 1152)
    I(f"s_mul_i32 {sr(sC1)}, {sr(sIdx)}, 52")
    I(f"s_lshr_b32 {sr(sC1)}, {sr(sC1)}, 8")
    I(f"s_mul_i32 {sr(sT0)}, {sr(sC1)}, 5")
    I(f"s_sub_u32 {sr(sC3)}, {sr(sIdx)}, {sr(sT0)}")
    I(f"s_mul_i32 {sr(sC2)}, {sr(sC1)}, {rows * 1152}")
    I(f"s_mul_i32 {sr(sT0)}, {sr(sW)}, {16 * 1152}")
    I(f"s_add_u32 {sr(sC2)}, {sr(sC2)}, {sr(sT0)}")
    I(f"s_lshl_b32 {sr(sT0)}, {sr(sC3)}, 8")
    I(f"s_add_u32 {sr(sC2)}, {sr(sC2)}, {sr(sT0)}")
    I("s_waitcnt vmcnt(0) lgkmcnt(0)")
    hold(k, p)
    load_weights(k, [(S_A, sC2)], rows // 64, 1152, "std" if dn else "o")
    rd_toggle(k)
    own_flag(k, FL_DN if dn else FL_WO)
    I(f"s_mul_i32 {sr(sSrc)}, {sr(sC1)}, {rows * 64}")
    I(f"s_add_u32 {sr(sSrc)}, {sr(sSrc)}, {hex(WS_ACT if dn else WS_O)}")
    if dn:
        I(f"s_mul_i32 {sr(sT0)}, {sr(sC1)}, 18")
        I(f"v_add_u32 {C(4)}, {sr(sT0)}, {C(4)}")
        I(f"v_lshrrev_b32 v8, 2, {C(4)}")
        I(f"v_and_b32 {C(4)}, 3, {C(4)}")
        I(f"v_lshlrev_b32 {C(4)}, 2, {C(4)}")
        I(f"v_lshl_add_u32 {C(4)}, v8, 7, {C(4)}")
        I(f"s_mov_b32 {sr(sPoll)}, {hex(fl(FL_GU))}")
    else:
        I(f"s_lshl_b32 {sr(sPoll)}, {sr(sC1)}, 9")
        I(f"s_add_u32 {sr(sPoll)}, {sr(sPoll)}, {hex(fl(FL_O))}")
    I(f"s_lshl_b32 {sr(sT0)}, {sr(sC3)}, 2")
    I(f"s_add_u32 {sr(sT0)}, {sr(sT0)}, {sr(sW)}")
    I(f"s_lshl_b32 {sr(sDst)}, {sr(sT0)}, 11")
    I(f"s_mul_i32 {sr(sT1)}, {sr(sC1)}, {BUFSZ}")
    I(f"s_add_u32 {sr(sDst)}, {sr(sDst)}, {sr(sT1)}")
    I(f"s_add_u32 {sr(sDst)}, {sr(sDst)}, {hex(WS_DP if dn else WS_WP)}")
    I(f"s_add_u32 {sr(sT1)}, {sr(sDst)}, 0x4000000")
    I(f"s_cmp_lt_u32 {sr(sT0)}, 18")
    I(f"s_cselect_b32 {sr(sDst)}, {sr(sDst)}, {sr(sT1)}")

    first2(k, 8 * BUFSZ)
    ready(k, p)

    def ep(k):
        if k is None:
            return 4
        cvt16(k, EP, ACC[0])
        out2(k, 8 * BUFSZ)

    gemm2(k, p, 1, rows // 64, ep, 8 * rows * 64)


def red8(k, op, r, t):
    I = k.I
    for m in ("quad_perm:[1,0,3,2]", "quad_perm:[2,3,0,1]", "row_half_mirror"):
        I(f"{op}_dpp {vr(t)}, {vr(r)}, {vr(r)} {m} row_mask:0xf bank_mask:0xf")
        r, t = t, r
    return r


def sum_regs(k, regs, a, sq=False):
    I = k.I
    for i, r in enumerate(regs):
        d = a + i % 4
        if sq:
            I(f"v_mul_f32 {vr(d)}, {vr(r)}, {vr(r)}" if i < 4 else f"v_fmac_f32 {vr(d)}, {vr(r)}, {vr(r)}")
        elif i < 4:
            continue
        elif i < 8:
            I(f"v_add_f32 {vr(d)}, {vr(regs[i - 4])}, {vr(r)}")
        else:
            I(f"v_add_f32 {vr(d)}, {vr(d)}, {vr(r)}")
    I(f"v_add_f32 {vr(a)}, {vr(a)}, {vr(a + 1)}")
    I(f"v_add_f32 {vr(a + 2)}, {vr(a + 2)}, {vr(a + 3)}")
    I(f"v_add_f32 {vr(a)}, {vr(a)}, {vr(a + 2)}")


def unpack(k, dst, src, n):
    for r in range(n):
        k.I(f"v_lshlrev_b32 {vr(dst + 2 * r)}, 16, {vr(src + r)}")
        k.I(f"v_and_b32 {vr(dst + 2 * r + 1)}, 0xffff0000, {vr(src + r)}")


def rnd(k, r):
    k.I(f"v_cvt_pk_bf16_f32 {vr(r)}, {vr(r)}, {vr(r)}")
    k.I(f"v_lshlrev_b32 {vr(r)}, 16, {vr(r)}")


def normalise(k, x, n, mean, var, pk):
    I = k.I
    rnd(k, mean)
    rnd(k, var)
    I(f"v_add_f32 {vr(var)}, {f32(1e-5)}, {vr(var)}")
    rnd(k, var)
    I(f"v_sqrt_f32 {vr(var)}, {vr(var)}")
    rnd(k, var)
    I(f"v_rcp_f32 {vr(var)}, {vr(var)}")
    for r in range(n):
        I(f"v_sub_f32 {vr(x + r)}, {vr(x + r)}, {vr(mean)}")
    for r in range(n // 2):
        I(f"v_cvt_pk_bf16_f32 {vr(pk + r)}, {vr(x + 2 * r)}, {vr(x + 2 * r + 1)}")
    unpack(k, x, pk, n // 2)
    for r in range(n):
        I(f"v_mul_f32 {vr(x + r)}, {vr(x + r)}, {vr(var)}")
    for r in range(n // 2):
        I(f"v_cvt_pk_bf16_f32 {vr(pk + r)}, {vr(x + 2 * r)}, {vr(x + 2 * r + 1)}")


def role_ln(k):
    I = k.I
    k.L("ln_entry")
    consts(k, 6)
    I(f"s_cmp_lg_u32 {sr(sLn)}, 0")
    I("s_cbranch_scc1 ln_go")
    k.snap("z")
    I("v_mov_b64 v[8:9], 0")
    I("v_mov_b64 v[10:11], 0")
    I(f"s_mul_i32 {sr(sT0)}, {sr(sW)}, 10240")
    I(f"s_add_u32 {sr(sT0)}, {sr(sT0)}, {hex(WS_F)}")
    for i in range(10):
        I(f"buffer_store_dwordx4 v[8:11], {vr(vL)}, {sr(S_WS, 4)}, {sr(sT0)} offen offset:{(i % 4) * 1024} sc1")
        if i % 4 == 3:
            I(f"s_add_u32 {sr(sT0)}, {sr(sT0)}, 4096")
    I("s_waitcnt vmcnt(0)")
    I("s_barrier")
    I("v_mov_b32 v9, 1")
    I("s_mov_b64 exec, 1")
    I(f"global_store_dword v8, v9, {sr(S_DBG, 2)} offset:8 sc1")
    I("s_mov_b64 exec, -1")
    k.L("ln_go")
    k.restore("z")
    I("s_waitcnt vmcnt(0)")
    k.L("ln_loop")
    I(f"s_lshl_b32 {sr(sT0)}, {sr(sLn)}, 2")
    I(f"s_add_u32 {sr(sT0)}, {sr(sT0)}, {sr(sW)}")
    I(f"s_mul_i32 {sr(sT0)}, {sr(sT0)}, {8 * 1152}")
    for i in range(9):
        I(f"buffer_load_dwordx4 {vr(8 + 4 * i, 4)}, {C(2)}, {sr(S_X, 4)}, {sr(sT0)} offen offset:{i * 128}")
    X = 112
    unpack(k, X, 8, 36)
    sum_regs(k, list(range(X, X + 72)), 44)
    r = red8(k, "v_add_f32", 44, 45)
    I(f"v_mul_f32 v48, {f32(1 / 576)}, {vr(r)}")
    for i in range(72):
        I(f"v_sub_f32 {vr(184 + i)}, {vr(X + i)}, v48")
    sum_regs(k, list(range(184, 256)), 44, sq=True)
    r = red8(k, "v_add_f32", 44, 45)
    I(f"v_mul_f32 v49, {f32(1 / 576)}, {vr(r)}")
    normalise(k, X, 72, 48, 49, 8)
    I(f"s_mul_i32 {sr(sT0)}, {sr(sLn)}, {BUFSZ}")
    I(f"s_lshl_b32 {sr(sT1)}, {sr(sW)}, 7")
    I(f"s_add_u32 {sr(sT0)}, {sr(sT0)}, {sr(sT1)}")
    I(f"s_add_u32 {sr(sT0)}, {sr(sT0)}, {hex(WS_XN)}")
    for i in range(9):
        st16(k, 8 + 4 * i, C(0), sT0, 0)
        I(f"s_add_u32 {sr(sT0)}, {sr(sT0)}, 4096")
    I("s_waitcnt vmcnt(0)")
    wait_init(k, "ln")
    I(f"s_lshl_b32 {sr(sFlag)}, {sr(sLn)}, 7")
    I(f"s_lshl_b32 {sr(sT0)}, {sr(sW)}, 2")
    I(f"s_add_u32 {sr(sFlag)}, {sr(sFlag)}, {sr(sT0)}")
    I(f"s_add_u32 {sr(sFlag)}, {sr(sFlag)}, {hex(fl(FL_XN))}")
    I(f"s_add_u32 {sr(sT0)}, {sr(sLn)}, 1")
    put_flag(k, sr(sT0), add=400)
    I(f"s_add_u32 {sr(sLn)}, {sr(sLn)}, 60")
    I(f"s_cmp_lt_u32 {sr(sLn)}, 64")
    k.forget()
    I("s_cbranch_scc1 ln_loop")
    for r, nm in ((R_AT, "at"), (R_R1, "r1"), (R_R2, "r2")):
        I(f"s_cmp_eq_u32 {sr(sRole)}, {r}")
        I(f"s_cbranch_scc1 {nm}_entry")
    I("s_branch all_exit")


def acc_parts(k, A, P, n, ns):
    I = k.I
    for s in range(ns):
        for i in range(n):
            for r in range(4):
                src = P + 4 * (n * s + i) + r
                d = A + 8 * i + 2 * r
                if s == 0:
                    I(f"v_lshlrev_b32 {vr(d)}, 16, {vr(src)}")
                    I(f"v_and_b32 {vr(d + 1)}, 0xffff0000, {vr(src)}")
                else:
                    I(f"v_dot2c_f32_bf16 {vr(d)}, {sr(sC0)}, {vr(src)}")
                    I(f"v_dot2c_f32_bf16 {vr(d + 1)}, {sr(sC1)}, {vr(src)}")


def role_sum(k, last):
    I = k.I
    p = "r2" if last else "r1"
    k.L(f"{p}_entry")
    I(f"s_cmp_eq_u32 {sr(sW)}, 3")
    I("s_cbranch_scc1 all_exit")
    if last:
        srd(k, S_A, 88, 2048 * 1152)
    I(f"s_mov_b32 {sr(sC0)}, 0x3f80")
    I(f"s_mov_b32 {sr(sC1)}, 0x3f800000")
    I(f"s_mov_b32 {sr(sKn)}, 0x3f803f80")
    I(f"s_mul_i32 {sr(sT0)}, {sr(sIdx)}, 3")
    I(f"s_add_u32 {sr(sT0)}, {sr(sT0)}, {sr(sW)}")
    I(f"s_mul_i32 {sr(sC2)}, {sr(sT0)}, 57")
    I(f"s_lshr_b32 {sr(sC2)}, {sr(sC2)}, 9")
    I(f"s_mul_i32 {sr(sT1)}, {sr(sC2)}, 9")
    I(f"s_sub_u32 {sr(sC3)}, {sr(sT0)}, {sr(sT1)}")
    I(f"s_lshl_b32 {sr(sT0)}, {sr(sC3)}, 12")
    I(f"s_lshl_b32 {sr(sT1)}, {sr(sC2)}, 7")
    I(f"s_add_u32 {sr(sT0)}, {sr(sT0)}, {sr(sT1)}")
    I(f"v_add_u32 v3, {sr(sT0)}, {C(0)}")
    I(f"v_add_u32 {C(5)}, {sr(sT0)}, {C(5)}")
    I(f"s_lshl_b32 {sr(sT0)}, {sr(sC3)}, 7")
    I(f"s_mul_i32 {sr(sT1)}, {sr(sC2)}, {8 * 1152}")
    I(f"s_add_u32 {sr(sT0)}, {sr(sT0)}, {sr(sT1)}")
    I(f"v_add_u32 v6, {sr(sT0)}, {C(1)}")
    if not last:
        own_flag(k, FL_HN)
        empty(k)
        I(f"s_lshl_b32 {sr(sT0)}, {sr(sC3)}, 8")
        I(f"s_lshl_b32 {sr(sT1)}, {sr(sC2)}, 6")
        I(f"s_add_u32 {sr(sT0)}, {sr(sT0)}, {sr(sT1)}")
        I(f"v_add_u32 v7, {sr(sT0)}, {C(4)}")
        I(f"s_mov_b32 {sr(sM0)}, {hex(WS_S)}")
        I(f"s_mov_b32 s76, 0x01010101")
        I(f"s_mov_b32 s77, 0x01010101")
        for a in range(AHEAD):
            I(f"s_mov_b32 {sr(sT0)}, {hex(WS_H + a * BUFSZ)}")
            st16(k, FF, "v3", sT0, 0)
            I(f"s_mov_b32 {sr(sT0)}, {hex(WS_S + a * 4096)}")
            I(f"buffer_store_dwordx2 {vr(FF, 2)}, v7, {sr(S_WS, 4)}, {sr(sT0)} offen sc1")
        I("s_waitcnt vmcnt(0)")
        put_flag(k, 1, add=201)
    I(f"s_mov_b32 {sr(sPoll)}, {hex(fl(FL_DN if last else FL_WO))}")
    I("s_waitcnt lgkmcnt(0)")
    spin(k, f"{p}_sp", C(3), sr(sPoll), 1, wide=True)
    sRow, sH = sSrc, sDst2
    I(f"s_mov_b32 {sr(sSeg)}, 0")
    I(f"s_mov_b32 {sr(sRow)}, 0")
    I(f"s_mov_b32 {sr(sH)}, {hex(WS_H)}")
    I(f"s_mov_b32 {sr(sDst)}, {hex(WS_DP if last else WS_WP)}")
    P, A = 112, 24
    k.L(f"{p}_loop")
    if not last:
        for u in range(2):
            I(f"buffer_load_dwordx2 {vr(8 + 2 * u, 2)}, v6, {sr(S_X, 4)}, {sr(sRow)} offen offset:{16 * u}")
    k.L(f"{p}_again")
    if OPT.get("lk", 0) >> (4 if last else 1) & 1:
        look(k, f"{p}_look", C(5), sDst)
    if last:
        I(f"buffer_load_dwordx4 v[8:11], v3, {sr(S_WS, 4)}, {sr(sH)} offen sc1")
    for s_ in range(8):
        if s_:
            I(f"s_add_u32 {sr(sT0)}, {sr(sDst)}, {s_ * BUFSZ}")
        I(f"buffer_load_dwordx4 {vr(P + 4 * s_, 4)}, v3, {sr(S_WS, 4)}, {sr(sT0 if s_ else sDst)} offen sc1")
    I(f"s_sub_u32 {sr(sBud)}, {sr(sBud)}, 1")
    I("s_cbranch_scc1 all_exit")
    unpack(k, 60, 8, 4)
    I(f"v_max3_u32 v20, {vr(P)}, {vr(P + 4)}, {vr(8 if last else P)}")
    for s_ in range(1, 4):
        I(f"v_max3_u32 v20, v20, {vr(P + 8 * s_)}, {vr(P + 8 * s_ + 4)}")
    I(f"v_cmp_eq_u32 vcc, -1, v20")
    I(f"s_cbranch_vccnz {p}_again")
    stamp(k, sr(sSeg), add=131)
    acc_parts(k, A, P, 1, 8)
    for r in range(4):
        I(f"v_cvt_pk_bf16_f32 {vr(48 + r)}, {vr(A + 2 * r)}, {vr(A + 2 * r + 1)}")
    unpack(k, A, 48, 4)
    for r in range(8):
        I(f"v_add_f32 {vr(A + r)}, {vr(A + r)}, {vr(60 + r)}")
    for r in range(4):
        I(f"v_cvt_pk_bf16_f32 {vr(48 + r)}, {vr(A + 2 * r)}, {vr(A + 2 * r + 1)}")
    if last:
        fl_ = ("", " sc1", " nt", " sc0 sc1", " sc1 nt")[OPT.get("os", 0)]
        I(f"buffer_store_dwordx2 v[48:49], v6, {sr(S_A, 4)}, {sr(sRow)} offen{fl_}")
        I(f"buffer_store_dwordx2 v[50:51], v6, {sr(S_A, 4)}, {sr(sRow)} offen offset:16{fl_}")
    else:
        st16(k, 48, "v3", sH, 0)
        I(f"v_mov_b64 v[52:53], 0")
        for r in range(4):
            I(f"v_dot2c_f32_bf16 v52, {sr(sKn)}, {vr(48 + r)}")
            I(f"v_dot2c_f32_bf16 v53, {vr(48 + r)}, {vr(48 + r)}")
        a_, b_ = 52, 54
        for m in ("quad_perm:[1,0,3,2]", "quad_perm:[2,3,0,1]", "row_half_mirror"):
            for e in range(2):
                I(f"v_add_f32_dpp {vr(b_ + e)}, {vr(a_ + e)}, {vr(a_ + e)} {m} row_mask:0xf bank_mask:0xf")
            a_, b_ = b_, a_
        I(f"s_add_u32 {sr(sT0)}, {sr(sH)}, {AHEAD * BUFSZ}")
        I(f"s_add_u32 {sr(sT1)}, {sr(sM0)}, {AHEAD * 4096}")
        I("s_mov_b64 exec, s[76:77]")
        I(f"buffer_store_dwordx2 {vr(a_, 2)}, v7, {sr(S_WS, 4)}, {sr(sM0)} offen sc1")
        I(f"buffer_store_dwordx2 {vr(FF, 2)}, v7, {sr(S_WS, 4)}, {sr(sT1)} offen sc1")
        I("s_mov_b64 exec, -1")
        st16(k, FF, "v3", sT0, 0)
        I(f"s_add_u32 {sr(sM0)}, {sr(sM0)}, 4096")
    I(f"s_add_u32 {sr(sSeg)}, {sr(sSeg)}, 1")
    I(f"s_add_u32 {sr(sRow)}, {sr(sRow)}, {BUFSZ}")
    I(f"s_add_u32 {sr(sH)}, {sr(sH)}, {BUFSZ}")
    I(f"s_add_u32 {sr(sDst)}, {sr(sDst)}, {8 * BUFSZ}")
    stamp(k, sr(sSeg))
    I(f"s_cmp_lt_u32 {sr(sSeg)}, 64")
    k.forget()
    I(f"s_cbranch_scc1 {p}_loop")
    I("s_branch all_exit")


def role_at(k):
    I = k.I
    k.L("at_entry")
    consts(k, TROW[R_AT])
    own_flag(k, FL_O)
    empty(k)
    Q, KK, V, X, VM, S, SM, O, PK = 8, 24, 56, 112, 200, 136, 144, 152, 184
    sQ, sK, sKM = sSrc, sM0, sC3
    I(f"s_and_b32 {sr(sC1)}, {sr(sW)}, 1")
    I(f"s_lshr_b32 {sr(sSeg)}, {sr(sW)}, 1")
    I(f"s_lshl_b32 {sr(sT1)}, {sr(sIdx)}, 13")
    I("s_waitcnt vmcnt(0)")
    I(f"s_lshl_b32 {sr(sT0)}, {sr(sSeg)}, 18")
    I(f"s_add_u32 {sr(sT1)}, {sr(sT1)}, {sr(sT0)}")
    I(f"s_add_u32 {sr(sKM)}, {sr(sT1)}, {hex(WS_KM)}")
    I(f"s_lshl_b32 {sr(sK)}, {sr(sT1)}, 1")
    I(f"s_lshl_b32 {sr(sT0)}, {sr(sC1)}, 12")
    I(f"s_add_u32 {sr(sQ)}, {sr(sT1)}, {sr(sT0)}")
    I(f"s_add_u32 {sr(sQ)}, {sr(sQ)}, {hex(WS_Q)}")
    I(f"s_lshl_b32 {sr(sT0)}, {sr(sC1)}, 8")
    I(f"s_add_u32 {sr(sDst)}, {sr(sT1)}, {sr(sT0)}")
    I(f"s_add_u32 {sr(sDst)}, {sr(sDst)}, {hex(WS_O)}")
    I(f"s_mov_b32 {sr(sC0)}, {f32(128 ** -0.5 * 1.4426950408889634)}")
    for u in range(1, 4):
        I(f"v_add_u32 {vr(2 + u)}, {4096 * u}, {vr(vL)}")
    I(f"v_add_u32 {C(6)}, 4096, {C(0)}")
    I(f"v_lshlrev_b32 {C(7)}, 9, {C(2)}")

    def st_o(reg, sd):
        for u in range(4):
            st16(k, reg if reg == FF else reg + 4 * u, C(6 if u // 2 else 0), sd, (u % 2) * 2048)

    for a in range(0, AHEAD, 2):
        I(f"s_add_u32 {sr(sT0)}, {sr(sDst)}, {a * 256 * 1024}")
        st_o(FF, sT0)
    I(f"s_lshl_b32 {sr(sT0)}, {sr(sC1)}, 4")
    I(f"v_add_u32 {C(1)}, {sr(sT0)}, {C(1)}")
    for j in range(8):
        I(f"v_cmp_le_i32 {sr(sMask + 2 * j, 2)}, {8 * (j // 4) + j % 4}, {C(1)}")
    I(f"s_sub_u32 {sr(sT0)}, {FL_Q - FL_KV}, {sr(sIdx)}")
    I(f"s_lshr_b32 {sr(sT1)}, {sr(sIdx)}, 1")
    I(f"s_add_u32 {sr(sT0)}, {sr(sT0)}, {sr(sT1)}")
    I(f"s_lshl_b32 {sr(sT0)}, {sr(sT0)}, 7")
    I(f"v_mul_lo_u32 {C(3)}, {C(3)}, {sr(sT0)}")
    I(f"v_add_u32 {C(3)}, {C(3)}, {C(2)}")
    I(f"s_lshl_b32 {sr(sT0)}, {sr(sIdx)}, 7")
    I(f"s_add_u32 {sr(sPoll)}, {sr(sT0)}, {hex(fl(FL_KV))}")
    I(f"v_mov_b32 v6, {f32(-1e30)}")
    I(f"s_mov_b32 {sr(sKn)}, 0")
    I(f"s_mov_b32 s76, 0xff00ff00")
    I(f"s_mov_b32 s77, 0xff00ff00")
    I(f"v_mov_b64 {vr(X, 2)}, 0")
    for r in range(2, 16, 2):
        I(f"v_mov_b64 {vr(X + r, 2)}, 0")
    I("s_waitcnt vmcnt(0)")
    put_flag(k, 1, add=201)
    off = lambda u: vr(vL) if u == 0 else vr(2 + u)

    def known(lab, need):
        I(f"s_cmp_ge_u32 {sr(sKn)}, {need}")
        I(f"s_cbranch_scc1 {lab}_ok")
        spin(k, lab, C(3), sr(sPoll), need)
        r = red8(k, "v_min_u32", 96, 97)
        I(f"v_readfirstlane_b32 {sr(sKn)}, {vr(r)}")
        k.L(f"{lab}_ok")

    def ld_qk():
        for u in range(4):
            I(f"buffer_load_dwordx4 {vr(Q + 4 * u, 4)}, {vr(vL)}, {sr(S_WS, 4)}, {sr(sQ)} offen offset:{u * 1024} sc1")
            for kt in range(2):
                I(f"buffer_load_dwordx4 {vr(KK + 8 * u + 4 * kt, 4)}, {off(u)}, {sr(S_WS, 4)}, {sr(sK)} offen "
                  f"offset:{kt * 1024} sc1")

    def ld_v():
        for u in range(4):
            for et in range(2):
                I(f"buffer_load_dwordx4 {vr(V + 8 * u + 4 * et, 4)}, {off(u)}, {sr(S_WS, 4)}, {sr(sK)} offen "
                  f"offset:{2048 + et * 1024} sc1")

    I(f"s_add_u32 {sr(sNeed)}, {sr(sSeg)}, 1")
    known("at_k0", sr(sNeed))
    ld_qk()
    ld_v()
    I("s_waitcnt vmcnt(0)")
    k.L("at_loop")
    k.forget()
    for u in range(4):
        I(f"s_waitcnt vmcnt({12 + 3 * (3 - u)})")
        for kt in range(2):
            I(f"v_mfma_f32_16x16x32_bf16 {vr(S + 4 * kt, 4)}, {vr(KK + 8 * u + 4 * kt, 4)}, {vr(Q + 4 * u, 4)}, "
              f"{vr(S + 4 * kt, 4) if u else 0}")
    I(f"s_add_u32 {sr(sQ)}, {sr(sQ)}, {2 * 32 * 8192}")
    I(f"s_add_u32 {sr(sK)}, {sr(sK)}, {2 * 32 * 16384}")
    for j in range(8):
        I(f"v_cndmask_b32_e64 {vr(S + j)}, v6, {vr(S + j)}, {sr(sMask + 2 * j, 2)}")
    I(f"v_max3_f32 v2, {vr(S)}, {vr(S + 1)}, {vr(S + 2)}")
    I(f"v_max3_f32 v2, v2, {vr(S + 3)}, {vr(S + 4)}")
    I(f"v_max3_f32 v2, v2, {vr(S + 5)}, {vr(S + 6)}")
    I(f"v_max_f32 v2, v2, {vr(S + 7)}")
    I(f"s_add_u32 {sr(sNeed)}, {sr(sSeg)}, 3")
    I(f"s_min_u32 {sr(sNeed)}, {sr(sNeed)}, 64")
    known("at_k1", sr(sNeed))
    if OPT.get("lp", 1):
        k.L("at_look")
        I(f"buffer_load_dword v92, {C(7)}, {sr(S_WS, 4)}, {sr(sKM)} offen offset:{240 if OPT.get('lp', 1) == 1 else 1024} sc1")
        I(f"s_sub_u32 {sr(sBud)}, {sr(sBud)}, 1")
        I("s_cbranch_scc1 all_exit")
        I("s_waitcnt vmcnt(0)")
        I(f"v_cmp_eq_u32 vcc, -1, v92")
        I(f"s_cbranch_vccnz at_look")
    k.L("at_again")
    I("s_mov_b64 exec, s[76:77]")
    for u in range(4):
        I(f"buffer_load_dwordx4 {vr(X + 4 * u, 4)}, {off(u // 2)}, {sr(S_WS, 4)}, {sr(sKM)} offen "
          f"offset:{(u % 2) * 2048} sc1")
    I("s_mov_b64 exec, -1")
    for u in range(4):
        I(f"buffer_load_dwordx4 {vr(VM + 4 * u, 4)}, {off(u // 2)}, {sr(S_WS, 4)}, {sr(sKM)} offen "
          f"offset:{1024 + (u % 2) * 2048} sc1")
    I(f"s_sub_u32 {sr(sBud)}, {sr(sBud)}, 1")
    I("s_cbranch_scc1 all_exit")
    for u in range(4):
        I(f"v_mfma_f32_16x16x32_bf16 {vr(SM, 4)}, {vr(X + 4 * u, 4)}, {vr(Q + 4 * u, 4)}, {vr(SM, 4) if u else 0}")
    I(f"v_max3_u32 v92, {vr(X)}, {vr(X + 4)}, {vr(X + 8)}")
    I(f"v_max3_u32 v92, v92, {vr(X + 12)}, {vr(VM)}")
    I(f"v_max3_u32 v92, v92, {vr(VM + 4)}, {vr(VM + 8)}")
    I(f"v_max_u32 v92, v92, {vr(VM + 12)}")
    I(f"v_cmp_eq_u32 vcc, -1, v92")
    I(f"s_cbranch_vccnz at_again")
    stamp(k, sr(sSeg), add=131)
    I(f"s_add_u32 {sr(sKM)}, {sr(sKM)}, {2 * 32 * 8192}")
    I("s_mov_b32 exec_hi, 0")
    for r in range(4):
        I(f"v_mov_b32 {vr(SM + r)}, v6")
    I("s_mov_b32 exec_hi, -1")
    I(f"v_max3_f32 v2, v2, {vr(SM)}, {vr(SM + 1)}")
    I(f"v_max3_f32 v92, v2, {vr(SM + 2)}, {vr(SM + 3)}")
    I(f"v_max3_f32 v93, v2, {vr(SM + 2)}, {vr(SM + 3)}")
    I("v_permlane16_swap_b32 v92, v93")
    I("v_max_f32 v2, v92, v93")
    I("v_max_f32 v92, v92, v93")
    I("v_permlane32_swap_b32 v2, v92")
    I("v_max_f32 v2, v2, v92")
    I(f"v_mul_f32 v2, {sr(sC0)}, v2")
    for r in range(12):
        I(f"v_fma_f32 {vr(S + r)}, {vr(S + r)}, {sr(sC0)}, -v2")
    for r in range(12):
        I(f"v_exp_f32 {vr(S + r)}, {vr(S + r)}")
    for r in range(4):
        I(f"v_cvt_pk_bf16_f32 {vr(148 + r)}, {vr(S + 2 * r)}, {vr(S + 2 * r + 1)}")
    for r in (92, 94):
        I(f"v_cvt_pk_bf16_f32 {vr(r)}, {vr(SM)}, {vr(SM + 2)}")
        I(f"v_cvt_pk_bf16_f32 {vr(r + 1)}, {vr(SM + 1)}, {vr(SM + 3)}")
    Z = 88
    red = [f"v_add_f32 {vr(Z + i)}, {vr(S + i)}, {vr(S + 4 + i)}" for i in range(4)]
    red += [f"v_add_f32 {vr(Z + i)}, {vr(Z + i)}, {vr(S + 8 + i)}" for i in range(4)]
    red += [f"v_add_f32 {vr(Z)}, {vr(Z)}, {vr(Z + 1)}", f"v_add_f32 {vr(Z + 2)}, {vr(Z + 2)}, {vr(Z + 3)}",
            f"v_add_f32 {vr(Z + 1)}, {vr(Z)}, {vr(Z + 2)}", f"v_add_f32 {vr(Z)}, {vr(Z)}, {vr(Z + 2)}",
            f"v_permlane16_swap_b32 {vr(Z)}, {vr(Z + 1)}", f"v_add_f32 {vr(Z + 2)}, {vr(Z)}, {vr(Z + 1)}",
            f"v_add_f32 {vr(Z)}, {vr(Z)}, {vr(Z + 1)}", f"v_permlane32_swap_b32 {vr(Z)}, {vr(Z + 2)}",
            f"v_add_f32 {vr(Z)}, {vr(Z)}, {vr(Z + 2)}", f"v_rcp_f32 {vr(Z)}, {vr(Z)}"]
    red = ["v_permlane32_swap_b32 v92, v94", "v_permlane32_swap_b32 v93, v95"] + red
    for u in range(4):
        for et in range(2):
            I(f"v_mfma_f32_16x16x32_bf16 {vr(O + 8 * u + 4 * et, 4)}, {vr(V + 8 * u + 4 * et, 4)}, {vr(148, 4)}, 0")
            for _ in range(2):
                I(red.pop(0))
    for u in range(4):
        for et in range(2):
            I(f"v_mfma_f32_16x16x16_bf16 {vr(O + 8 * u + 4 * et, 4)}, {vr(VM + 4 * u + 2 * et, 2)}, "
              f"v[94:95], {vr(O + 8 * u + 4 * et, 4)}")
            if red:
                I(red.pop(0))
    for u in range(4):
        for r in range(0, 8, 2):
            I(f"v_pk_mul_f32 {vr(O + 8 * u + r, 2)}, {vr(O + 8 * u + r, 2)}, {vr(Z, 2)} op_sel_hi:[1,0]")
        for r in range(4):
            I(f"v_cvt_pk_bf16_f32 {vr(PK + 4 * u + r)}, {vr(O + 8 * u + 2 * r)}, {vr(O + 8 * u + 2 * r + 1)}")
        st16(k, PK + 4 * u, C(6 if u // 2 else 0), sDst, (u % 2) * 2048)
    I(f"s_add_u32 {sr(sSeg)}, {sr(sSeg)}, 2")
    I(f"s_sub_u32 {sr(sT1)}, {sr(sSeg)}, 1")
    stamp(k, sr(sT1))
    I(f"s_cmp_ge_u32 {sr(sSeg)}, 64")
    I("s_cbranch_scc1 all_exit")
    ld_qk()
    ld_v()
    I(f"s_add_u32 {sr(sT0)}, {sr(sDst)}, {AHEAD * 256 * 1024}")
    st_o(FF, sT0)
    I(f"s_add_u32 {sr(sDst)}, {sr(sDst)}, {2 * 256 * 1024}")
    I("s_branch at_loop")


def all_roles(k):
    role_proj(k, False)
    role_proj(k, True)
    role_gu(k)
    role_red(k, False)
    role_red(k, True)
    role_ln(k)
    role_sum(k, False)
    role_sum(k, True)
    role_at(k)
```

```python
import sys
sys.path.insert(0,'exp')
import full, h
for a in sys.argv[1:]:
    nm, _, o = a.partition(':')
    s,k=full.full_asm(opts=full.BEST+[x for x in o.split(',') if x])
    co=h.build(s, full.NAME, 14, "mk_"+nm, launch_lists=True)
    print(nm, h.L.address_register_problem(co, full.NAME, None), len(s))
    open(f"t_{nm}.s","w").write(s)
```

```python
from gen import K, vr, ar, sr
from lay import *

R_CH, R_KV, R_Q, R_AT, R_WO, R_R1, R_GU, R_DN, R_R2, R_NONE = range(10)
TROW = {R_KV: 0, R_Q: 1, R_GU: 2, R_WO: 3, R_DN: 4, R_AT: 5, R_R1: 6, R_R2: 6, R_NONE: 6}

S_WS, S_A, S_B, S_X = 4, 8, 12, 16
S_DBG = 24
sW, sIdx, sSeg, sNeed, sSrc, sDst, sFlag, sPoll, sBud, sM0, sT0, sT1, sT2, sT3, sIss, sLn, sRole, sKn, sW4k = range(26, 45)
sDst2, sC0, sC1, sC2, sC3 = range(45, 50)
sMask = 60
vL = 0
C = lambda i: vr(100 + i)
BUFSZ = 36864
OPT = {}
NL = [0]


def f32(x):
    return hex(int(np.float32(x).view(np.uint32)))


def role_map():
    m = [None] * 256
    groups = [(R_WO, g) for g in range(8)] + [(R_DN, g) for g in range(8)]
    order = [groups[(i // 2) + 8 * (i % 2)] for i in range(16)]
    rest = [(R_KV, i) for i in range(32)] + [(R_Q, i) for i in range(16)] + [(R_AT, i) for i in range(32)] + \
           [(R_GU, i) for i in range(36)] + [(R_R1, i) for i in range(12)] + [(R_R2, i) for i in range(12)] + \
           [(R_NONE, i) for i in range(4)]
    gi = 0
    for base, xs in ((0, range(1, 8)), (5, range(1, 8)), (10, (1, 2))):
        for x in xs:
            r, g = order[gi]
            gi += 1
            for j in range(5):
                m[(base + j) * 8 + x] = (r, g * 5 + j)
    for i in range(32):
        m[i * 8] = (R_CH, i)
    free = [wg for wg in range(256) if m[wg] is None]
    assert len(free) == len(rest)
    for wg, e in zip(free, rest):
        m[wg] = e
    ln = 0
    out = []
    lnidx = {}
    for r in (R_NONE, R_R2, R_R1, R_AT):
        for wg in range(256):
            if m[wg][0] == r:
                lnidx[wg] = ln
                ln += 1
    assert ln == 60
    for wg in range(256):
        r, i = m[wg]
        out.append(r | i << 8 | lnidx.get(wg, 255) << 16)
    return out


def lane_table():
    T = np.zeros((7, 64, 8), np.uint32)
    for l in range(64):
        q, p = l // 16, l % 16
        g, n16 = l // 16, l % 16
        r, c4 = n16 // 4, n16 % 4
        n, hi = l % 32, l // 32
        dm = lambda S: q * S + (p ^ (4 * q)) * 16
        tr = lambda HS: ((g // 2) * HS + r) * 256 + (4 * r + 2 * (g % 2) + c4 // 2) * 16 + (c4 % 2) * 8
        vk = ((n >> 3) & 1) * 1024 + hi * 256 + ((n >> 4) * 8 + (n & 7)) * 16
        vv = 2048 + (n // 16) * 1024 + hi * 256 + (n % 16) * 16
        vq = (n // 16) * 4096 + hi * 256 + (n % 16) * 16
        T[0, l, :6] = [dm(8192), tr(8), vk, vv, (l % 4) * 4, l * 16 if n16 >= 8 else 1024 + (g * 8 + n16) * 16]
        T[1, l, :5] = [dm(8192), tr(8), vq, vq + 8192, (l % 4) * 4]
        T[2, l, :6] = [dm(9216), tr(4), l * 16, 0, ((l % 36) // 3) * 128 + (l % 3) * 4, min(l // 4, 8) * 1024 + l % 4 * 128]
        T[3, l, :6] = [dm(1152), tr(4), l * 16, 0, ((l % 16) // 4) * 128 + (l % 4) * 4, l // 2 % 8 * 1024 + l % 2 * 256]
        T[4, l, :6] = [dm(1152), tr(4), l * 16, 0, l % 18, min(l, 8) * 1024]
        T[5, l, :6] = [g * 512 + n16 * 16, (n16 - 16 * (g // 2) - 4 * (g % 2)) & 0xffffffff, (l % 4) * 4,
                       1 if l % 8 >= 4 else 0, l * 8, l * 16 if n16 >= 8 else 1024 + (g * 8 + n16) * 16]
        nn, pp = l // 8, l % 8
        T[6, l, :6] = [pp * 512 + nn * 16, nn * 1152 + (pp // 2) * 32 + (pp % 2) * 8, nn * 1152 + pp * 16,
                       (l % 40) * 128, nn * 16 + pp % 2 * 8, pp * BUFSZ + nn % 4 * 1024]
    return T


def tables_text():
    s = ".p2align 8\n.type role_tbl,@object\nrole_tbl:\n"
    rm = role_map()
    for i in range(0, 256, 8):
        s += ".long " + ",".join(hex(x) for x in rm[i:i + 8]) + "\n"
    T = lane_table()
    T2 = T.reshape(7, 64, 2, 4).transpose(0, 2, 1, 3).reshape(-1, 8)
    for row in T2:
        s += ".long " + ",".join(hex(int(x)) for x in row) + "\n"
    s += f".size role_tbl, {1024 + T.size * 4}\n"
    return s


def entry(k):
    I = k.I
    I("s_cmp_ge_u32 s2, 256")
    I("s_cbranch_scc1 all_exit")
    I("s_and_b32 s3, s2, 7")
    I("s_cmp_eq_u32 s3, 0")
    I("s_cbranch_scc1 chain_entry")
    I("s_getpc_b64 s[64:65]")
    k.L("role_pc")
    I("s_add_u32 s64, s64, role_tbl-role_pc")
    I("s_addc_u32 s65, s65, 0")
    I("s_lshl_b32 s3, s2, 2")
    I(f"s_load_dword {sr(sRole)}, s[64:65], s3")
    I(f"s_load_dwordx2 {sr(S_WS, 2)}, s[0:1], 104")
    I(f"s_load_dwordx2 {sr(S_DBG, 2)}, s[0:1], 96")
    I(f"s_load_dwordx2 {sr(S_X, 2)}, s[0:1], 0")
    I("v_lshrrev_b32 v8, 6, v0")
    I(f"v_readfirstlane_b32 {sr(sW)}, v8")
    I("v_and_b32 v0, 63, v0")
    I(f"v_lshlrev_b32 {vr(vL)}, 4, v0")
    I(f"s_mov_b32 {sr(S_WS + 2)}, {hex(WS_BYTES)}")
    I(f"s_mov_b32 {sr(S_WS + 3)}, 0x00020000")
    I(f"s_mov_b32 {sr(S_X + 2)}, {2048 * 1152}")
    I(f"s_mov_b32 {sr(S_X + 3)}, 0x00020000")
    I(f"s_mov_b32 {sr(sBud)}, 0x40000")
    I(f"s_lshl_b32 {sr(sW4k)}, {sr(sW)}, 12")
    I("s_waitcnt lgkmcnt(0)")
    I(f"s_bfe_u32 {sr(sIdx)}, {sr(sRole)}, 0x80008")
    I(f"s_bfe_u32 {sr(sLn)}, {sr(sRole)}, 0x80010")
    I(f"s_and_b32 {sr(sRole)}, {sr(sRole)}, 255")
    stamp_base(k, sW)
    stamp(k, 200)
    for r in range(10):
        if OPT.get("off", 0) >> r & 1:
            I(f"s_cmp_eq_u32 {sr(sRole)}, {r}")
            I(f"s_cbranch_scc1 {'all_exit' if r in (R_KV, R_Q, R_GU, R_WO, R_DN) else 'role_off'}")
    for r, nm in ((R_KV, "kv"), (R_Q, "q"), (R_GU, "gu"), (R_WO, "wo"), (R_DN, "dn")):
        I(f"s_cmp_eq_u32 {sr(sRole)}, {r}")
        I(f"s_cbranch_scc1 {nm}_entry")
    I("s_branch ln_entry")
    k.L("role_off")
    I(f"s_mov_b32 {sr(sRole)}, {R_NONE}")
    I("s_branch ln_entry")


def consts(k, row):
    I = k.I
    I(f"v_add_u32 v8, {1024 + row * 2048}, {vr(vL)}")
    I(f"global_load_dwordx4 {vr(100, 4)}, v8, s[64:65]")
    I(f"global_load_dwordx4 {vr(104, 4)}, v8, s[64:65] offset:1024")


def wait_init(k, p):
    I = k.I
    I("v_mov_b32 v8, 0")
    k.L(f"{p}_init")
    I(f"global_load_dword v9, v8, {sr(S_DBG, 2)} offset:8 sc1")
    I(f"s_sub_u32 {sr(sBud)}, {sr(sBud)}, 1")
    I("s_cbranch_scc1 all_exit")
    I("s_waitcnt vmcnt(0)")
    I(f"v_readfirstlane_b32 {sr(sT0)}, v9")
    I(f"s_cmp_eq_u32 {sr(sT0)}, 0")
    I(f"s_cbranch_scc1 {p}_init")


def hold(k, p):
    if not OPT.get("hold", 0) >> {"gu": 0, "dn": 1, "wo": 2, "q": 3}[p] & 1:
        return
    I = k.I
    I("v_mov_b32 v8, 0")
    k.L(f"{p}_hold")
    I(f"global_load_dword v9, v8, {sr(S_DBG, 2)} offset:128 sc1")
    I(f"s_sub_u32 {sr(sBud)}, {sr(sBud)}, 1")
    I("s_cbranch_scc1 all_exit")
    I("s_waitcnt vmcnt(0)")
    I(f"v_readfirstlane_b32 {sr(sT0)}, v9")
    I(f"s_cmp_lt_u32 {sr(sT0)}, {OPT.get('hn', 32)}")
    I(f"s_cbranch_scc1 {p}_hold")


def stamp(k, val, t0=97, t1=99, add=0, src=None):
    if not OPT.get("ts"):
        return
    I = k.I
    if OPT["ts"] >= 2 and isinstance(val, str):
        if (src is not None and src < 70) or (OPT["ts"] == 2 and add not in (0, 65, 400)) or (OPT["ts"] == 4 and src is None):
            return
        NL[0] += 1
        for x in (f"s_and_b32 s55, {val}, 7" if OPT["ts"] == 2 else f"s_cmp_lt_u32 {val}, {OPT.get('tf', 63)}", f"s_cbranch_scc1 lst_{NL[0]}", "s_memrealtime s[52:53]", "s_nop 4",
                  f"v_mov_b32 {vr(t1)}, {val}", f"v_lshlrev_b32 {vr(t1)}, 2, {vr(t1)}", "s_waitcnt lgkmcnt(0)",
                  f"v_mov_b32 {vr(t0)}, s{src or 52}", "s_mov_b64 exec, 1", "s_nop 1",
                  f"buffer_store_dword {vr(t0)}, {vr(t1)}, {sr(S_WS, 4)}, s54 offen offset:{4 * add}",
                  "s_mov_b64 exec, -1", "s_waitcnt vmcnt(0)" if OPT["ts"] == 2 else "s_nop 0", f"lst_{NL[0]}:"):
            k.raw("\t" + x)
        return
    if src is None:
        I("s_memrealtime s[52:53]")
    I(f"v_mov_b32 {vr(t1)}, {val}")
    I(f"v_lshlrev_b32 {vr(t1)}, 2, {vr(t1)}")
    I("s_waitcnt lgkmcnt(0)")
    I(f"v_mov_b32 {vr(t0)}, s{src or 52}")
    I(f"s_mov_b64 exec, 1")
    I(f"buffer_store_dword {vr(t0)}, {vr(t1)}, {sr(S_WS, 4)}, s54 offen offset:{4 * add}")
    I(f"s_mov_b64 exec, -1")


def stamp_base(k, sw):
    if not OPT.get("ts"):
        return
    k.I(f"s_lshl_b32 s54, s2, 13")
    k.I(f"s_lshl_b32 s55, {sr(sw)}, 11")
    k.I(f"s_add_u32 s54, s54, s55")
    k.I(f"s_add_u32 s54, s54, {hex(WS_TS)}")


def put_flag(k, val, tmp=98, add=0):
    I = k.I
    stamp(k, val, add=add)
    I(f"v_mov_b32 {vr(tmp)}, {val}")
    I(f"s_mov_b64 exec, 1")
    I(f"buffer_store_dword {vr(tmp)}, off, {sr(S_WS, 4)}, {sr(sFlag)} sc1")
    I(f"s_mov_b64 exec, -1")


def spin(k, lab, voff, soff, need, wide=False, dst=96):
    I = k.I
    k.L(lab)
    if wide:
        I(f"buffer_load_dwordx4 {vr(92, 4)}, {voff}, {sr(S_WS, 4)}, {soff} offen sc1")
    else:
        I(f"buffer_load_dword {vr(dst)}, {voff}, {sr(S_WS, 4)}, {soff} offen sc1")
    I(f"s_sub_u32 {sr(sBud)}, {sr(sBud)}, 1")
    I("s_cbranch_scc1 all_exit")
    I("s_waitcnt vmcnt(0)")
    if wide:
        I(f"v_min_u32 {vr(92)}, {vr(92)}, {vr(93)}")
        I(f"v_min3_u32 {vr(dst)}, {vr(92)}, {vr(94)}, {vr(95)}")
    I(f"v_cmp_gt_u32 vcc, {need}, {vr(dst)}")
    I(f"s_cbranch_vccnz {lab}")


def look(k, lab, voff, soff, off=0):
    I = k.I
    k.L(lab)
    I(f"buffer_load_dword v92, {voff}, {sr(S_WS, 4)}, {sr(soff)} offen offset:{off} sc1")
    I(f"s_sub_u32 {sr(sBud)}, {sr(sBud)}, 1")
    I("s_cbranch_scc1 all_exit")
    I("s_waitcnt vmcnt(0)")
    I(f"v_cmp_eq_u32 vcc, -1, v92")
    I(f"s_cbranch_vccnz {lab}")


def wreg(t, ks, off=0, n=4):
    i = (36 * t + ks) * 4
    if i < 256:
        return ar(i + off, n)
    return vr(112 + i - 256 + off, n)


ROWMAP = {
    "nat": lambda t, half: 16 * t + 4 * half,
    "std": lambda t, half: 16 * t + 8 * half,
    "o": lambda t, half: 32 * (t // 2) + 16 * half + 8 * (t % 2),
}


def load_weights(k, mats, nslab, S, perm):
    I = k.I
    N = len(mats) * nslab

    def dma(n):
        d, base = mats[n // nslab]
        sl = n % nslab
        for i in range(4):
            I(f"s_add_u32 {sr(sT0)}, {sr(base)}, {(64 * sl + 4 * i) * S}")
            I(f"s_add_u32 m0, {sr(sW4k)}, {(n % 10) * 16384 + i * 1024}")
            I(f"buffer_load_dwordx4 {C(0)}, {sr(d, 4)}, {sr(sT0)} offen nt lds")
        k.tag(f"slab{n}")

    for n in range(min(9, N)):
        dma(n)
    I(f"s_lshl_b32 {sr(sT0)}, {sr(sW)}, 6")
    I(f"v_xor_b32 {C(1)}, {sr(sT0)}, {C(1)}")
    for n in range(N):
        k.wait_tag(f"slab{n}")
        I("s_waitcnt lgkmcnt(0)")
        I("s_barrier")
        if n + 9 < N:
            dma(n + 9)
        I(f"v_add_u32 v8, {(n % 10) * 16384}, {C(1)}")
        for t in range(4):
            for half in range(2):
                I(f"ds_read_b64_tr_b16 {wreg(n // nslab, 4 * (n % nslab) + t, 2 * half, 2)}, v8 "
                  f"offset:{ROWMAP[perm](t, half) * 256}")
    I("s_waitcnt lgkmcnt(0)")
    I("s_barrier")


ACC = [8, 24]
BR = 40
EP = 72
vRd = 1


def gemm(k, p, ntile, per, swap, epilogue, src_step, poll_step, extra=None):
    I = k.I
    nk = 4 * sum(per)
    start = [0, 4 * per[0], 4 * (per[0] + per[1])]
    LA = 6 if ntile == 1 else 3

    def dma_all():
        for c in range(3):
            if c == 0:
                I(f"s_mov_b32 m0, {sr(sM0)}")
                so = sSrc
            else:
                d = start[c] * 1024
                if per[c] != per[0]:
                    I(f"s_mul_i32 {sr(sT1)}, {sr(sW)}, {(per[0] - per[c]) * 1024}")
                    I(f"s_sub_u32 {sr(sT1)}, {d}, {sr(sT1)}")
                    I(f"s_add_u32 m0, {sr(sM0)}, {sr(sT1)}")
                    I(f"s_add_u32 {sr(sT0)}, {sr(sSrc)}, {sr(sT1)}")
                else:
                    I(f"s_add_u32 m0, {sr(sM0)}, {d}")
                    I(f"s_add_u32 {sr(sT0)}, {sr(sSrc)}, {d}")
                so = sT0
            for j in range(per[c]):
                I(f"buffer_load_dwordx4 {vr(vL)}, {sr(S_WS, 4)}, {sr(so)} offen offset:{j * 1024} sc1 lds")
        I(f"s_add_u32 {sr(sSrc)}, {sr(sSrc)}, {src_step}")
        I(f"s_sub_u32 {sr(sM0)}, {sr(sC0)}, {sr(sM0)}")

    NS = epilogue(None)
    I(f"s_mul_i32 {sr(sT0)}, {sr(sW)}, {per[0] * 1024}")
    I(f"s_add_u32 {sr(sSrc)}, {sr(sSrc)}, {sr(sT0)}")
    I(f"s_mov_b32 {sr(sM0)}, {sr(sT0)}")
    I(f"s_lshl_b32 {sr(sC0)}, {sr(sT0)}, 1")
    I(f"s_add_u32 {sr(sC0)}, {sr(sC0)}, {BUFSZ}")
    I(f"v_mov_b32 {vr(vRd)}, {vr(vL)}")
    I(f"s_mov_b32 {sr(sSeg)}, 0")
    I(f"s_mov_b32 {sr(sNeed)}, 1")
    stamp(k, 201)
    wait_init(k, p)
    I(f"s_branch {p}_spin")
    k.L(f"{p}_loop")
    k.forget()
    I(f"s_waitcnt vmcnt({per[1] + per[2] + NS})")
    I("s_barrier")
    if OPT.get("ts"):
        I("s_memrealtime s[56:57]")
    I(f"buffer_load_dword {vr(96)}, {C(4)}, {sr(S_WS, 4)}, {sr(sPoll)} offen sc1")
    k.forget()

    def rd(t):
        if t == start[1]:
            I(f"s_waitcnt vmcnt({per[2] + NS + 1})")
            I("s_barrier")
        if t == start[2]:
            I(f"s_waitcnt vmcnt(0)")
            I("s_barrier")
            put_flag(k, sr(sSeg))
            I(f"v_cmp_gt_u32 vcc, {sr(sNeed)}, {vr(96)}")
            I(f"s_mov_b32 {sr(sIss)}, 0")
            I(f"s_cbranch_vccnz {p}_late")
            I(f"s_cmp_eq_u32 {sr(sSeg)}, 63")
            I(f"s_cbranch_scc1 {p}_late")
            dma_all()
            I(f"s_mov_b32 {sr(sIss)}, 1")
            k.L(f"{p}_late")
        I(f"ds_read_b128 {vr(BR + 4 * (t % 8), 4)}, {vr(vRd)} offset:{t * 1024}")

    for t in range(LA):
        rd(t)
    for t in range(nk):
        b = vr(BR + 4 * (t % 8), 4)
        for j in range(ntile):
            a = vr(ACC[j], 16)
            x, y = (b, wreg(j, t)) if swap[j] else (wreg(j, t), b)
            I(f"v_mfma_f32_32x32x16_bf16 {a}, {x}, {y}, {a if t else 0}")
            if j == 0 and t + LA < nk:
                rd(t + LA)
    I(f"v_xor_b32 {vr(vRd)}, {vr(2)}, {vr(vRd)}")
    epilogue(k)
    if OPT.get("ts"):
        I("s_memrealtime s[58:59]")
    I(f"s_add_u32 {sr(sSeg)}, {sr(sSeg)}, 1")
    I(f"s_add_u32 {sr(sNeed)}, {sr(sNeed)}, 1")
    poll_step(k)
    I(f"s_cmp_eq_u32 {sr(sIss)}, 1")
    I(f"s_cbranch_scc1 {p}_loop")
    I("s_waitcnt vmcnt(0)")
    put_flag(k, sr(sSeg), add=65)
    stamp(k, sr(sSeg), add=260, src=56)
    stamp(k, sr(sSeg), add=330, src=58)
    I(f"s_cmp_eq_u32 {sr(sSeg)}, 64")
    I("s_cbranch_scc1 all_exit")
    I(f"s_sub_u32 {sr(sNeed)}, {sr(sNeed)}, 1")
    poll_step(k, back=True)
    k.L(f"{p}_spin")
    spin(k, f"{p}_sp", C(4), sr(sPoll), sr(sNeed))
    stamp(k, sr(sNeed), add=130)
    dma_all()
    for _ in range(NS):
        I(f"buffer_load_dword {vr(97)}, {C(4)}, {sr(S_WS, 4)}, {sr(sPoll)} offen sc1")
    k.forget()
    I(f"s_add_u32 {sr(sNeed)}, {sr(sNeed)}, 1")
    poll_step(k)
    I(f"s_branch {p}_loop")


FF = 108


def empty(k):
    k.I(f"v_mov_b64 {vr(FF, 2)}, -1")
    k.I(f"v_mov_b64 {vr(FF + 2, 2)}, -1")


def ready(k, p):
    k.I("s_waitcnt vmcnt(0)")
    wait_init(k, p)
    put_flag(k, 1, add=201)


def gemm2(k, p, ntile, nb, epilogue, src_step, dst_step, side=None):
    I = k.I
    nk = 4 * nb
    LA = 6 if ntile == 1 else 3

    def dma():
        out = []
        for j in range(nb):
            if j == 0:
                out.append(f"s_mov_b32 m0, {sr(sM0)}")
            elif j % 4 == 0:
                out.append(f"s_add_u32 m0, {sr(sM0)}, {j * 1024}")
                out.append(f"s_add_u32 {sr(sT0)}, {sr(sSrc)}, {j * 1024}")
            out.append(f"buffer_load_dwordx4 {vr(vL)}, {sr(S_WS, 4)}, {sr(sSrc if j < 4 else sT0)} offen "
                       f"offset:{(j % 4) * 1024} sc1 lds")
        return out

    NS = epilogue(None)
    I(f"s_mul_i32 {sr(sC1)}, {sr(sW)}, {nb * 1024}")
    I(f"s_add_u32 {sr(sSrc)}, {sr(sSrc)}, {sr(sC1)}")
    I(f"s_mov_b32 {sr(sM0)}, {sr(sC1)}")
    I(f"s_lshl_b32 {sr(sC0)}, {sr(sC1)}, 1")
    I(f"s_add_u32 {sr(sC0)}, {sr(sC0)}, {BUFSZ}")
    I(f"v_mov_b32 {vr(vRd)}, {vr(vL)}")
    I(f"s_mov_b32 {sr(sSeg)}, 0")
    spin(k, f"{p}_sp", C(4), sr(sPoll), 1)
    I(f"v_add_u32 v3, {sr(sC1)}, {vr(vRd)}")
    k.L(f"{p}_again")
    if OPT.get("lk", 0) >> {"wo": 0, "gu": 2, "dn": 3}[p] & 1:
        look(k, f"{p}_look", C(5), sSrc)
    for x in dma() + (side["load"] if side else []):
        I(x)
    I(f"s_sub_u32 {sr(sBud)}, {sr(sBud)}, 1")
    I("s_cbranch_scc1 all_exit")
    I("s_waitcnt vmcnt(0)")
    k.L(f"{p}_loop")
    k.forget()
    I(f"s_waitcnt vmcnt({NS})")
    T = 88
    crd = [f"ds_read2st64_b32 {vr(T + j, 2)}, v3 offset0:{4 * j} offset1:{4 * j + 4}" if j + 1 < nb else
           f"ds_read_b32 {vr(T + j)}, v3 offset:{1024 * j}" for j in range(0, nb, 2)]
    chk = []
    if side:
        c = side["check"]
        chk += [f"v_max3_u32 {vr(T + 10)}, {vr(c[0])}, {vr(c[1])}, {vr(c[2])}",
                f"v_max3_u32 {vr(T + 10)}, {vr(T + 10)}, {vr(c[3])}, {vr(c[4])}"]
    chk += [f"v_max3_u32 {vr(T)}, {vr(T)}, {vr(T + 1)}, {vr(T + 2)}",
            f"v_max3_u32 {vr(T + 3)}, {vr(T + 3)}, {vr(T + 4)}, {vr(T + 5)}",
            f"v_max3_u32 {vr(T + 6)}, {vr(T + 6)}, {vr(T + 7)}, {vr(T + nb - 1)}",
            f"v_max3_u32 {vr(T)}, {vr(T)}, {vr(T + 3)}, {vr(T + 6)}"]
    if side:
        chk += [f"v_max_u32 {vr(T)}, {vr(T)}, {vr(T + 10)}"]
    chk += [f"v_cmp_eq_u32 vcc, -1, {vr(T)}"]
    for x in crd + chk:
        I(x)
    I(f"s_cbranch_vccnz {p}_again")
    stamp(k, sr(sSeg), add=131)
    I("s_barrier")
    stamp(k, sr(sSeg), add=261)
    cy = OPT.get("ts") == 4
    if cy:
        k.raw("\ts_mov_b32 s78, s56\n\ts_memtime s[56:57]")
    rd = lambda t: I(f"ds_read_b128 {vr(BR + 4 * (t % 8), 4)}, {vr(vRd)} offset:{t * 1024}")
    for t in range(LA):
        rd(t)
    I(f"s_add_u32 {sr(sSrc)}, {sr(sSrc)}, {src_step}")
    I(f"s_sub_u32 {sr(sM0)}, {sr(sC0)}, {sr(sM0)}")
    spread = lambda xs: sum([[x] + [None] * (OPT.get("sp", 0) if x.startswith("buffer") else 0) for x in xs], [])
    nxt = spread(marks(dst_step) + dma())
    if side:
        nxt = side["use"] + [None] * OPT.get("gl", 0) + nxt + spread(side["load"])
    else:
        nxt = [None] * max(0, min(OPT.get("gw", 0), 2 * nk - len(nxt))) + nxt
    late = OPT.get("g2" + p, 0)
    if late:
        def second():
            k.raw(f"\ts_cbranch_vccz {p}_have")
            for x in dma() + (side["load"] if side else []):
                k.raw("\t" + x)
                if x.startswith("s_") and " m0," in x:
                    k.raw("\ts_nop 0")
            k.raw(f"{p}_have:")
        tl = ["s_waitcnt vmcnt(0)"] + crd + [None] * 4 + chk + [None, second]
        nxt = [f"v_xor_b32 v3, {vr(2)}, {vr(vRd)}", f"v_add_u32 v3, {sr(sC1)}, v3"] + nxt
        gap = 2 * nk * ntile - late - len(tl) - len(nxt)
        assert gap >= 0
        nxt += [None] * gap + tl
    for t in range(nk):
        b = vr(BR + 4 * (t % 8), 4)
        for j in range(ntile):
            a = vr(ACC[j], 16)
            I(f"v_mfma_f32_32x32x16_bf16 {a}, {wreg(j, t)}, {b}, {a if t else 0}")
            if j == 0 and t + LA < nk:
                rd(t + LA)
            for _ in range(2):
                if nxt:
                    x = nxt.pop(0)
                    if callable(x):
                        x()
                    elif x:
                        I(x)
    I(f"v_xor_b32 {vr(vRd)}, {vr(2)}, {vr(vRd)}")
    I(f"v_add_u32 v3, {sr(sC1)}, {vr(vRd)}")
    if cy:
        k.raw("\ts_memtime s[58:59]")
    epilogue(k)
    if cy:
        k.raw("\ts_memtime s[60:61]\n\ts_waitcnt lgkmcnt(0)\n\ts_sub_u32 s70, s58, s56\n\ts_sub_u32 s71, s60, s58\n\ts_sub_u32 s72, s56, s78")
        stamp(k, sr(sSeg), add=0, src=70)
        stamp(k, sr(sSeg), add=65, src=71)
        stamp(k, sr(sSeg), add=130, src=72)
    I(f"s_add_u32 {sr(sSeg)}, {sr(sSeg)}, 1")
    stamp(k, sr(sSeg))
    I(f"s_cmp_lt_u32 {sr(sSeg)}, 64")
    I(f"s_cbranch_scc1 {p}_loop")
    I("s_branch all_exit")


def cvt16(k, dst, src):
    for r in range(8):
        k.I(f"v_cvt_pk_bf16_f32 {vr(dst + r)}, {vr(src + 2 * r)}, {vr(src + 2 * r + 1)}")


def st16(k, reg, voff, soff, off):
    k.I(f"buffer_store_dwordx4 {vr(reg, 4)}, {voff}, {sr(S_WS, 4)}, {sr(soff)} offen offset:{off} sc1")


def srd(k, s, karg, nbytes):
    k.I(f"s_load_dwordx2 {sr(s, 2)}, s[0:1], {karg}")
    k.I(f"s_mov_b32 {sr(s + 2)}, {nbytes}")
    k.I(f"s_mov_b32 {sr(s + 3)}, 0x00020000")


def rd_toggle(k):
    k.I(f"v_add_u32 v2, {BUFSZ}, {vr(vL)}")
    k.I(f"v_xor_b32 v2, v2, {vr(vL)}")


def own_flag(k, line):
    k.I(f"s_lshl_b32 {sr(sFlag)}, {sr(sIdx)}, 7")
    k.I(f"s_lshl_b32 {sr(sT0)}, {sr(sW)}, 2")
    k.I(f"s_add_u32 {sr(sFlag)}, {sr(sFlag)}, {sr(sT0)}")
    k.I(f"s_add_u32 {sr(sFlag)}, {sr(sFlag)}, {hex(fl(line))}")


def role_proj(k, isq):
    I = k.I
    p = "q" if isq else "kv"
    k.L(f"{p}_entry")
    consts(k, TROW[R_Q if isq else R_KV])
    srd(k, S_A, 16 if isq else 24, 576 * 8192)
    srd(k, S_B, 16 if isq else 32, 576 * 8192)
    I(f"s_lshl_b32 {sr(sC2)}, {sr(sW)}, 17")
    I(f"s_lshl_b32 {sr(sT0)}, {sr(sIdx)}, {9 if isq else 8}")
    I(f"s_add_u32 {sr(sC2)}, {sr(sC2)}, {sr(sT0)}")
    I(f"s_add_u32 {sr(sC3)}, {sr(sC2)}, {256 if isq else 0}")
    I("s_waitcnt vmcnt(0) lgkmcnt(0)")
    if isq:
        hold(k, "q")
    load_weights(k, [(S_A, sC2), (S_B, sC3)], 9, 8192, "nat")
    rd_toggle(k)
    own_flag(k, FL_Q if isq else FL_KV)
    I(f"s_mov_b32 {sr(sSrc)}, {hex(WS_XN)}")
    I(f"s_mov_b32 {sr(sPoll)}, {hex(fl(FL_XN))}")
    I(f"s_lshl_b32 {sr(sDst)}, {sr(sIdx)}, 14")
    I(f"s_lshl_b32 {sr(sT0)}, {sr(sW)}, {10 if isq else 12}")
    I(f"s_add_u32 {sr(sDst)}, {sr(sDst)}, {sr(sT0)}")
    I(f"s_add_u32 {sr(sDst)}, {sr(sDst)}, {hex(WS_Q if isq else WS_KV)}")

    if not isq:
        empty(k)
        I(f"s_lshl_b32 {sr(sDst2)}, {sr(sIdx)}, 13")
        I(f"s_lshl_b32 {sr(sT0)}, {sr(sW)}, 11")
        I(f"s_add_u32 {sr(sDst2)}, {sr(sDst2)}, {sr(sT0)}")
        I(f"s_add_u32 {sr(sDst2)}, {sr(sDst2)}, {hex(WS_KM)}")

    def ep(k):
        if k is None:
            return 4 if isq else 6
        if not isq:
            st16(k, FF, vr(vL), sDst2, 0)
            st16(k, FF, vr(vL), sDst2, 1024)
            k.I(f"s_add_u32 {sr(sDst2)}, {sr(sDst2)}, {32 * 8192}")
        for j in range(2):
            cvt16(k, EP + 8 * j, ACC[j])
            st16(k, EP + 8 * j, C(2 + j), sDst, 0)
            st16(k, EP + 8 * j + 4, C(2 + j), sDst, 512)
        k.I(f"s_add_u32 {sr(sDst)}, {sr(sDst)}, {32 * (8192 if isq else 16384)}")

    def ps(k, back=False):
        k.I(f"s_{'sub' if back else 'add'}_u32 {sr(sPoll)}, {sr(sPoll)}, 128")

    gemm(k, p, 2, [3, 3, 3], [False, not isq], ep, BUFSZ, ps)


def out2(k, step):
    st16(k, EP, vr(vL), sDst, 0)
    st16(k, EP + 4, vr(vL), sDst, 1024)
    k.I(f"s_add_u32 {sr(sDst)}, {sr(sDst)}, {step}")


def marks(step):
    return [f"s_add_u32 {sr(sT1)}, {sr(sDst)}, {AHEAD * step}"] + \
           [f"buffer_store_dwordx4 {vr(FF, 4)}, {vr(vL)}, {sr(S_WS, 4)}, {sr(sT1)} offen offset:{o} sc1" for o in (0, 1024)]


def first2(k, step):
    empty(k)
    for a in range(AHEAD):
        k.I(f"s_add_u32 {sr(sT0)}, {sr(sDst)}, {a * step}")
        st16(k, FF, vr(vL), sT0, 0)
        st16(k, FF, vr(vL), sT0, 1024)


def role_gu(k):
    I = k.I
    k.L("gu_entry")
    consts(k, TROW[R_GU])
    srd(k, S_A, 64, 576 * 9216)
    srd(k, S_B, 72, 576 * 9216)
    I(f"s_mul_i32 {sr(sC2)}, {sr(sW)}, {16 * 9216}")
    I(f"s_lshl_b32 {sr(sT0)}, {sr(sIdx)}, 8")
    I(f"s_add_u32 {sr(sC2)}, {sr(sC2)}, {sr(sT0)}")
    I("s_waitcnt vmcnt(0) lgkmcnt(0)")
    hold(k, "gu")
    load_weights(k, [(S_A, sC2), (S_B, sC2)], 9, 9216, "std")
    rd_toggle(k)
    own_flag(k, FL_GU)
    I(f"s_mov_b32 {sr(sSrc)}, {hex(WS_H)}")
    I(f"s_mov_b32 {sr(sPoll)}, {hex(fl(FL_HN))}")
    I(f"s_lshl_b32 {sr(sDst)}, {sr(sIdx)}, 13")
    I(f"s_lshl_b32 {sr(sT0)}, {sr(sW)}, 11")
    I(f"s_add_u32 {sr(sDst)}, {sr(sDst)}, {sr(sT0)}")
    I(f"s_add_u32 {sr(sDst)}, {sr(sDst)}, {hex(WS_ACT)}")
    first2(k, 288 * 1024)
    CS, ST = 144, 176
    I(f"s_mov_b32 {sr(sC3)}, 0x3f803f80")
    for r in range(4):
        I(f"v_mov_b32 {vr(BR + r)}, {sr(sC3)}")
    for t in range(36):
        for j in range(2):
            a = vr(CS + 16 * j, 16)
            I(f"v_mfma_f32_32x32x16_bf16 {a}, {wreg(j, t)}, {vr(BR, 4)}, {a if t else 0}")
    I(f"v_and_b32 v4, {31 * 16}, {vr(vL)}")
    I(f"v_and_b32 v5, {32 * 16}, {vr(vL)}")
    I(f"v_lshl_add_u32 v5, v5, 2, v4")
    I(f"v_add_u32 v4, 2048, v4")
    sS = sDst2
    I(f"s_mov_b32 {sr(sS)}, {hex(WS_S)}")
    ready(k, "gu")
    m, v = ST + 10, ST + 12
    load = [f"buffer_load_dwordx2 {vr(ST + 2 * j, 2)}, v5, {sr(S_WS, 4)}, {sr(sS)} offen offset:{512 * j} sc1"
            for j in range(4)]
    load.append(f"buffer_load_dwordx2 {vr(ST + 8, 2)}, v4, {sr(S_WS, 4)}, {sr(sS)} offen offset:2048 sc1")
    rn = lambda r: [f"v_cvt_pk_bf16_f32 {vr(r)}, {vr(r)}, {vr(r)}", f"v_lshlrev_b32 {vr(r)}, 16, {vr(r)}"]
    use = [f"v_pk_add_f32 {vr(ST, 2)}, {vr(ST, 2)}, {vr(ST + 2, 2)}",
           f"v_pk_add_f32 {vr(ST + 4, 2)}, {vr(ST + 4, 2)}, {vr(ST + 6, 2)}",
           f"v_pk_add_f32 {vr(ST + 2, 2)}, {vr(ST, 2)}, {vr(ST + 4, 2)}",
           f"v_pk_add_f32 {vr(ST, 2)}, {vr(ST, 2)}, {vr(ST + 4, 2)}",
           f"s_add_u32 {sr(sS)}, {sr(sS)}, 8192",
           f"v_permlane32_swap_b32 {vr(ST)}, {vr(ST + 2)}",
           f"v_permlane32_swap_b32 {vr(ST + 1)}, {vr(ST + 3)}",
           f"v_pk_add_f32 {vr(ST, 2)}, {vr(ST, 2)}, {vr(ST + 8, 2)}",
           f"v_pk_add_f32 {vr(ST, 2)}, {vr(ST, 2)}, {vr(ST + 2, 2)}",
           f"v_mul_f32 {vr(m)}, {f32(1 / 576)}, {vr(ST)}",
           f"v_mul_f32 {vr(v)}, {f32(1 / 576)}, {vr(ST + 1)}",
           f"v_fma_f32 {vr(v)}, -{vr(m)}, {vr(m)}, {vr(v)}",
           f"v_max_f32 {vr(v)}, 0, {vr(v)}"] + rn(m) + rn(v) + \
          [f"v_add_f32 {vr(v)}, {f32(1e-5)}, {vr(v)}"] + rn(v) + [f"v_sqrt_f32 {vr(v)}, {vr(v)}", "s_nop 0"] + rn(v) + \
          [f"v_rcp_f32 {vr(v)}, {vr(v)}", "s_nop 0", f"v_mul_f32 {vr(v)}, {vr(v)}, {vr(v)}"]

    def ep(k):
        if k is None:
            return 2
        for r in range(0, 32, 2):
            I(f"v_pk_fma_f32 {vr(ACC[0] + r, 2)}, {vr(CS + r, 2)}, {vr(m, 2)}, {vr(ACC[0] + r, 2)} op_sel_hi:[1,0,1] "
              f"neg_lo:[0,1,0] neg_hi:[0,1,0]")
        for r in range(0, 16, 2):
            I(f"v_pk_mul_f32 {vr(ACC[0] + r, 2)}, {vr(ACC[0] + r, 2)}, {vr(ACC[1] + r, 2)}")
        for r in range(0, 16, 2):
            I(f"v_pk_mul_f32 {vr(ACC[0] + r, 2)}, {vr(ACC[0] + r, 2)}, {vr(v, 2)} op_sel_hi:[1,0]")
        cvt16(k, EP, ACC[0])
        out2(k, 288 * 1024)

    gemm2(k, "gu", 2, 9, ep, BUFSZ, 288 * 1024, dict(load=load, use=use, check=[ST + 2 * j for j in range(5)]))


def role_red(k, dn):
    I = k.I
    p = "dn" if dn else "wo"
    rows = 576 if dn else 512
    k.L(f"{p}_entry")
    consts(k, TROW[R_DN if dn else R_WO])
    srd(k, S_A, 80 if dn else 40, 8 * rows * 1152)
    I(f"s_mul_i32 {sr(sC1)}, {sr(sIdx)}, 52")
    I(f"s_lshr_b32 {sr(sC1)}, {sr(sC1)}, 8")
    I(f"s_mul_i32 {sr(sT0)}, {sr(sC1)}, 5")
    I(f"s_sub_u32 {sr(sC3)}, {sr(sIdx)}, {sr(sT0)}")
    I(f"s_mul_i32 {sr(sC2)}, {sr(sC1)}, {rows * 1152}")
    I(f"s_mul_i32 {sr(sT0)}, {sr(sW)}, {16 * 1152}")
    I(f"s_add_u32 {sr(sC2)}, {sr(sC2)}, {sr(sT0)}")
    I(f"s_lshl_b32 {sr(sT0)}, {sr(sC3)}, 8")
    I(f"s_add_u32 {sr(sC2)}, {sr(sC2)}, {sr(sT0)}")
    I("s_waitcnt vmcnt(0) lgkmcnt(0)")
    hold(k, p)
    load_weights(k, [(S_A, sC2)], rows // 64, 1152, "std" if dn else "o")
    rd_toggle(k)
    own_flag(k, FL_DN if dn else FL_WO)
    I(f"s_mul_i32 {sr(sSrc)}, {sr(sC1)}, {rows * 64}")
    I(f"s_add_u32 {sr(sSrc)}, {sr(sSrc)}, {hex(WS_ACT if dn else WS_O)}")
    if dn:
        I(f"s_mul_i32 {sr(sT0)}, {sr(sC1)}, 18")
        I(f"v_add_u32 {C(4)}, {sr(sT0)}, {C(4)}")
        I(f"v_lshrrev_b32 v8, 2, {C(4)}")
        I(f"v_and_b32 {C(4)}, 3, {C(4)}")
        I(f"v_lshlrev_b32 {C(4)}, 2, {C(4)}")
        I(f"v_lshl_add_u32 {C(4)}, v8, 7, {C(4)}")
        I(f"s_mov_b32 {sr(sPoll)}, {hex(fl(FL_GU))}")
    else:
        I(f"s_lshl_b32 {sr(sPoll)}, {sr(sC1)}, 9")
        I(f"s_add_u32 {sr(sPoll)}, {sr(sPoll)}, {hex(fl(FL_O))}")
    I(f"s_lshl_b32 {sr(sT0)}, {sr(sC3)}, 2")
    I(f"s_add_u32 {sr(sT0)}, {sr(sT0)}, {sr(sW)}")
    I(f"s_lshl_b32 {sr(sDst)}, {sr(sT0)}, 11")
    I(f"s_mul_i32 {sr(sT1)}, {sr(sC1)}, {BUFSZ}")
    I(f"s_add_u32 {sr(sDst)}, {sr(sDst)}, {sr(sT1)}")
    I(f"s_add_u32 {sr(sDst)}, {sr(sDst)}, {hex(WS_DP if dn else WS_WP)}")
    I(f"s_add_u32 {sr(sT1)}, {sr(sDst)}, 0x4000000")
    I(f"s_cmp_lt_u32 {sr(sT0)}, 18")
    I(f"s_cselect_b32 {sr(sDst)}, {sr(sDst)}, {sr(sT1)}")

    first2(k, 8 * BUFSZ)
    ready(k, p)

    def ep(k):
        if k is None:
            return 2
        cvt16(k, EP, ACC[0])
        out2(k, 8 * BUFSZ)

    gemm2(k, p, 1, rows // 64, ep, 8 * rows * 64, 8 * BUFSZ)


def red8(k, op, r, t):
    I = k.I
    for m in ("quad_perm:[1,0,3,2]", "quad_perm:[2,3,0,1]", "row_half_mirror"):
        I(f"{op}_dpp {vr(t)}, {vr(r)}, {vr(r)} {m} row_mask:0xf bank_mask:0xf")
        r, t = t, r
    return r


def sum_regs(k, regs, a, sq=False):
    I = k.I
    for i, r in enumerate(regs):
        d = a + i % 4
        if sq:
            I(f"v_mul_f32 {vr(d)}, {vr(r)}, {vr(r)}" if i < 4 else f"v_fmac_f32 {vr(d)}, {vr(r)}, {vr(r)}")
        elif i < 4:
            continue
        elif i < 8:
            I(f"v_add_f32 {vr(d)}, {vr(regs[i - 4])}, {vr(r)}")
        else:
            I(f"v_add_f32 {vr(d)}, {vr(d)}, {vr(r)}")
    I(f"v_add_f32 {vr(a)}, {vr(a)}, {vr(a + 1)}")
    I(f"v_add_f32 {vr(a + 2)}, {vr(a + 2)}, {vr(a + 3)}")
    I(f"v_add_f32 {vr(a)}, {vr(a)}, {vr(a + 2)}")


def unpack(k, dst, src, n):
    for r in range(n):
        k.I(f"v_lshlrev_b32 {vr(dst + 2 * r)}, 16, {vr(src + r)}")
        k.I(f"v_and_b32 {vr(dst + 2 * r + 1)}, 0xffff0000, {vr(src + r)}")


def rnd(k, r):
    k.I(f"v_cvt_pk_bf16_f32 {vr(r)}, {vr(r)}, {vr(r)}")
    k.I(f"v_lshlrev_b32 {vr(r)}, 16, {vr(r)}")


def normalise(k, x, n, mean, var, pk):
    I = k.I
    rnd(k, mean)
    rnd(k, var)
    I(f"v_add_f32 {vr(var)}, {f32(1e-5)}, {vr(var)}")
    rnd(k, var)
    I(f"v_sqrt_f32 {vr(var)}, {vr(var)}")
    rnd(k, var)
    I(f"v_rcp_f32 {vr(var)}, {vr(var)}")
    for r in range(n):
        I(f"v_sub_f32 {vr(x + r)}, {vr(x + r)}, {vr(mean)}")
    for r in range(n // 2):
        I(f"v_cvt_pk_bf16_f32 {vr(pk + r)}, {vr(x + 2 * r)}, {vr(x + 2 * r + 1)}")
    unpack(k, x, pk, n // 2)
    for r in range(n):
        I(f"v_mul_f32 {vr(x + r)}, {vr(x + r)}, {vr(var)}")
    for r in range(n // 2):
        I(f"v_cvt_pk_bf16_f32 {vr(pk + r)}, {vr(x + 2 * r)}, {vr(x + 2 * r + 1)}")


def role_ln(k):
    I = k.I
    k.L("ln_entry")
    consts(k, 6)
    I(f"s_cmp_lg_u32 {sr(sLn)}, 0")
    I("s_cbranch_scc1 ln_go")
    k.snap("z")
    I("v_mov_b64 v[8:9], 0")
    I("v_mov_b64 v[10:11], 0")
    I(f"s_mul_i32 {sr(sT0)}, {sr(sW)}, 10240")
    I(f"s_add_u32 {sr(sT0)}, {sr(sT0)}, {hex(WS_F)}")
    for i in range(10):
        I(f"buffer_store_dwordx4 v[8:11], {vr(vL)}, {sr(S_WS, 4)}, {sr(sT0)} offen offset:{(i % 4) * 1024} sc1")
        if i % 4 == 3:
            I(f"s_add_u32 {sr(sT0)}, {sr(sT0)}, 4096")
    I("s_waitcnt vmcnt(0)")
    I("s_barrier")
    I("v_mov_b32 v9, 1")
    I("s_mov_b64 exec, 1")
    I(f"global_store_dword v8, v9, {sr(S_DBG, 2)} offset:8 sc1")
    I("s_mov_b64 exec, -1")
    k.L("ln_go")
    k.restore("z")
    I("s_waitcnt vmcnt(0)")
    k.L("ln_loop")
    I(f"s_lshl_b32 {sr(sT0)}, {sr(sLn)}, 2")
    I(f"s_add_u32 {sr(sT0)}, {sr(sT0)}, {sr(sW)}")
    I(f"s_mul_i32 {sr(sT0)}, {sr(sT0)}, {8 * 1152}")
    for i in range(9):
        I(f"buffer_load_dwordx4 {vr(8 + 4 * i, 4)}, {C(2)}, {sr(S_X, 4)}, {sr(sT0)} offen offset:{i * 128}")
    X = 112
    unpack(k, X, 8, 36)
    sum_regs(k, list(range(X, X + 72)), 44)
    r = red8(k, "v_add_f32", 44, 45)
    I(f"v_mul_f32 v48, {f32(1 / 576)}, {vr(r)}")
    for i in range(72):
        I(f"v_sub_f32 {vr(184 + i)}, {vr(X + i)}, v48")
    sum_regs(k, list(range(184, 256)), 44, sq=True)
    r = red8(k, "v_add_f32", 44, 45)
    I(f"v_mul_f32 v49, {f32(1 / 576)}, {vr(r)}")
    normalise(k, X, 72, 48, 49, 8)
    I(f"s_mul_i32 {sr(sT0)}, {sr(sLn)}, {BUFSZ}")
    I(f"s_lshl_b32 {sr(sT1)}, {sr(sW)}, 7")
    I(f"s_add_u32 {sr(sT0)}, {sr(sT0)}, {sr(sT1)}")
    I(f"s_add_u32 {sr(sT0)}, {sr(sT0)}, {hex(WS_XN)}")
    for i in range(9):
        st16(k, 8 + 4 * i, C(0), sT0, 0)
        I(f"s_add_u32 {sr(sT0)}, {sr(sT0)}, 4096")
    I("s_waitcnt vmcnt(0)")
    wait_init(k, "ln")
    I(f"s_lshl_b32 {sr(sFlag)}, {sr(sLn)}, 7")
    I(f"s_lshl_b32 {sr(sT0)}, {sr(sW)}, 2")
    I(f"s_add_u32 {sr(sFlag)}, {sr(sFlag)}, {sr(sT0)}")
    I(f"s_add_u32 {sr(sFlag)}, {sr(sFlag)}, {hex(fl(FL_XN))}")
    I(f"s_add_u32 {sr(sT0)}, {sr(sLn)}, 1")
    put_flag(k, sr(sT0), add=400)
    I(f"s_add_u32 {sr(sLn)}, {sr(sLn)}, 60")
    I(f"s_cmp_lt_u32 {sr(sLn)}, 64")
    k.forget()
    I("s_cbranch_scc1 ln_loop")
    for r, nm in ((R_AT, "at"), (R_R1, "r1"), (R_R2, "r2")):
        I(f"s_cmp_eq_u32 {sr(sRole)}, {r}")
        I(f"s_cbranch_scc1 {nm}_entry")
    I("s_branch all_exit")


def acc_parts(k, A, P, n, ns):
    I = k.I
    for s in range(ns):
        for i in range(n):
            for r in range(4):
                src = P + 4 * (n * s + i) + r
                d = A + 8 * i + 2 * r
                if s == 0:
                    I(f"v_lshlrev_b32 {vr(d)}, 16, {vr(src)}")
                    I(f"v_and_b32 {vr(d + 1)}, 0xffff0000, {vr(src)}")
                else:
                    I(f"v_dot2c_f32_bf16 {vr(d)}, {sr(sC0)}, {vr(src)}")
                    I(f"v_dot2c_f32_bf16 {vr(d + 1)}, {sr(sC1)}, {vr(src)}")


def role_sum(k, last):
    I = k.I
    p = "r2" if last else "r1"
    k.L(f"{p}_entry")
    I(f"s_cmp_eq_u32 {sr(sW)}, 3")
    I("s_cbranch_scc1 all_exit")
    if last:
        srd(k, S_A, 88, 2048 * 1152)
    I(f"s_mov_b32 {sr(sC0)}, 0x3f80")
    I(f"s_mov_b32 {sr(sC1)}, 0x3f800000")
    I(f"s_mov_b32 {sr(sKn)}, 0x3f803f80")
    I(f"s_mul_i32 {sr(sT0)}, {sr(sIdx)}, 3")
    I(f"s_add_u32 {sr(sT0)}, {sr(sT0)}, {sr(sW)}")
    I(f"s_mul_i32 {sr(sC2)}, {sr(sT0)}, 57")
    I(f"s_lshr_b32 {sr(sC2)}, {sr(sC2)}, 9")
    I(f"s_mul_i32 {sr(sT1)}, {sr(sC2)}, 9")
    I(f"s_sub_u32 {sr(sC3)}, {sr(sT0)}, {sr(sT1)}")
    I(f"s_lshl_b32 {sr(sT0)}, {sr(sC3)}, 12")
    I(f"s_lshl_b32 {sr(sT1)}, {sr(sC2)}, 7")
    I(f"s_add_u32 {sr(sT0)}, {sr(sT0)}, {sr(sT1)}")
    I(f"v_add_u32 v3, {sr(sT0)}, {C(0)}")
    I(f"v_add_u32 {C(5)}, {sr(sT0)}, {C(5)}")
    I(f"s_lshl_b32 {sr(sT0)}, {sr(sC3)}, 7")
    I(f"s_mul_i32 {sr(sT1)}, {sr(sC2)}, {8 * 1152}")
    I(f"s_add_u32 {sr(sT0)}, {sr(sT0)}, {sr(sT1)}")
    I(f"v_add_u32 v6, {sr(sT0)}, {C(1)}")
    if not last:
        own_flag(k, FL_HN)
        empty(k)
        I(f"s_lshl_b32 {sr(sT0)}, {sr(sC3)}, 9")
        I(f"s_lshl_b32 {sr(sT1)}, {sr(sC2)}, 7")
        I(f"s_add_u32 {sr(sT0)}, {sr(sT0)}, {sr(sT1)}")
        I(f"v_add_u32 v7, {sr(sT0)}, {C(4)}")
        I(f"s_mov_b32 {sr(sM0)}, {hex(WS_S)}")
        I(f"s_mov_b32 s76, 0x03030303")
        I(f"s_mov_b32 s77, 0x03030303")
        for a in range(AHEAD):
            I(f"s_mov_b32 {sr(sT0)}, {hex(WS_H + a * BUFSZ)}")
            st16(k, FF, "v3", sT0, 0)
            I(f"s_mov_b32 {sr(sT0)}, {hex(WS_S + a * 8192)}")
            I(f"buffer_store_dwordx2 {vr(FF, 2)}, v7, {sr(S_WS, 4)}, {sr(sT0)} offen sc1")
        I("s_waitcnt vmcnt(0)")
        put_flag(k, 1, add=201)
    I(f"s_mov_b32 {sr(sPoll)}, {hex(fl(FL_DN if last else FL_WO))}")
    I("s_waitcnt lgkmcnt(0)")
    spin(k, f"{p}_sp", C(3), sr(sPoll), 1, wide=True)
    sRow, sH = sSrc, sDst2
    I(f"s_mov_b32 {sr(sSeg)}, 0")
    I(f"s_mov_b32 {sr(sRow)}, 0")
    I(f"s_mov_b32 {sr(sH)}, {hex(WS_H)}")
    I(f"s_mov_b32 {sr(sDst)}, {hex(WS_DP if last else WS_WP)}")
    P, A = 112, 24
    k.L(f"{p}_loop")
    if not last:
        for u in range(2):
            I(f"buffer_load_dwordx2 {vr(8 + 2 * u, 2)}, v6, {sr(S_X, 4)}, {sr(sRow)} offen offset:{16 * u}")
    k.L(f"{p}_again")
    if OPT.get("lk", 0) >> (4 if last else 1) & 1:
        look(k, f"{p}_look", C(5), sDst)
    if last:
        I(f"buffer_load_dwordx4 v[8:11], v3, {sr(S_WS, 4)}, {sr(sH)} offen sc1")
    for s_ in range(8):
        if s_:
            I(f"s_add_u32 {sr(sT0)}, {sr(sDst)}, {s_ * BUFSZ}")
        I(f"buffer_load_dwordx4 {vr(P + 4 * s_, 4)}, v3, {sr(S_WS, 4)}, {sr(sT0 if s_ else sDst)} offen sc1")
    I(f"s_sub_u32 {sr(sBud)}, {sr(sBud)}, 1")
    I("s_cbranch_scc1 all_exit")
    unpack(k, 60, 8, 4)
    I(f"v_max3_u32 v20, {vr(P)}, {vr(P + 4)}, {vr(8 if last else P)}")
    for s_ in range(1, 4):
        I(f"v_max3_u32 v20, v20, {vr(P + 8 * s_)}, {vr(P + 8 * s_ + 4)}")
    I(f"v_cmp_eq_u32 vcc, -1, v20")
    I(f"s_cbranch_vccnz {p}_again")
    stamp(k, sr(sSeg), add=131)
    acc_parts(k, A, P, 1, 8)
    for r in range(4):
        I(f"v_cvt_pk_bf16_f32 {vr(48 + r)}, {vr(A + 2 * r)}, {vr(A + 2 * r + 1)}")
    unpack(k, A, 48, 4)
    for r in range(8):
        I(f"v_add_f32 {vr(A + r)}, {vr(A + r)}, {vr(60 + r)}")
    for r in range(4):
        I(f"v_cvt_pk_bf16_f32 {vr(48 + r)}, {vr(A + 2 * r)}, {vr(A + 2 * r + 1)}")
    if last:
        fl_ = ("", " sc1", " nt", " sc0 sc1", " sc1 nt")[OPT.get("os", 0)]
        I(f"buffer_store_dwordx2 v[48:49], v6, {sr(S_A, 4)}, {sr(sRow)} offen{fl_}")
        I(f"buffer_store_dwordx2 v[50:51], v6, {sr(S_A, 4)}, {sr(sRow)} offen offset:16{fl_}")
    else:
        st16(k, 48, "v3", sH, 0)
        I(f"v_mov_b64 v[52:53], 0")
        for r in range(4):
            I(f"v_dot2c_f32_bf16 v52, {sr(sKn)}, {vr(48 + r)}")
            I(f"v_dot2c_f32_bf16 v53, {vr(48 + r)}, {vr(48 + r)}")
        a_, b_ = 52, 54
        for m in ("quad_perm:[1,0,3,2]", "quad_perm:[2,3,0,1]", "row_half_mirror"):
            for e in range(2):
                I(f"v_add_f32_dpp {vr(b_ + e)}, {vr(a_ + e)}, {vr(a_ + e)} {m} row_mask:0xf bank_mask:0xf")
            a_, b_ = b_, a_
        I(f"s_add_u32 {sr(sT0)}, {sr(sH)}, {AHEAD * BUFSZ}")
        I(f"s_add_u32 {sr(sT1)}, {sr(sM0)}, {AHEAD * 8192}")
        I("s_mov_b64 exec, s[76:77]")
        I(f"buffer_store_dwordx2 {vr(a_, 2)}, v7, {sr(S_WS, 4)}, {sr(sM0)} offen sc1")
        I(f"buffer_store_dwordx2 {vr(FF, 2)}, v7, {sr(S_WS, 4)}, {sr(sT1)} offen sc1")
        I("s_mov_b64 exec, -1")
        st16(k, FF, "v3", sT0, 0)
        I(f"s_add_u32 {sr(sM0)}, {sr(sM0)}, 8192")
    I(f"s_add_u32 {sr(sSeg)}, {sr(sSeg)}, 1")
    I(f"s_add_u32 {sr(sRow)}, {sr(sRow)}, {BUFSZ}")
    I(f"s_add_u32 {sr(sH)}, {sr(sH)}, {BUFSZ}")
    I(f"s_add_u32 {sr(sDst)}, {sr(sDst)}, {8 * BUFSZ}")
    stamp(k, sr(sSeg))
    I(f"s_cmp_lt_u32 {sr(sSeg)}, 64")
    k.forget()
    I(f"s_cbranch_scc1 {p}_loop")
    I("s_branch all_exit")


def role_at(k):
    I = k.I
    k.L("at_entry")
    consts(k, TROW[R_AT])
    own_flag(k, FL_O)
    empty(k)
    Q, KK, V, X, VM, S, SM, O, PK = 8, 24, 56, 112, 200, 136, 144, 152, 184
    sQ, sK, sKM = sSrc, sM0, sC3
    I(f"s_and_b32 {sr(sC1)}, {sr(sW)}, 1")
    I(f"s_lshr_b32 {sr(sSeg)}, {sr(sW)}, 1")
    I(f"s_lshl_b32 {sr(sT1)}, {sr(sIdx)}, 13")
    I("s_waitcnt vmcnt(0)")
    I(f"s_lshl_b32 {sr(sT0)}, {sr(sSeg)}, 18")
    I(f"s_add_u32 {sr(sT1)}, {sr(sT1)}, {sr(sT0)}")
    I(f"s_add_u32 {sr(sKM)}, {sr(sT1)}, {hex(WS_KM)}")
    I(f"s_lshl_b32 {sr(sK)}, {sr(sT1)}, 1")
    I(f"s_lshl_b32 {sr(sT0)}, {sr(sC1)}, 12")
    I(f"s_add_u32 {sr(sQ)}, {sr(sT1)}, {sr(sT0)}")
    I(f"s_add_u32 {sr(sQ)}, {sr(sQ)}, {hex(WS_Q)}")
    I(f"s_lshl_b32 {sr(sT0)}, {sr(sC1)}, 8")
    I(f"s_add_u32 {sr(sDst)}, {sr(sT1)}, {sr(sT0)}")
    I(f"s_add_u32 {sr(sDst)}, {sr(sDst)}, {hex(WS_O)}")
    I(f"s_mov_b32 {sr(sC0)}, {f32(128 ** -0.5 * 1.4426950408889634)}")
    for u in range(1, 4):
        I(f"v_add_u32 {vr(2 + u)}, {4096 * u}, {vr(vL)}")
    I(f"v_add_u32 {C(6)}, 4096, {C(0)}")
    I(f"v_lshlrev_b32 {C(7)}, 9, {C(2)}")

    def st_o(reg, sd):
        for u in range(4):
            st16(k, reg if reg == FF else reg + 4 * u, C(6 if u // 2 else 0), sd, (u % 2) * 2048)

    for a in range(0, AHEAD, 2):
        I(f"s_add_u32 {sr(sT0)}, {sr(sDst)}, {a * 256 * 1024}")
        st_o(FF, sT0)
    I(f"s_lshl_b32 {sr(sT0)}, {sr(sC1)}, 4")
    I(f"v_add_u32 {C(1)}, {sr(sT0)}, {C(1)}")
    for j in range(8):
        I(f"v_cmp_le_i32 {sr(sMask + 2 * j, 2)}, {8 * (j // 4) + j % 4}, {C(1)}")
    I(f"s_sub_u32 {sr(sT0)}, {FL_Q - FL_KV}, {sr(sIdx)}")
    I(f"s_lshr_b32 {sr(sT1)}, {sr(sIdx)}, 1")
    I(f"s_add_u32 {sr(sT0)}, {sr(sT0)}, {sr(sT1)}")
    I(f"s_lshl_b32 {sr(sT0)}, {sr(sT0)}, 7")
    I(f"v_mul_lo_u32 {C(3)}, {C(3)}, {sr(sT0)}")
    I(f"v_add_u32 {C(3)}, {C(3)}, {C(2)}")
    I(f"s_lshl_b32 {sr(sT0)}, {sr(sIdx)}, 7")
    I(f"s_add_u32 {sr(sPoll)}, {sr(sT0)}, {hex(fl(FL_KV))}")
    I(f"v_mov_b32 v6, {f32(-1e30)}")
    I(f"s_mov_b32 {sr(sKn)}, 0")
    I(f"s_mov_b32 s76, 0xff00ff00")
    I(f"s_mov_b32 s77, 0xff00ff00")
    I(f"v_mov_b64 {vr(X, 2)}, 0")
    for r in range(2, 16, 2):
        I(f"v_mov_b64 {vr(X + r, 2)}, 0")
    I("s_waitcnt vmcnt(0)")
    put_flag(k, 1, add=201)
    off = lambda u: vr(vL) if u == 0 else vr(2 + u)

    def known(lab, need):
        I(f"s_cmp_ge_u32 {sr(sKn)}, {need}")
        I(f"s_cbranch_scc1 {lab}_ok")
        spin(k, lab, C(3), sr(sPoll), need)
        r = red8(k, "v_min_u32", 96, 97)
        I(f"v_readfirstlane_b32 {sr(sKn)}, {vr(r)}")
        k.L(f"{lab}_ok")

    def ld_qk():
        for u in range(4):
            I(f"buffer_load_dwordx4 {vr(Q + 4 * u, 4)}, {vr(vL)}, {sr(S_WS, 4)}, {sr(sQ)} offen offset:{u * 1024} sc1")
            for kt in range(2):
                I(f"buffer_load_dwordx4 {vr(KK + 8 * u + 4 * kt, 4)}, {off(u)}, {sr(S_WS, 4)}, {sr(sK)} offen "
                  f"offset:{kt * 1024} sc1")

    def ld_v():
        for u in range(4):
            for et in range(2):
                I(f"buffer_load_dwordx4 {vr(V + 8 * u + 4 * et, 4)}, {off(u)}, {sr(S_WS, 4)}, {sr(sK)} offen "
                  f"offset:{2048 + et * 1024} sc1")

    I(f"s_add_u32 {sr(sNeed)}, {sr(sSeg)}, 1")
    known("at_k0", sr(sNeed))
    ld_qk()
    ld_v()
    I("s_waitcnt vmcnt(0)")
    k.L("at_loop")
    k.forget()
    for u in range(4):
        I(f"s_waitcnt vmcnt({12 + 3 * (3 - u)})")
        for kt in range(2):
            I(f"v_mfma_f32_16x16x32_bf16 {vr(S + 4 * kt, 4)}, {vr(KK + 8 * u + 4 * kt, 4)}, {vr(Q + 4 * u, 4)}, "
              f"{vr(S + 4 * kt, 4) if u else 0}")
    I(f"s_add_u32 {sr(sQ)}, {sr(sQ)}, {2 * 32 * 8192}")
    I(f"s_add_u32 {sr(sK)}, {sr(sK)}, {2 * 32 * 16384}")
    for j in range(8):
        I(f"v_cndmask_b32_e64 {vr(S + j)}, v6, {vr(S + j)}, {sr(sMask + 2 * j, 2)}")
    I(f"v_max3_f32 v2, {vr(S)}, {vr(S + 1)}, {vr(S + 2)}")
    I(f"v_max3_f32 v2, v2, {vr(S + 3)}, {vr(S + 4)}")
    I(f"v_max3_f32 v2, v2, {vr(S + 5)}, {vr(S + 6)}")
    I(f"v_max_f32 v2, v2, {vr(S + 7)}")
    I(f"s_add_u32 {sr(sNeed)}, {sr(sSeg)}, 3")
    I(f"s_min_u32 {sr(sNeed)}, {sr(sNeed)}, 64")
    known("at_k1", sr(sNeed))
    if OPT.get("lp", 1):
        k.L("at_look")
        I(f"buffer_load_dword v92, {C(7)}, {sr(S_WS, 4)}, {sr(sKM)} offen offset:{240 if OPT.get('lp', 1) == 1 else 1024} sc1")
        I(f"s_sub_u32 {sr(sBud)}, {sr(sBud)}, 1")
        I("s_cbranch_scc1 all_exit")
        I("s_waitcnt vmcnt(0)")
        I(f"v_cmp_eq_u32 vcc, -1, v92")
        I(f"s_cbranch_vccnz at_look")
    k.L("at_again")
    I("s_mov_b64 exec, s[76:77]")
    for u in range(4):
        I(f"buffer_load_dwordx4 {vr(X + 4 * u, 4)}, {off(u // 2)}, {sr(S_WS, 4)}, {sr(sKM)} offen "
          f"offset:{(u % 2) * 2048} sc1")
    I("s_mov_b64 exec, -1")
    for u in range(4):
        I(f"buffer_load_dwordx4 {vr(VM + 4 * u, 4)}, {off(u // 2)}, {sr(S_WS, 4)}, {sr(sKM)} offen "
          f"offset:{1024 + (u % 2) * 2048} sc1")
    I(f"s_sub_u32 {sr(sBud)}, {sr(sBud)}, 1")
    I("s_cbranch_scc1 all_exit")
    for u in range(4):
        I(f"v_mfma_f32_16x16x32_bf16 {vr(SM, 4)}, {vr(X + 4 * u, 4)}, {vr(Q + 4 * u, 4)}, {vr(SM, 4) if u else 0}")
    I(f"v_max3_u32 v92, {vr(X)}, {vr(X + 4)}, {vr(X + 8)}")
    I(f"v_max3_u32 v92, v92, {vr(X + 12)}, {vr(VM)}")
    I(f"v_max3_u32 v92, v92, {vr(VM + 4)}, {vr(VM + 8)}")
    I(f"v_max_u32 v92, v92, {vr(VM + 12)}")
    I(f"v_cmp_eq_u32 vcc, -1, v92")
    I(f"s_cbranch_vccnz at_again")
    stamp(k, sr(sSeg), add=131)
    I(f"s_add_u32 {sr(sKM)}, {sr(sKM)}, {2 * 32 * 8192}")
    I("s_mov_b32 exec_hi, 0")
    for r in range(4):
        I(f"v_mov_b32 {vr(SM + r)}, v6")
    I("s_mov_b32 exec_hi, -1")
    I(f"v_max3_f32 v2, v2, {vr(SM)}, {vr(SM + 1)}")
    I(f"v_max3_f32 v92, v2, {vr(SM + 2)}, {vr(SM + 3)}")
    I(f"v_max3_f32 v93, v2, {vr(SM + 2)}, {vr(SM + 3)}")
    I("v_permlane16_swap_b32 v92, v93")
    I("v_max_f32 v2, v92, v93")
    I("v_max_f32 v92, v92, v93")
    I("v_permlane32_swap_b32 v2, v92")
    I("v_max_f32 v2, v2, v92")
    I(f"v_mul_f32 v2, {sr(sC0)}, v2")
    for r in range(12):
        I(f"v_fma_f32 {vr(S + r)}, {vr(S + r)}, {sr(sC0)}, -v2")
    for r in range(12):
        I(f"v_exp_f32 {vr(S + r)}, {vr(S + r)}")
    for r in range(4):
        I(f"v_cvt_pk_bf16_f32 {vr(148 + r)}, {vr(S + 2 * r)}, {vr(S + 2 * r + 1)}")
    for r in (92, 94):
        I(f"v_cvt_pk_bf16_f32 {vr(r)}, {vr(SM)}, {vr(SM + 2)}")
        I(f"v_cvt_pk_bf16_f32 {vr(r + 1)}, {vr(SM + 1)}, {vr(SM + 3)}")
    Z = 88
    red = [f"v_add_f32 {vr(Z + i)}, {vr(S + i)}, {vr(S + 4 + i)}" for i in range(4)]
    red += [f"v_add_f32 {vr(Z + i)}, {vr(Z + i)}, {vr(S + 8 + i)}" for i in range(4)]
    red += [f"v_add_f32 {vr(Z)}, {vr(Z)}, {vr(Z + 1)}", f"v_add_f32 {vr(Z + 2)}, {vr(Z + 2)}, {vr(Z + 3)}",
            f"v_add_f32 {vr(Z + 1)}, {vr(Z)}, {vr(Z + 2)}", f"v_add_f32 {vr(Z)}, {vr(Z)}, {vr(Z + 2)}",
            f"v_permlane16_swap_b32 {vr(Z)}, {vr(Z + 1)}", f"v_add_f32 {vr(Z + 2)}, {vr(Z)}, {vr(Z + 1)}",
            f"v_add_f32 {vr(Z)}, {vr(Z)}, {vr(Z + 1)}", f"v_permlane32_swap_b32 {vr(Z)}, {vr(Z + 2)}",
            f"v_add_f32 {vr(Z)}, {vr(Z)}, {vr(Z + 2)}", f"v_rcp_f32 {vr(Z)}, {vr(Z)}"]
    red = ["v_permlane32_swap_b32 v92, v94", "v_permlane32_swap_b32 v93, v95"] + red
    for u in range(4):
        for et in range(2):
            I(f"v_mfma_f32_16x16x32_bf16 {vr(O + 8 * u + 4 * et, 4)}, {vr(V + 8 * u + 4 * et, 4)}, {vr(148, 4)}, 0")
            for _ in range(2):
                I(red.pop(0))
    for u in range(4):
        for et in range(2):
            I(f"v_mfma_f32_16x16x16_bf16 {vr(O + 8 * u + 4 * et, 4)}, {vr(VM + 4 * u + 2 * et, 2)}, "
              f"v[94:95], {vr(O + 8 * u + 4 * et, 4)}")
            if red:
                I(red.pop(0))
    for u in range(4):
        for r in range(0, 8, 2):
            I(f"v_pk_mul_f32 {vr(O + 8 * u + r, 2)}, {vr(O + 8 * u + r, 2)}, {vr(Z, 2)} op_sel_hi:[1,0]")
        for r in range(4):
            I(f"v_cvt_pk_bf16_f32 {vr(PK + 4 * u + r)}, {vr(O + 8 * u + 2 * r)}, {vr(O + 8 * u + 2 * r + 1)}")
        st16(k, PK + 4 * u, C(6 if u // 2 else 0), sDst, (u % 2) * 2048)
    I(f"s_add_u32 {sr(sSeg)}, {sr(sSeg)}, 2")
    I(f"s_sub_u32 {sr(sT1)}, {sr(sSeg)}, 1")
    stamp(k, sr(sT1))
    I(f"s_cmp_ge_u32 {sr(sSeg)}, 64")
    I("s_cbranch_scc1 all_exit")
    ld_qk()
    ld_v()
    I(f"s_add_u32 {sr(sT0)}, {sr(sDst)}, {AHEAD * 256 * 1024}")
    st_o(FF, sT0)
    I(f"s_add_u32 {sr(sDst)}, {sr(sDst)}, {2 * 256 * 1024}")
    I("s_branch at_loop")


def all_roles(k):
    role_proj(k, False)
    role_proj(k, True)
    role_gu(k)
    role_red(k, False)
    role_red(k, True)
    role_ln(k)
    role_sum(k, False)
    role_sum(k, True)
    role_at(k)
```

```python
from gen import K, vr, ar, sr
from lay import *

R_CH, R_KV, R_Q, R_AT, R_WO, R_R1, R_GU, R_DN, R_R2, R_NONE = range(10)
TROW = {R_KV: 0, R_Q: 1, R_GU: 2, R_WO: 3, R_DN: 4, R_AT: 5, R_R1: 6, R_R2: 6, R_NONE: 6}

S_WS, S_A, S_B, S_X = 4, 8, 12, 16
S_DBG = 24
sW, sIdx, sSeg, sNeed, sSrc, sDst, sFlag, sPoll, sBud, sM0, sT0, sT1, sT2, sT3, sIss, sLn, sRole, sKn, sW4k = range(26, 45)
sDst2, sC0, sC1, sC2, sC3 = range(45, 50)
sMask = 60
vL = 0
C = lambda i: vr(100 + i)
BUFSZ = 36864
OPT = {}
NL = [0]


def f32(x):
    return hex(int(np.float32(x).view(np.uint32)))


def role_map():
    m = [None] * 256
    groups = [(R_WO, g) for g in range(8)] + [(R_DN, g) for g in range(8)]
    order = [groups[(i // 2) + 8 * (i % 2)] for i in range(16)]
    rest = [(R_KV, i) for i in range(32)] + [(R_Q, i) for i in range(16)] + [(R_AT, i) for i in range(32)] + \
           [(R_GU, i) for i in range(36)] + [(R_R1, i) for i in range(12)] + [(R_R2, i) for i in range(12)] + \
           [(R_NONE, i) for i in range(4)]
    gi = 0
    for base, xs in ((0, range(1, 8)), (5, range(1, 8)), (10, (1, 2))):
        for x in xs:
            r, g = order[gi]
            gi += 1
            for j in range(5):
                m[(base + j) * 8 + x] = (r, g * 5 + j)
    for i in range(32):
        m[i * 8] = (R_CH, i)
    free = [wg for wg in range(256) if m[wg] is None]
    assert len(free) == len(rest)
    for wg, e in zip(free, rest):
        m[wg] = e
    ln = 0
    out = []
    lnidx = {}
    for r in (R_NONE, R_R2, R_R1, R_AT):
        for wg in range(256):
            if m[wg][0] == r:
                lnidx[wg] = ln
                ln += 1
    assert ln == 60
    for wg in range(256):
        r, i = m[wg]
        out.append(r | i << 8 | lnidx.get(wg, 255) << 16)
    return out


def lane_table():
    T = np.zeros((7, 64, 8), np.uint32)
    for l in range(64):
        q, p = l // 16, l % 16
        g, n16 = l // 16, l % 16
        r, c4 = n16 // 4, n16 % 4
        n, hi = l % 32, l // 32
        dm = lambda S: q * S + (p ^ (4 * q)) * 16
        tr = lambda HS: ((g // 2) * HS + r) * 256 + (4 * r + 2 * (g % 2) + c4 // 2) * 16 + (c4 % 2) * 8
        vk = ((n >> 3) & 1) * 1024 + hi * 256 + ((n >> 4) * 8 + (n & 7)) * 16
        vv = 2048 + (n // 16) * 1024 + hi * 256 + (n % 16) * 16
        vq = (n // 16) * 4096 + hi * 256 + (n % 16) * 16
        T[0, l, :6] = [dm(8192), tr(8), vk, vv, (l % 4) * 4, l * 16 if n16 >= 8 else 1024 + (g * 8 + n16) * 16]
        T[1, l, :5] = [dm(8192), tr(8), vq, vq + 8192, (l % 4) * 4]
        T[2, l, :6] = [dm(9216), tr(4), l * 16, 0, ((l % 36) // 3) * 128 + (l % 3) * 4, min(l // 4, 8) * 1024 + l % 4 * 128]
        T[3, l, :6] = [dm(1152), tr(4), l * 16, 0, ((l % 16) // 4) * 128 + (l % 4) * 4, l // 2 % 8 * 1024 + l % 2 * 256]
        T[4, l, :6] = [dm(1152), tr(4), l * 16, 0, l % 18, min(l, 8) * 1024]
        T[5, l, :6] = [g * 512 + n16 * 16, (n16 - 16 * (g // 2) - 4 * (g % 2)) & 0xffffffff, (l % 4) * 4,
                       1 if l % 8 >= 4 else 0, l * 8, l * 16 if n16 >= 8 else 1024 + (g * 8 + n16) * 16]
        nn, pp = l // 8, l % 8
        T[6, l, :6] = [pp * 512 + nn * 16, nn * 1152 + (pp // 2) * 32 + (pp % 2) * 8, nn * 1152 + pp * 16,
                       (l % 40) * 128, nn * 16 + pp % 2 * 8, pp * BUFSZ + nn % 4 * 1024]
    return T


def tables_text():
    s = ".p2align 8\n.type role_tbl,@object\nrole_tbl:\n"
    rm = role_map()
    for i in range(0, 256, 8):
        s += ".long " + ",".join(hex(x) for x in rm[i:i + 8]) + "\n"
    T = lane_table()
    T2 = T.reshape(7, 64, 2, 4).transpose(0, 2, 1, 3).reshape(-1, 8)
    for row in T2:
        s += ".long " + ",".join(hex(int(x)) for x in row) + "\n"
    s += f".size role_tbl, {1024 + T.size * 4}\n"
    return s


def entry(k):
    I = k.I
    I("s_cmp_ge_u32 s2, 256")
    I("s_cbranch_scc1 all_exit")
    I("s_and_b32 s3, s2, 7")
    I("s_cmp_eq_u32 s3, 0")
    I("s_cbranch_scc1 chain_entry")
    I("s_getpc_b64 s[64:65]")
    k.L("role_pc")
    I("s_add_u32 s64, s64, role_tbl-role_pc")
    I("s_addc_u32 s65, s65, 0")
    I("s_lshl_b32 s3, s2, 2")
    I(f"s_load_dword {sr(sRole)}, s[64:65], s3")
    I(f"s_load_dwordx2 {sr(S_WS, 2)}, s[0:1], 104")
    I(f"s_load_dwordx2 {sr(S_DBG, 2)}, s[0:1], 96")
    I(f"s_load_dwordx2 {sr(S_X, 2)}, s[0:1], 0")
    I("v_lshrrev_b32 v8, 6, v0")
    I(f"v_readfirstlane_b32 {sr(sW)}, v8")
    I("v_and_b32 v0, 63, v0")
    I(f"v_lshlrev_b32 {vr(vL)}, 4, v0")
    I(f"s_mov_b32 {sr(S_WS + 2)}, {hex(WS_BYTES)}")
    I(f"s_mov_b32 {sr(S_WS + 3)}, 0x00020000")
    I(f"s_mov_b32 {sr(S_X + 2)}, {2048 * 1152}")
    I(f"s_mov_b32 {sr(S_X + 3)}, 0x00020000")
    I(f"s_mov_b32 {sr(sBud)}, 0x40000")
    I(f"s_lshl_b32 {sr(sW4k)}, {sr(sW)}, 12")
    I("s_waitcnt lgkmcnt(0)")
    I(f"s_bfe_u32 {sr(sIdx)}, {sr(sRole)}, 0x80008")
    I(f"s_bfe_u32 {sr(sLn)}, {sr(sRole)}, 0x80010")
    I(f"s_and_b32 {sr(sRole)}, {sr(sRole)}, 255")
    stamp_base(k, sW)
    stamp(k, 200)
    for r in range(10):
        if OPT.get("off", 0) >> r & 1:
            I(f"s_cmp_eq_u32 {sr(sRole)}, {r}")
            I(f"s_cbranch_scc1 {'all_exit' if r in (R_KV, R_Q, R_GU, R_WO, R_DN) else 'role_off'}")
    for r, nm in ((R_KV, "kv"), (R_Q, "q"), (R_GU, "gu"), (R_WO, "wo"), (R_DN, "dn")):
        I(f"s_cmp_eq_u32 {sr(sRole)}, {r}")
        I(f"s_cbranch_scc1 {nm}_entry")
    I("s_branch ln_entry")
    k.L("role_off")
    I(f"s_mov_b32 {sr(sRole)}, {R_NONE}")
    I("s_branch ln_entry")


def consts(k, row):
    I = k.I
    I(f"v_add_u32 v8, {1024 + row * 2048}, {vr(vL)}")
    I(f"global_load_dwordx4 {vr(100, 4)}, v8, s[64:65]")
    I(f"global_load_dwordx4 {vr(104, 4)}, v8, s[64:65] offset:1024")


def wait_init(k, p):
    I = k.I
    I("v_mov_b32 v8, 0")
    k.L(f"{p}_init")
    I(f"global_load_dword v9, v8, {sr(S_DBG, 2)} offset:8 sc1")
    I(f"s_sub_u32 {sr(sBud)}, {sr(sBud)}, 1")
    I("s_cbranch_scc1 all_exit")
    I("s_waitcnt vmcnt(0)")
    I(f"v_readfirstlane_b32 {sr(sT0)}, v9")
    I(f"s_cmp_eq_u32 {sr(sT0)}, 0")
    I(f"s_cbranch_scc1 {p}_init")


FLG = [" nt", "", " sc1", " sc0 sc1", " sc1 nt", " sc0", " sc0 nt", " sc0 sc1 nt"]


def hold(k, p):
    if not OPT.get("hold", 0) >> {"gu": 0, "dn": 1, "wo": 2, "q": 3, "kv": 4}[p] & 1:
        return
    I = k.I
    mp = OPT.get("mp", 0)
    if mp and p in ("gu", "dn"):
        ms = [m for m in range(4) if mp >> m & 1]
        for m in ms:
            srd(k, 68 + 4 * m, 16 + 8 * m, 576 * 8192)
        I(f"s_lshl_b32 {sr(sT1)}, {sr(sIdx)}, 12")
        I(f"s_lshl_b32 {sr(sT0)}, {sr(sW)}, 10")
        I(f"s_add_u32 {sr(sT1)}, {sr(sT1)}, {sr(sT0)}")
        if p == "dn":
            I(f"s_add_u32 {sr(sT1)}, {sr(sT1)}, {144 * 1024}")
            I(f"s_cmp_ge_u32 {sr(sIdx)}, 36")
            I(f"s_cbranch_scc1 {p}_warm")
        I("s_waitcnt lgkmcnt(0)")
        n = 0
        for i in (range(16) if OPT.get("mr", 0) == 0 else range(15, -1, -1)):
            I(f"s_add_u32 {sr(sT0)}, {sr(sT1)}, {i * 288 * 1024}")
            for m in ms:
                k.raw(f"\tbuffer_load_dwordx4 {vr(12, 4)}, {vr(vL)}, {sr(68 + 4 * m, 4)}, {sr(sT0)} offen{FLG[OPT.get('mf', 1)]}")
                n += 1
                if n > OPT.get("mw", 32):
                    k.raw(f"\ts_waitcnt vmcnt({OPT.get('mw', 32)})")
        k.raw("\ts_waitcnt vmcnt(0)")
        stamp(k, 203)
        k.L(f"{p}_warm")
    I("v_mov_b32 v8, 0")
    k.L(f"{p}_hold")
    I(f"global_load_dword v9, v8, {sr(S_DBG, 2)} offset:128 sc1")
    I(f"s_sub_u32 {sr(sBud)}, {sr(sBud)}, 1")
    I("s_cbranch_scc1 all_exit")
    I("s_waitcnt vmcnt(0)")
    I(f"v_readfirstlane_b32 {sr(sT0)}, v9")
    I(f"s_cmp_lt_u32 {sr(sT0)}, {OPT.get('hn', 32)}")
    I(f"s_cbranch_scc1 {p}_hold")


def stamp(k, val, t0=97, t1=99, add=0, src=None):
    if not OPT.get("ts"):
        return
    I = k.I
    if OPT["ts"] >= 2 and isinstance(val, str):
        if (src is not None and src < 70) or (OPT["ts"] == 2 and add not in (0, 65, 400)) or (OPT["ts"] == 4 and src is None):
            return
        NL[0] += 1
        for x in (f"s_and_b32 s55, {val}, 7" if OPT["ts"] == 2 else f"s_cmp_lt_u32 {val}, {OPT.get('tf', 63)}", f"s_cbranch_scc1 lst_{NL[0]}", "s_memrealtime s[52:53]", "s_nop 4",
                  f"v_mov_b32 {vr(t1)}, {val}", f"v_lshlrev_b32 {vr(t1)}, 2, {vr(t1)}", "s_waitcnt lgkmcnt(0)",
                  f"v_mov_b32 {vr(t0)}, s{src or 52}", "s_mov_b64 exec, 1", "s_nop 1",
                  f"buffer_store_dword {vr(t0)}, {vr(t1)}, {sr(S_WS, 4)}, s54 offen offset:{4 * add}",
                  "s_mov_b64 exec, -1", "s_waitcnt vmcnt(0)" if OPT["ts"] == 2 else "s_nop 0", f"lst_{NL[0]}:"):
            k.raw("\t" + x)
        return
    if src is None:
        I("s_memrealtime s[52:53]")
    I(f"v_mov_b32 {vr(t1)}, {val}")
    I(f"v_lshlrev_b32 {vr(t1)}, 2, {vr(t1)}")
    I("s_waitcnt lgkmcnt(0)")
    I(f"v_mov_b32 {vr(t0)}, s{src or 52}")
    I(f"s_mov_b64 exec, 1")
    I(f"buffer_store_dword {vr(t0)}, {vr(t1)}, {sr(S_WS, 4)}, s54 offen offset:{4 * add}")
    I(f"s_mov_b64 exec, -1")


def stamp_base(k, sw):
    if not OPT.get("ts"):
        return
    k.I(f"s_lshl_b32 s54, s2, 13")
    k.I(f"s_lshl_b32 s55, {sr(sw)}, 11")
    k.I(f"s_add_u32 s54, s54, s55")
    k.I(f"s_add_u32 s54, s54, {hex(WS_TS)}")


def put_flag(k, val, tmp=98, add=0):
    I = k.I
    stamp(k, val, add=add)
    I(f"v_mov_b32 {vr(tmp)}, {val}")
    I(f"s_mov_b64 exec, 1")
    I(f"buffer_store_dword {vr(tmp)}, off, {sr(S_WS, 4)}, {sr(sFlag)} sc1")
    I(f"s_mov_b64 exec, -1")


def spin(k, lab, voff, soff, need, wide=False, dst=96):
    I = k.I
    k.L(lab)
    if wide:
        I(f"buffer_load_dwordx4 {vr(92, 4)}, {voff}, {sr(S_WS, 4)}, {soff} offen sc1")
    else:
        I(f"buffer_load_dword {vr(dst)}, {voff}, {sr(S_WS, 4)}, {soff} offen sc1")
    I(f"s_sub_u32 {sr(sBud)}, {sr(sBud)}, 1")
    I("s_cbranch_scc1 all_exit")
    I("s_waitcnt vmcnt(0)")
    if wide:
        I(f"v_min_u32 {vr(92)}, {vr(92)}, {vr(93)}")
        I(f"v_min3_u32 {vr(dst)}, {vr(92)}, {vr(94)}, {vr(95)}")
    I(f"v_cmp_gt_u32 vcc, {need}, {vr(dst)}")
    I(f"s_cbranch_vccnz {lab}")


def look(k, lab, voff, soff, off=0):
    I = k.I
    k.L(lab)
    I(f"buffer_load_dword v92, {voff}, {sr(S_WS, 4)}, {sr(soff)} offen offset:{off} sc1")
    I(f"s_sub_u32 {sr(sBud)}, {sr(sBud)}, 1")
    I("s_cbranch_scc1 all_exit")
    I("s_waitcnt vmcnt(0)")
    I(f"v_cmp_eq_u32 vcc, -1, v92")
    I(f"s_cbranch_vccnz {lab}")


def wreg(t, ks, off=0, n=4):
    i = (36 * t + ks) * 4
    if i < 256:
        return ar(i + off, n)
    return vr(112 + i - 256 + off, n)


ROWMAP = {
    "nat": lambda t, half: 16 * t + 4 * half,
    "std": lambda t, half: 16 * t + 8 * half,
    "o": lambda t, half: 32 * (t // 2) + 16 * half + 8 * (t % 2),
}


def load_weights(k, mats, nslab, S, perm):
    I = k.I
    N = len(mats) * nslab

    def dma(n):
        d, base = mats[n // nslab]
        sl = n % nslab
        for i in range(4):
            I(f"s_add_u32 {sr(sT0)}, {sr(base)}, {(64 * sl + 4 * i) * S}")
            I(f"s_add_u32 m0, {sr(sW4k)}, {(n % 10) * 16384 + i * 1024}")
            I(f"buffer_load_dwordx4 {C(0)}, {sr(d, 4)}, {sr(sT0)} offen{FLG[OPT.get('kn', 0)]} lds")
        k.tag(f"slab{n}")

    for n in range(min(9, N)):
        dma(n)
    I(f"s_lshl_b32 {sr(sT0)}, {sr(sW)}, 6")
    I(f"v_xor_b32 {C(1)}, {sr(sT0)}, {C(1)}")
    for n in range(N):
        k.wait_tag(f"slab{n}")
        I("s_waitcnt lgkmcnt(0)")
        I("s_barrier")
        if n + 9 < N:
            dma(n + 9)
        I(f"v_add_u32 v8, {(n % 10) * 16384}, {C(1)}")
        for t in range(4):
            for half in range(2):
                I(f"ds_read_b64_tr_b16 {wreg(n // nslab, 4 * (n % nslab) + t, 2 * half, 2)}, v8 "
                  f"offset:{ROWMAP[perm](t, half) * 256}")
    I("s_waitcnt lgkmcnt(0)")
    I("s_barrier")


ACC = [8, 24]
BR = 40
EP = 72
vRd = 1


def gemm(k, p, ntile, per, swap, epilogue, src_step, poll_step, extra=None):
    I = k.I
    nk = 4 * sum(per)
    start = [0, 4 * per[0], 4 * (per[0] + per[1])]
    LA = 6 if ntile == 1 else 3

    def dma_all():
        for c in range(3):
            if c == 0:
                I(f"s_mov_b32 m0, {sr(sM0)}")
                so = sSrc
            else:
                d = start[c] * 1024
                if per[c] != per[0]:
                    I(f"s_mul_i32 {sr(sT1)}, {sr(sW)}, {(per[0] - per[c]) * 1024}")
                    I(f"s_sub_u32 {sr(sT1)}, {d}, {sr(sT1)}")
                    I(f"s_add_u32 m0, {sr(sM0)}, {sr(sT1)}")
                    I(f"s_add_u32 {sr(sT0)}, {sr(sSrc)}, {sr(sT1)}")
                else:
                    I(f"s_add_u32 m0, {sr(sM0)}, {d}")
                    I(f"s_add_u32 {sr(sT0)}, {sr(sSrc)}, {d}")
                so = sT0
            for j in range(per[c]):
                I(f"buffer_load_dwordx4 {vr(vL)}, {sr(S_WS, 4)}, {sr(so)} offen offset:{j * 1024} sc1 lds")
        I(f"s_add_u32 {sr(sSrc)}, {sr(sSrc)}, {src_step}")
        I(f"s_sub_u32 {sr(sM0)}, {sr(sC0)}, {sr(sM0)}")

    NS = epilogue(None)
    I(f"s_mul_i32 {sr(sT0)}, {sr(sW)}, {per[0] * 1024}")
    I(f"s_add_u32 {sr(sSrc)}, {sr(sSrc)}, {sr(sT0)}")
    I(f"s_mov_b32 {sr(sM0)}, {sr(sT0)}")
    I(f"s_lshl_b32 {sr(sC0)}, {sr(sT0)}, 1")
    I(f"s_add_u32 {sr(sC0)}, {sr(sC0)}, {BUFSZ}")
    I(f"v_mov_b32 {vr(vRd)}, {vr(vL)}")
    I(f"s_mov_b32 {sr(sSeg)}, 0")
    I(f"s_mov_b32 {sr(sNeed)}, 1")
    stamp(k, 201)
    wait_init(k, p)
    I(f"s_branch {p}_spin")
    k.L(f"{p}_loop")
    k.forget()
    I(f"s_waitcnt vmcnt({per[1] + per[2] + NS})")
    I("s_barrier")
    if OPT.get("ts"):
        I("s_memrealtime s[56:57]")
    I(f"buffer_load_dword {vr(96)}, {C(4)}, {sr(S_WS, 4)}, {sr(sPoll)} offen sc1")
    k.forget()

    def rd(t):
        if t == start[1]:
            I(f"s_waitcnt vmcnt({per[2] + NS + 1})")
            I("s_barrier")
        if t == start[2]:
            I(f"s_waitcnt vmcnt(0)")
            I("s_barrier")
            put_flag(k, sr(sSeg))
            I(f"v_cmp_gt_u32 vcc, {sr(sNeed)}, {vr(96)}")
            I(f"s_mov_b32 {sr(sIss)}, 0")
            I(f"s_cbranch_vccnz {p}_late")
            I(f"s_cmp_eq_u32 {sr(sSeg)}, 63")
            I(f"s_cbranch_scc1 {p}_late")
            dma_all()
            I(f"s_mov_b32 {sr(sIss)}, 1")
            k.L(f"{p}_late")
        I(f"ds_read_b128 {vr(BR + 4 * (t % 8), 4)}, {vr(vRd)} offset:{t * 1024}")

    for t in range(LA):
        rd(t)
    for t in range(nk):
        b = vr(BR + 4 * (t % 8), 4)
        for j in range(ntile):
            a = vr(ACC[j], 16)
            x, y = (b, wreg(j, t)) if swap[j] else (wreg(j, t), b)
            I(f"v_mfma_f32_32x32x16_bf16 {a}, {x}, {y}, {a if t else 0}")
            if j == 0 and t + LA < nk:
                rd(t + LA)
    I(f"v_xor_b32 {vr(vRd)}, {vr(2)}, {vr(vRd)}")
    epilogue(k)
    if OPT.get("ts"):
        I("s_memrealtime s[58:59]")
    I(f"s_add_u32 {sr(sSeg)}, {sr(sSeg)}, 1")
    I(f"s_add_u32 {sr(sNeed)}, {sr(sNeed)}, 1")
    poll_step(k)
    I(f"s_cmp_eq_u32 {sr(sIss)}, 1")
    I(f"s_cbranch_scc1 {p}_loop")
    I("s_waitcnt vmcnt(0)")
    put_flag(k, sr(sSeg), add=65)
    stamp(k, sr(sSeg), add=260, src=56)
    stamp(k, sr(sSeg), add=330, src=58)
    I(f"s_cmp_eq_u32 {sr(sSeg)}, 64")
    I(f"s_cbranch_scc1 {p + '_more' if OPT.get('g0') else 'all_exit'}")
    I(f"s_sub_u32 {sr(sNeed)}, {sr(sNeed)}, 1")
    poll_step(k, back=True)
    k.L(f"{p}_spin")
    spin(k, f"{p}_sp", C(4), sr(sPoll), sr(sNeed))
    stamp(k, sr(sNeed), add=130)
    dma_all()
    for _ in range(NS):
        I(f"buffer_load_dword {vr(97)}, {C(4)}, {sr(S_WS, 4)}, {sr(sPoll)} offen sc1")
    k.forget()
    I(f"s_add_u32 {sr(sNeed)}, {sr(sNeed)}, 1")
    poll_step(k)
    I(f"s_branch {p}_loop")


FF = 108


def empty(k):
    k.I(f"v_mov_b64 {vr(FF, 2)}, -1")
    k.I(f"v_mov_b64 {vr(FF + 2, 2)}, -1")


def ready(k, p):
    k.I("s_waitcnt vmcnt(0)")
    wait_init(k, p)
    put_flag(k, 1, add=201)


def gemm2(k, p, ntile, nb, epilogue, src_step, dst_step, side=None):
    I = k.I
    nk = 4 * nb
    LA = 6 if ntile == 1 else 3

    def dma():
        out = []
        for j in range(nb):
            if j == 0:
                out.append(f"s_mov_b32 m0, {sr(sM0)}")
            elif j % 4 == 0:
                out.append(f"s_add_u32 m0, {sr(sM0)}, {j * 1024}")
                out.append(f"s_add_u32 {sr(sT0)}, {sr(sSrc)}, {j * 1024}")
            out.append(f"buffer_load_dwordx4 {vr(vL)}, {sr(S_WS, 4)}, {sr(sSrc if j < 4 else sT0)} offen "
                       f"offset:{(j % 4) * 1024} sc1 lds")
        return out

    NS = epilogue(None)
    I(f"s_mul_i32 {sr(sC1)}, {sr(sW)}, {nb * 1024}")
    I(f"s_add_u32 {sr(sSrc)}, {sr(sSrc)}, {sr(sC1)}")
    I(f"s_mov_b32 {sr(sM0)}, {sr(sC1)}")
    I(f"s_lshl_b32 {sr(sC0)}, {sr(sC1)}, 1")
    I(f"s_add_u32 {sr(sC0)}, {sr(sC0)}, {BUFSZ}")
    I(f"v_mov_b32 {vr(vRd)}, {vr(vL)}")
    g0 = OPT.get("g0") if p == "gu" else 0
    if not g0:
        I(f"s_mov_b32 {sr(sSeg)}, 0")
    spin(k, f"{p}_sp", C(4), sr(sPoll), 1)
    I(f"v_add_u32 v3, {sr(sC1)}, {vr(vRd)}")
    k.L(f"{p}_again")
    if OPT.get("lk", 0) >> {"wo": 0, "gu": 2, "dn": 3}[p] & 1:
        look(k, f"{p}_look", C(5), sSrc)
    for x in dma() + (side["load"] if side else []):
        I(x)
    I(f"s_sub_u32 {sr(sBud)}, {sr(sBud)}, 1")
    I("s_cbranch_scc1 all_exit")
    I("s_waitcnt vmcnt(0)")
    k.L(f"{p}_loop")
    k.forget()
    I(f"s_waitcnt vmcnt({NS})")
    T = 88
    crd = [f"ds_read2st64_b32 {vr(T + j, 2)}, v3 offset0:{4 * j} offset1:{4 * j + 4}" if j + 1 < nb else
           f"ds_read_b32 {vr(T + j)}, v3 offset:{1024 * j}" for j in range(0, nb, 2)]
    chk = []
    if side:
        c = side["check"]
        chk += [f"v_max3_u32 {vr(T + 10)}, {vr(c[0])}, {vr(c[1])}, {vr(c[2])}",
                f"v_max3_u32 {vr(T + 10)}, {vr(T + 10)}, {vr(c[3])}, {vr(c[4])}"]
    chk += [f"v_max3_u32 {vr(T)}, {vr(T)}, {vr(T + 1)}, {vr(T + 2)}",
            f"v_max3_u32 {vr(T + 3)}, {vr(T + 3)}, {vr(T + 4)}, {vr(T + 5)}",
            f"v_max3_u32 {vr(T + 6)}, {vr(T + 6)}, {vr(T + 7)}, {vr(T + nb - 1)}",
            f"v_max3_u32 {vr(T)}, {vr(T)}, {vr(T + 3)}, {vr(T + 6)}"]
    if side:
        chk += [f"v_max_u32 {vr(T)}, {vr(T)}, {vr(T + 10)}"]
    chk += [f"v_cmp_eq_u32 vcc, -1, {vr(T)}"]
    for x in crd + chk:
        I(x)
    I(f"s_cbranch_vccnz {p}_again")
    stamp(k, sr(sSeg), add=131)
    I("s_barrier")
    stamp(k, sr(sSeg), add=261)
    cy = OPT.get("ts") == 4
    if cy:
        k.raw("\ts_mov_b32 s78, s56\n\ts_memtime s[56:57]")
    rd = lambda t: I(f"ds_read_b128 {vr(BR + 4 * (t % 8), 4)}, {vr(vRd)} offset:{t * 1024}")
    for t in range(LA):
        rd(t)
    if g0:
        I(f"s_cmp_ge_u32 {sr(sSeg)}, {g0}")
        I(f"s_cselect_b32 {sr(sMul)}, 1, 0")
    for x in adv(sSrc, src_step, g0):
        I(x)
    I(f"s_sub_u32 {sr(sM0)}, {sr(sC0)}, {sr(sM0)}")
    spread = lambda xs: sum([[x] + [None] * (OPT.get("sp", 0) if x.startswith("buffer") else 0) for x in xs], [])
    nxt = spread(marks(dst_step, g0) + dma())
    if side:
        nxt = side["use"] + [None] * OPT.get("gl", 0) + nxt + spread(side["load"])
    else:
        nxt = [None] * max(0, min(OPT.get("gw", 0), 2 * nk - len(nxt))) + nxt
    late = OPT.get("g2" + p, 0)
    if late:
        def second():
            k.raw(f"\ts_cbranch_vccz {p}_have")
            for x in dma() + (side["load"] if side else []):
                k.raw("\t" + x)
                if x.startswith("s_") and " m0," in x:
                    k.raw("\ts_nop 0")
            k.raw(f"{p}_have:")
        tl = ["s_waitcnt vmcnt(0)"] + crd + [None] * 4 + chk + [None, second]
        nxt = [f"v_xor_b32 v3, {vr(2)}, {vr(vRd)}", f"v_add_u32 v3, {sr(sC1)}, v3"] + nxt
        gap = 2 * nk * ntile - late - len(tl) - len(nxt)
        assert gap >= 0
        nxt += [None] * gap + tl
    for t in range(nk):
        b = vr(BR + 4 * (t % 8), 4)
        for j in range(ntile):
            a = vr(ACC[j], 16)
            I(f"v_mfma_f32_32x32x16_bf16 {a}, {wreg(j, t)}, {b}, {a if t else 0}")
            if j == 0 and t + LA < nk:
                rd(t + LA)
            for _ in range(2):
                if nxt:
                    x = nxt.pop(0)
                    if callable(x):
                        x()
                    elif x:
                        I(x)
    I(f"v_xor_b32 {vr(vRd)}, {vr(2)}, {vr(vRd)}")
    I(f"v_add_u32 v3, {sr(sC1)}, {vr(vRd)}")
    if cy:
        k.raw("\ts_memtime s[58:59]")
    epilogue(k)
    if cy:
        k.raw("\ts_memtime s[60:61]\n\ts_waitcnt lgkmcnt(0)\n\ts_sub_u32 s70, s58, s56\n\ts_sub_u32 s71, s60, s58\n\ts_sub_u32 s72, s56, s78")
        stamp(k, sr(sSeg), add=0, src=70)
        stamp(k, sr(sSeg), add=65, src=71)
        stamp(k, sr(sSeg), add=130, src=72)
    if g0:
        I(f"s_add_u32 {sr(sSeg)}, {sr(sSeg)}, 1")
        stamp(k, sr(sSeg))
        I(f"s_add_u32 {sr(sSeg)}, {sr(sSeg)}, {sr(sMul)}")
    else:
        I(f"s_add_u32 {sr(sSeg)}, {sr(sSeg)}, 1")
        stamp(k, sr(sSeg))
    I(f"s_cmp_lt_u32 {sr(sSeg)}, 64")
    I(f"s_cbranch_scc1 {p}_loop")
    I("s_branch all_exit")


sMul, sG2, sSpare = sIss, sLn, sKn


def adv(r, step, two):
    if not two:
        return [f"s_add_u32 {sr(r)}, {sr(r)}, {step}"]
    return [f"s_lshl_b32 {sr(sT2)}, {step}, {sr(sMul)}", f"s_add_u32 {sr(r)}, {sr(r)}, {sr(sT2)}"]


def cvt16(k, dst, src):
    for r in range(8):
        k.I(f"v_cvt_pk_bf16_f32 {vr(dst + r)}, {vr(src + 2 * r)}, {vr(src + 2 * r + 1)}")


def st16(k, reg, voff, soff, off):
    k.I(f"buffer_store_dwordx4 {vr(reg, 4)}, {voff}, {sr(S_WS, 4)}, {sr(soff)} offen offset:{off} sc1")


def srd(k, s, karg, nbytes):
    k.I(f"s_load_dwordx2 {sr(s, 2)}, s[0:1], {karg}")
    k.I(f"s_mov_b32 {sr(s + 2)}, {nbytes}")
    k.I(f"s_mov_b32 {sr(s + 3)}, 0x00020000")


def rd_toggle(k):
    k.I(f"v_add_u32 v2, {BUFSZ}, {vr(vL)}")
    k.I(f"v_xor_b32 v2, v2, {vr(vL)}")


def own_flag(k, line):
    k.I(f"s_lshl_b32 {sr(sFlag)}, {sr(sIdx)}, 7")
    k.I(f"s_lshl_b32 {sr(sT0)}, {sr(sW)}, 2")
    k.I(f"s_add_u32 {sr(sFlag)}, {sr(sFlag)}, {sr(sT0)}")
    k.I(f"s_add_u32 {sr(sFlag)}, {sr(sFlag)}, {hex(fl(line))}")


def role_proj(k, isq):
    I = k.I
    p = "q" if isq else "kv"
    k.L(f"{p}_entry")
    consts(k, TROW[R_Q if isq else R_KV])
    srd(k, S_A, 16 if isq else 24, 576 * 8192)
    srd(k, S_B, 16 if isq else 32, 576 * 8192)
    I(f"s_lshl_b32 {sr(sC2)}, {sr(sW)}, 17")
    I(f"s_lshl_b32 {sr(sT0)}, {sr(sIdx)}, {9 if isq else 8}")
    I(f"s_add_u32 {sr(sC2)}, {sr(sC2)}, {sr(sT0)}")
    I(f"s_add_u32 {sr(sC3)}, {sr(sC2)}, {256 if isq else 0}")
    I("s_waitcnt vmcnt(0) lgkmcnt(0)")
    hold(k, p)
    load_weights(k, [(S_A, sC2), (S_B, sC3)], 9, 8192, "nat")
    rd_toggle(k)
    own_flag(k, FL_Q if isq else FL_KV)
    I(f"s_mov_b32 {sr(sSrc)}, {hex(WS_XN)}")
    I(f"s_mov_b32 {sr(sPoll)}, {hex(fl(FL_XN))}")
    I(f"s_lshl_b32 {sr(sDst)}, {sr(sIdx)}, 14")
    I(f"s_lshl_b32 {sr(sT0)}, {sr(sW)}, {10 if isq else 12}")
    I(f"s_add_u32 {sr(sDst)}, {sr(sDst)}, {sr(sT0)}")
    I(f"s_add_u32 {sr(sDst)}, {sr(sDst)}, {hex(WS_Q if isq else WS_KV)}")

    if not isq:
        empty(k)
        I(f"s_lshl_b32 {sr(sDst2)}, {sr(sIdx)}, 13")
        I(f"s_lshl_b32 {sr(sT0)}, {sr(sW)}, 11")
        I(f"s_add_u32 {sr(sDst2)}, {sr(sDst2)}, {sr(sT0)}")
        I(f"s_add_u32 {sr(sDst2)}, {sr(sDst2)}, {hex(WS_KM)}")

    def ep(k):
        if k is None:
            return 4 if isq else 6
        if not isq:
            st16(k, FF, vr(vL), sDst2, 0)
            st16(k, FF, vr(vL), sDst2, 1024)
            k.I(f"s_add_u32 {sr(sDst2)}, {sr(sDst2)}, {32 * 8192}")
        for j in range(2):
            cvt16(k, EP + 8 * j, ACC[j])
            st16(k, EP + 8 * j, C(2 + j), sDst, 0)
            st16(k, EP + 8 * j + 4, C(2 + j), sDst, 512)
        k.I(f"s_add_u32 {sr(sDst)}, {sr(sDst)}, {32 * (8192 if isq else 16384)}")

    def ps(k, back=False):
        k.I(f"s_{'sub' if back else 'add'}_u32 {sr(sPoll)}, {sr(sPoll)}, 128")

    gemm(k, p, 2, [3, 3, 3], [False, not isq], ep, BUFSZ, ps)


def out2(k, step, two=0):
    st16(k, EP, vr(vL), sDst, 0)
    st16(k, EP + 4, vr(vL), sDst, 1024)
    for x in adv(sDst, step, two):
        k.I(x)


def marks(step, g0=0):
    late = [f"s_cmp_ge_u32 {sr(sSeg)}, {g0 - AHEAD}", f"s_cselect_b32 {sr(sT1)}, {sr(sSpare)}, {sr(sT1)}"] if g0 else []
    return [f"s_add_u32 {sr(sT1)}, {sr(sDst)}, {AHEAD * step}"] + late + \
           [f"buffer_store_dwordx4 {vr(FF, 4)}, {vr(vL)}, {sr(S_WS, 4)}, {sr(sT1)} offen offset:{o} sc1" for o in (0, 1024)]


def first2(k, step, more=()):
    empty(k)
    for a in list(range(AHEAD)) + list(more):
        k.I(f"s_add_u32 {sr(sT0)}, {sr(sDst)}, {a * step}")
        st16(k, FF, vr(vL), sT0, 0)
        st16(k, FF, vr(vL), sT0, 1024)


def role_gu(k):
    I = k.I
    g0 = OPT.get("g0", 0)
    if g0:
        k.L("q_more")
        I(f"s_cmp_ge_u32 {sr(sIdx)}, 4")
        I("s_cbranch_scc1 all_exit")
        I(f"s_add_u32 {sr(sIdx)}, {sr(sIdx)}, 32")
        k.L("kv_more")
        I(f"s_mov_b32 {sr(sG2)}, 1")
        I("s_waitcnt vmcnt(0) lgkmcnt(0)")
        I("s_barrier")
        I("s_branch gu_both")
    k.L("gu_entry")
    if g0:
        I(f"s_mov_b32 {sr(sG2)}, 0")
        k.L("gu_both")
    consts(k, TROW[R_GU])
    srd(k, S_A, 64, 576 * 9216)
    srd(k, S_B, 72, 576 * 9216)
    I(f"s_mul_i32 {sr(sC2)}, {sr(sW)}, {16 * 9216}")
    I(f"s_lshl_b32 {sr(sT0)}, {sr(sIdx)}, 8")
    I(f"s_add_u32 {sr(sC2)}, {sr(sC2)}, {sr(sT0)}")
    I("s_waitcnt vmcnt(0) lgkmcnt(0)")
    if g0:
        I(f"s_cmp_eq_u32 {sr(sG2)}, 1")
        I("s_cbranch_scc1 gu_go")
    hold(k, "gu")
    if g0:
        k.L("gu_go")
    load_weights(k, [(S_A, sC2), (S_B, sC2)], 9, 9216, "std")
    rd_toggle(k)
    own_flag(k, FL_GU)
    I(f"s_mov_b32 {sr(sSrc)}, {hex(WS_H)}")
    I(f"s_mov_b32 {sr(sPoll)}, {hex(fl(FL_HN))}")
    I(f"s_lshl_b32 {sr(sDst)}, {sr(sIdx)}, 13")
    I(f"s_lshl_b32 {sr(sT0)}, {sr(sW)}, 11")
    I(f"s_add_u32 {sr(sDst)}, {sr(sDst)}, {sr(sT0)}")
    I(f"s_add_u32 {sr(sDst)}, {sr(sDst)}, {hex(WS_ACT)}")
    if g0:
        I(f"s_add_u32 {sr(sSpare)}, {sr(sDst)}, {64 * 288 * 1024}")
        empty(k)
        I(f"s_cmp_eq_u32 {sr(sG2)}, 1")
        I("s_cbranch_scc1 gu_marked")
    first2(k, 288 * 1024, range(g0, 64) if g0 else ())
    if g0:
        k.L("gu_marked")
    CS, ST = 144, 176
    I(f"s_mov_b32 {sr(sC3)}, 0x3f803f80")
    for r in range(4):
        I(f"v_mov_b32 {vr(BR + r)}, {sr(sC3)}")
    for t in range(36):
        for j in range(2):
            a = vr(CS + 16 * j, 16)
            I(f"v_mfma_f32_32x32x16_bf16 {a}, {wreg(j, t)}, {vr(BR, 4)}, {a if t else 0}")
    I(f"v_and_b32 v4, {31 * 16}, {vr(vL)}")
    I(f"v_and_b32 v5, {32 * 16}, {vr(vL)}")
    I(f"v_lshl_add_u32 v5, v5, 2, v4")
    I(f"v_add_u32 v4, 2048, v4")
    sS = sDst2
    I(f"s_mov_b32 {sr(sS)}, {hex(WS_S)}")
    if g0:
        I(f"s_mul_i32 {sr(sSeg)}, {sr(sG2)}, {g0 + 1}")
        for r, stp in ((sSrc, BUFSZ), (sDst, 288 * 1024), (sS, 8192)):
            I(f"s_mul_i32 {sr(sT0)}, {sr(sSeg)}, {stp}")
            I(f"s_add_u32 {sr(r)}, {sr(r)}, {sr(sT0)}")
        I(f"s_cmp_eq_u32 {sr(sG2)}, 0")
        I("s_cbranch_scc1 gu_first")
        I("v_mov_b32 v8, 0")
        spin(k, "gu_spm", "v8", sr(sFlag), 1)
        I("s_branch gu_set")
        k.L("gu_first")
    ready(k, "gu")
    if g0:
        I("s_waitcnt vmcnt(0)")
        k.L("gu_set")
        k.forget()
    m, v = ST + 10, ST + 12
    load = [f"buffer_load_dwordx2 {vr(ST + 2 * j, 2)}, v5, {sr(S_WS, 4)}, {sr(sS)} offen offset:{512 * j} sc1"
            for j in range(4)]
    load.append(f"buffer_load_dwordx2 {vr(ST + 8, 2)}, v4, {sr(S_WS, 4)}, {sr(sS)} offen offset:2048 sc1")
    rn = lambda r: [f"v_cvt_pk_bf16_f32 {vr(r)}, {vr(r)}, {vr(r)}", f"v_lshlrev_b32 {vr(r)}, 16, {vr(r)}"]
    use = [f"v_pk_add_f32 {vr(ST, 2)}, {vr(ST, 2)}, {vr(ST + 2, 2)}",
           f"v_pk_add_f32 {vr(ST + 4, 2)}, {vr(ST + 4, 2)}, {vr(ST + 6, 2)}",
           f"v_pk_add_f32 {vr(ST + 2, 2)}, {vr(ST, 2)}, {vr(ST + 4, 2)}",
           f"v_pk_add_f32 {vr(ST, 2)}, {vr(ST, 2)}, {vr(ST + 4, 2)}",
           *adv(sS, 8192, g0),
           f"v_permlane32_swap_b32 {vr(ST)}, {vr(ST + 2)}",
           f"v_permlane32_swap_b32 {vr(ST + 1)}, {vr(ST + 3)}",
           f"v_pk_add_f32 {vr(ST, 2)}, {vr(ST, 2)}, {vr(ST + 8, 2)}",
           f"v_pk_add_f32 {vr(ST, 2)}, {vr(ST, 2)}, {vr(ST + 2, 2)}",
           f"v_mul_f32 {vr(m)}, {f32(1 / 576)}, {vr(ST)}",
           f"v_mul_f32 {vr(v)}, {f32(1 / 576)}, {vr(ST + 1)}",
           f"v_fma_f32 {vr(v)}, -{vr(m)}, {vr(m)}, {vr(v)}",
           f"v_max_f32 {vr(v)}, 0, {vr(v)}"] + rn(m) + rn(v) + \
          [f"v_add_f32 {vr(v)}, {f32(1e-5)}, {vr(v)}"] + rn(v) + [f"v_sqrt_f32 {vr(v)}, {vr(v)}", "s_nop 0"] + rn(v) + \
          [f"v_rcp_f32 {vr(v)}, {vr(v)}", "s_nop 0", f"v_mul_f32 {vr(v)}, {vr(v)}, {vr(v)}"]

    def ep(k):
        if k is None:
            return 2
        for r in range(0, 32, 2):
            I(f"v_pk_fma_f32 {vr(ACC[0] + r, 2)}, {vr(CS + r, 2)}, {vr(m, 2)}, {vr(ACC[0] + r, 2)} op_sel_hi:[1,0,1] "
              f"neg_lo:[0,1,0] neg_hi:[0,1,0]")
        for r in range(0, 16, 2):
            I(f"v_pk_mul_f32 {vr(ACC[0] + r, 2)}, {vr(ACC[0] + r, 2)}, {vr(ACC[1] + r, 2)}")
        for r in range(0, 16, 2):
            I(f"v_pk_mul_f32 {vr(ACC[0] + r, 2)}, {vr(ACC[0] + r, 2)}, {vr(v, 2)} op_sel_hi:[1,0]")
        cvt16(k, EP, ACC[0])
        out2(k, 288 * 1024, g0)

    gemm2(k, "gu", 2, 9, ep, BUFSZ, 288 * 1024, dict(load=load, use=use, check=[ST + 2 * j for j in range(5)]))


def role_red(k, dn):
    I = k.I
    p = "dn" if dn else "wo"
    rows = 576 if dn else 512
    k.L(f"{p}_entry")
    consts(k, TROW[R_DN if dn else R_WO])
    srd(k, S_A, 80 if dn else 40, 8 * rows * 1152)
    I(f"s_mul_i32 {sr(sC1)}, {sr(sIdx)}, 52")
    I(f"s_lshr_b32 {sr(sC1)}, {sr(sC1)}, 8")
    I(f"s_mul_i32 {sr(sT0)}, {sr(sC1)}, 5")
    I(f"s_sub_u32 {sr(sC3)}, {sr(sIdx)}, {sr(sT0)}")
    I(f"s_mul_i32 {sr(sC2)}, {sr(sC1)}, {rows * 1152}")
    I(f"s_mul_i32 {sr(sT0)}, {sr(sW)}, {16 * 1152}")
    I(f"s_add_u32 {sr(sC2)}, {sr(sC2)}, {sr(sT0)}")
    I(f"s_lshl_b32 {sr(sT0)}, {sr(sC3)}, 8")
    I(f"s_add_u32 {sr(sC2)}, {sr(sC2)}, {sr(sT0)}")
    I("s_waitcnt vmcnt(0) lgkmcnt(0)")
    hold(k, p)
    load_weights(k, [(S_A, sC2)], rows // 64, 1152, "std" if dn else "o")
    rd_toggle(k)
    own_flag(k, FL_DN if dn else FL_WO)
    I(f"s_mul_i32 {sr(sSrc)}, {sr(sC1)}, {rows * 64}")
    I(f"s_add_u32 {sr(sSrc)}, {sr(sSrc)}, {hex(WS_ACT if dn else WS_O)}")
    if dn:
        I(f"s_mul_i32 {sr(sT0)}, {sr(sC1)}, 18")
        I(f"v_add_u32 {C(4)}, {sr(sT0)}, {C(4)}")
        I(f"v_lshrrev_b32 v8, 2, {C(4)}")
        I(f"v_and_b32 {C(4)}, 3, {C(4)}")
        I(f"v_lshlrev_b32 {C(4)}, 2, {C(4)}")
        I(f"v_lshl_add_u32 {C(4)}, v8, 7, {C(4)}")
        I(f"s_mov_b32 {sr(sPoll)}, {hex(fl(FL_GU))}")
    else:
        I(f"s_lshl_b32 {sr(sPoll)}, {sr(sC1)}, 9")
        I(f"s_add_u32 {sr(sPoll)}, {sr(sPoll)}, {hex(fl(FL_O))}")
    I(f"s_lshl_b32 {sr(sT0)}, {sr(sC3)}, 2")
    I(f"s_add_u32 {sr(sT0)}, {sr(sT0)}, {sr(sW)}")
    I(f"s_lshl_b32 {sr(sDst)}, {sr(sT0)}, 11")
    I(f"s_mul_i32 {sr(sT1)}, {sr(sC1)}, {BUFSZ}")
    I(f"s_add_u32 {sr(sDst)}, {sr(sDst)}, {sr(sT1)}")
    I(f"s_add_u32 {sr(sDst)}, {sr(sDst)}, {hex(WS_DP if dn else WS_WP)}")
    I(f"s_add_u32 {sr(sT1)}, {sr(sDst)}, 0x4000000")
    I(f"s_cmp_lt_u32 {sr(sT0)}, 18")
    I(f"s_cselect_b32 {sr(sDst)}, {sr(sDst)}, {sr(sT1)}")

    first2(k, 8 * BUFSZ)
    ready(k, p)

    def ep(k):
        if k is None:
            return 2
        cvt16(k, EP, ACC[0])
        out2(k, 8 * BUFSZ)

    gemm2(k, p, 1, rows // 64, ep, 8 * rows * 64, 8 * BUFSZ)


def red8(k, op, r, t):
    I = k.I
    for m in ("quad_perm:[1,0,3,2]", "quad_perm:[2,3,0,1]", "row_half_mirror"):
        I(f"{op}_dpp {vr(t)}, {vr(r)}, {vr(r)} {m} row_mask:0xf bank_mask:0xf")
        r, t = t, r
    return r


def sum_regs(k, regs, a, sq=False):
    I = k.I
    for i, r in enumerate(regs):
        d = a + i % 4
        if sq:
            I(f"v_mul_f32 {vr(d)}, {vr(r)}, {vr(r)}" if i < 4 else f"v_fmac_f32 {vr(d)}, {vr(r)}, {vr(r)}")
        elif i < 4:
            continue
        elif i < 8:
            I(f"v_add_f32 {vr(d)}, {vr(regs[i - 4])}, {vr(r)}")
        else:
            I(f"v_add_f32 {vr(d)}, {vr(d)}, {vr(r)}")
    I(f"v_add_f32 {vr(a)}, {vr(a)}, {vr(a + 1)}")
    I(f"v_add_f32 {vr(a + 2)}, {vr(a + 2)}, {vr(a + 3)}")
    I(f"v_add_f32 {vr(a)}, {vr(a)}, {vr(a + 2)}")


def unpack(k, dst, src, n):
    for r in range(n):
        k.I(f"v_lshlrev_b32 {vr(dst + 2 * r)}, 16, {vr(src + r)}")
        k.I(f"v_and_b32 {vr(dst + 2 * r + 1)}, 0xffff0000, {vr(src + r)}")


def rnd(k, r):
    k.I(f"v_cvt_pk_bf16_f32 {vr(r)}, {vr(r)}, {vr(r)}")
    k.I(f"v_lshlrev_b32 {vr(r)}, 16, {vr(r)}")


def normalise(k, x, n, mean, var, pk):
    I = k.I
    rnd(k, mean)
    rnd(k, var)
    I(f"v_add_f32 {vr(var)}, {f32(1e-5)}, {vr(var)}")
    rnd(k, var)
    I(f"v_sqrt_f32 {vr(var)}, {vr(var)}")
    rnd(k, var)
    I(f"v_rcp_f32 {vr(var)}, {vr(var)}")
    for r in range(n):
        I(f"v_sub_f32 {vr(x + r)}, {vr(x + r)}, {vr(mean)}")
    for r in range(n // 2):
        I(f"v_cvt_pk_bf16_f32 {vr(pk + r)}, {vr(x + 2 * r)}, {vr(x + 2 * r + 1)}")
    unpack(k, x, pk, n // 2)
    for r in range(n):
        I(f"v_mul_f32 {vr(x + r)}, {vr(x + r)}, {vr(var)}")
    for r in range(n // 2):
        I(f"v_cvt_pk_bf16_f32 {vr(pk + r)}, {vr(x + 2 * r)}, {vr(x + 2 * r + 1)}")


def role_ln(k):
    I = k.I
    k.L("ln_entry")
    consts(k, 6)
    I(f"s_cmp_lg_u32 {sr(sLn)}, 0")
    I("s_cbranch_scc1 ln_go")
    k.snap("z")
    I("v_mov_b64 v[8:9], 0")
    I("v_mov_b64 v[10:11], 0")
    I(f"s_mul_i32 {sr(sT0)}, {sr(sW)}, 10240")
    I(f"s_add_u32 {sr(sT0)}, {sr(sT0)}, {hex(WS_F)}")
    for i in range(10):
        I(f"buffer_store_dwordx4 v[8:11], {vr(vL)}, {sr(S_WS, 4)}, {sr(sT0)} offen offset:{(i % 4) * 1024} sc1")
        if i % 4 == 3:
            I(f"s_add_u32 {sr(sT0)}, {sr(sT0)}, 4096")
    I("s_waitcnt vmcnt(0)")
    I("s_barrier")
    I("v_mov_b32 v9, 1")
    I("s_mov_b64 exec, 1")
    I(f"global_store_dword v8, v9, {sr(S_DBG, 2)} offset:8 sc1")
    I("s_mov_b64 exec, -1")
    k.L("ln_go")
    k.restore("z")
    I("s_waitcnt vmcnt(0)")
    k.L("ln_loop")
    I(f"s_lshl_b32 {sr(sT0)}, {sr(sLn)}, 2")
    I(f"s_add_u32 {sr(sT0)}, {sr(sT0)}, {sr(sW)}")
    I(f"s_mul_i32 {sr(sT0)}, {sr(sT0)}, {8 * 1152}")
    for i in range(9):
        I(f"buffer_load_dwordx4 {vr(8 + 4 * i, 4)}, {C(2)}, {sr(S_X, 4)}, {sr(sT0)} offen offset:{i * 128}")
    X = 112
    unpack(k, X, 8, 36)
    sum_regs(k, list(range(X, X + 72)), 44)
    r = red8(k, "v_add_f32", 44, 45)
    I(f"v_mul_f32 v48, {f32(1 / 576)}, {vr(r)}")
    for i in range(72):
        I(f"v_sub_f32 {vr(184 + i)}, {vr(X + i)}, v48")
    sum_regs(k, list(range(184, 256)), 44, sq=True)
    r = red8(k, "v_add_f32", 44, 45)
    I(f"v_mul_f32 v49, {f32(1 / 576)}, {vr(r)}")
    normalise(k, X, 72, 48, 49, 8)
    I(f"s_mul_i32 {sr(sT0)}, {sr(sLn)}, {BUFSZ}")
    I(f"s_lshl_b32 {sr(sT1)}, {sr(sW)}, 7")
    I(f"s_add_u32 {sr(sT0)}, {sr(sT0)}, {sr(sT1)}")
    I(f"s_add_u32 {sr(sT0)}, {sr(sT0)}, {hex(WS_XN)}")
    for i in range(9):
        st16(k, 8 + 4 * i, C(0), sT0, 0)
        I(f"s_add_u32 {sr(sT0)}, {sr(sT0)}, 4096")
    I("s_waitcnt vmcnt(0)")
    wait_init(k, "ln")
    I(f"s_lshl_b32 {sr(sFlag)}, {sr(sLn)}, 7")
    I(f"s_lshl_b32 {sr(sT0)}, {sr(sW)}, 2")
    I(f"s_add_u32 {sr(sFlag)}, {sr(sFlag)}, {sr(sT0)}")
    I(f"s_add_u32 {sr(sFlag)}, {sr(sFlag)}, {hex(fl(FL_XN))}")
    I(f"s_add_u32 {sr(sT0)}, {sr(sLn)}, 1")
    put_flag(k, sr(sT0), add=400)
    I(f"s_add_u32 {sr(sLn)}, {sr(sLn)}, 60")
    I(f"s_cmp_lt_u32 {sr(sLn)}, 64")
    k.forget()
    I("s_cbranch_scc1 ln_loop")
    for r, nm in ((R_AT, "at"), (R_R1, "r1"), (R_R2, "r2")):
        I(f"s_cmp_eq_u32 {sr(sRole)}, {r}")
        I(f"s_cbranch_scc1 {nm}_entry")
    I("s_branch all_exit")


def acc_parts(k, A, P, n, ns):
    I = k.I
    for s in range(ns):
        for i in range(n):
            for r in range(4):
                src = P + 4 * (n * s + i) + r
                d = A + 8 * i + 2 * r
                if s == 0:
                    I(f"v_lshlrev_b32 {vr(d)}, 16, {vr(src)}")
                    I(f"v_and_b32 {vr(d + 1)}, 0xffff0000, {vr(src)}")
                else:
                    I(f"v_dot2c_f32_bf16 {vr(d)}, {sr(sC0)}, {vr(src)}")
                    I(f"v_dot2c_f32_bf16 {vr(d + 1)}, {sr(sC1)}, {vr(src)}")


def role_sum(k, last):
    I = k.I
    p = "r2" if last else "r1"
    k.L(f"{p}_entry")
    I(f"s_cmp_eq_u32 {sr(sW)}, 3")
    I("s_cbranch_scc1 all_exit")
    if last:
        srd(k, S_A, 88, 2048 * 1152)
    I(f"s_mov_b32 {sr(sC0)}, 0x3f80")
    I(f"s_mov_b32 {sr(sC1)}, 0x3f800000")
    I(f"s_mov_b32 {sr(sKn)}, 0x3f803f80")
    I(f"s_mul_i32 {sr(sT0)}, {sr(sIdx)}, 3")
    I(f"s_add_u32 {sr(sT0)}, {sr(sT0)}, {sr(sW)}")
    I(f"s_mul_i32 {sr(sC2)}, {sr(sT0)}, 57")
    I(f"s_lshr_b32 {sr(sC2)}, {sr(sC2)}, 9")
    I(f"s_mul_i32 {sr(sT1)}, {sr(sC2)}, 9")
    I(f"s_sub_u32 {sr(sC3)}, {sr(sT0)}, {sr(sT1)}")
    I(f"s_lshl_b32 {sr(sT0)}, {sr(sC3)}, 12")
    I(f"s_lshl_b32 {sr(sT1)}, {sr(sC2)}, 7")
    I(f"s_add_u32 {sr(sT0)}, {sr(sT0)}, {sr(sT1)}")
    I(f"v_add_u32 v3, {sr(sT0)}, {C(0)}")
    I(f"v_add_u32 {C(5)}, {sr(sT0)}, {C(5)}")
    I(f"s_lshl_b32 {sr(sT0)}, {sr(sC3)}, 7")
    I(f"s_mul_i32 {sr(sT1)}, {sr(sC2)}, {8 * 1152}")
    I(f"s_add_u32 {sr(sT0)}, {sr(sT0)}, {sr(sT1)}")
    I(f"v_add_u32 v6, {sr(sT0)}, {C(1)}")
    if not last:
        own_flag(k, FL_HN)
        empty(k)
        I(f"s_lshl_b32 {sr(sT0)}, {sr(sC3)}, 9")
        I(f"s_lshl_b32 {sr(sT1)}, {sr(sC2)}, 7")
        I(f"s_add_u32 {sr(sT0)}, {sr(sT0)}, {sr(sT1)}")
        I(f"v_add_u32 v7, {sr(sT0)}, {C(4)}")
        I(f"s_mov_b32 {sr(sM0)}, {hex(WS_S)}")
        I(f"s_mov_b32 s76, 0x03030303")
        I(f"s_mov_b32 s77, 0x03030303")
        for a in list(range(AHEAD)) + ([OPT["g0"] + 1] if OPT.get("g0") else []):
            I(f"s_mov_b32 {sr(sT0)}, {hex(WS_H + a * BUFSZ)}")
            st16(k, FF, "v3", sT0, 0)
            I(f"s_mov_b32 {sr(sT0)}, {hex(WS_S + a * 8192)}")
            I(f"buffer_store_dwordx2 {vr(FF, 2)}, v7, {sr(S_WS, 4)}, {sr(sT0)} offen sc1")
        I("s_waitcnt vmcnt(0)")
        put_flag(k, 1, add=201)
    I(f"s_mov_b32 {sr(sPoll)}, {hex(fl(FL_DN if last else FL_WO))}")
    I("s_waitcnt lgkmcnt(0)")
    spin(k, f"{p}_sp", C(3), sr(sPoll), 1, wide=True)
    sRow, sH = sSrc, sDst2
    I(f"s_mov_b32 {sr(sSeg)}, 0")
    I(f"s_mov_b32 {sr(sRow)}, 0")
    I(f"s_mov_b32 {sr(sH)}, {hex(WS_H)}")
    I(f"s_mov_b32 {sr(sDst)}, {hex(WS_DP if last else WS_WP)}")
    P, A = 112, 24
    k.L(f"{p}_loop")
    if not last:
        for u in range(2):
            I(f"buffer_load_dwordx2 {vr(8 + 2 * u, 2)}, v6, {sr(S_X, 4)}, {sr(sRow)} offen offset:{16 * u}")
    k.L(f"{p}_again")
    if OPT.get("lk", 0) >> (4 if last else 1) & 1:
        look(k, f"{p}_look", C(5), sDst)
    if last:
        I(f"buffer_load_dwordx4 v[8:11], v3, {sr(S_WS, 4)}, {sr(sH)} offen sc1")
    for s_ in range(8):
        if s_:
            I(f"s_add_u32 {sr(sT0)}, {sr(sDst)}, {s_ * BUFSZ}")
        I(f"buffer_load_dwordx4 {vr(P + 4 * s_, 4)}, v3, {sr(S_WS, 4)}, {sr(sT0 if s_ else sDst)} offen sc1")
    I(f"s_sub_u32 {sr(sBud)}, {sr(sBud)}, 1")
    I("s_cbranch_scc1 all_exit")
    unpack(k, 60, 8, 4)
    I(f"v_max3_u32 v20, {vr(P)}, {vr(P + 4)}, {vr(8 if last else P)}")
    for s_ in range(1, 4):
        I(f"v_max3_u32 v20, v20, {vr(P + 8 * s_)}, {vr(P + 8 * s_ + 4)}")
    I(f"v_cmp_eq_u32 vcc, -1, v20")
    I(f"s_cbranch_vccnz {p}_again")
    stamp(k, sr(sSeg), add=131)
    acc_parts(k, A, P, 1, 8)
    for r in range(4):
        I(f"v_cvt_pk_bf16_f32 {vr(48 + r)}, {vr(A + 2 * r)}, {vr(A + 2 * r + 1)}")
    unpack(k, A, 48, 4)
    for r in range(8):
        I(f"v_add_f32 {vr(A + r)}, {vr(A + r)}, {vr(60 + r)}")
    for r in range(4):
        I(f"v_cvt_pk_bf16_f32 {vr(48 + r)}, {vr(A + 2 * r)}, {vr(A + 2 * r + 1)}")
    if last:
        fl_ = ("", " sc1", " nt", " sc0 sc1", " sc1 nt")[OPT.get("os", 0)]
        I(f"buffer_store_dwordx2 v[48:49], v6, {sr(S_A, 4)}, {sr(sRow)} offen{fl_}")
        I(f"buffer_store_dwordx2 v[50:51], v6, {sr(S_A, 4)}, {sr(sRow)} offen offset:16{fl_}")
    else:
        st16(k, 48, "v3", sH, 0)
        I(f"v_mov_b64 v[52:53], 0")
        for r in range(4):
            I(f"v_dot2c_f32_bf16 v52, {sr(sKn)}, {vr(48 + r)}")
            I(f"v_dot2c_f32_bf16 v53, {vr(48 + r)}, {vr(48 + r)}")
        a_, b_ = 52, 54
        for m in ("quad_perm:[1,0,3,2]", "quad_perm:[2,3,0,1]", "row_half_mirror"):
            for e in range(2):
                I(f"v_add_f32_dpp {vr(b_ + e)}, {vr(a_ + e)}, {vr(a_ + e)} {m} row_mask:0xf bank_mask:0xf")
            a_, b_ = b_, a_
        I(f"s_add_u32 {sr(sT0)}, {sr(sH)}, {AHEAD * BUFSZ}")
        I(f"s_add_u32 {sr(sT1)}, {sr(sM0)}, {AHEAD * 8192}")
        I("s_mov_b64 exec, s[76:77]")
        I(f"buffer_store_dwordx2 {vr(a_, 2)}, v7, {sr(S_WS, 4)}, {sr(sM0)} offen sc1")
        I(f"buffer_store_dwordx2 {vr(FF, 2)}, v7, {sr(S_WS, 4)}, {sr(sT1)} offen sc1")
        I("s_mov_b64 exec, -1")
        st16(k, FF, "v3", sT0, 0)
        I(f"s_add_u32 {sr(sM0)}, {sr(sM0)}, 8192")
    I(f"s_add_u32 {sr(sSeg)}, {sr(sSeg)}, 1")
    I(f"s_add_u32 {sr(sRow)}, {sr(sRow)}, {BUFSZ}")
    I(f"s_add_u32 {sr(sH)}, {sr(sH)}, {BUFSZ}")
    I(f"s_add_u32 {sr(sDst)}, {sr(sDst)}, {8 * BUFSZ}")
    stamp(k, sr(sSeg))
    I(f"s_cmp_lt_u32 {sr(sSeg)}, 64")
    k.forget()
    I(f"s_cbranch_scc1 {p}_loop")
    I("s_branch all_exit")


def role_at(k):
    I = k.I
    k.L("at_entry")
    consts(k, TROW[R_AT])
    own_flag(k, FL_O)
    empty(k)
    Q, KK, V, X, VM, S, SM, O, PK = 8, 24, 56, 112, 200, 136, 144, 152, 184
    sQ, sK, sKM = sSrc, sM0, sC3
    I(f"s_and_b32 {sr(sC1)}, {sr(sW)}, 1")
    I(f"s_lshr_b32 {sr(sSeg)}, {sr(sW)}, 1")
    I(f"s_lshl_b32 {sr(sT1)}, {sr(sIdx)}, 13")
    I("s_waitcnt vmcnt(0)")
    I(f"s_lshl_b32 {sr(sT0)}, {sr(sSeg)}, 18")
    I(f"s_add_u32 {sr(sT1)}, {sr(sT1)}, {sr(sT0)}")
    I(f"s_add_u32 {sr(sKM)}, {sr(sT1)}, {hex(WS_KM)}")
    I(f"s_lshl_b32 {sr(sK)}, {sr(sT1)}, 1")
    I(f"s_lshl_b32 {sr(sT0)}, {sr(sC1)}, 12")
    I(f"s_add_u32 {sr(sQ)}, {sr(sT1)}, {sr(sT0)}")
    I(f"s_add_u32 {sr(sQ)}, {sr(sQ)}, {hex(WS_Q)}")
    I(f"s_lshl_b32 {sr(sT0)}, {sr(sC1)}, 8")
    I(f"s_add_u32 {sr(sDst)}, {sr(sT1)}, {sr(sT0)}")
    I(f"s_add_u32 {sr(sDst)}, {sr(sDst)}, {hex(WS_O)}")
    I(f"s_mov_b32 {sr(sC0)}, {f32(128 ** -0.5 * 1.4426950408889634)}")
    for u in range(1, 4):
        I(f"v_add_u32 {vr(2 + u)}, {4096 * u}, {vr(vL)}")
    I(f"v_add_u32 {C(6)}, 4096, {C(0)}")
    I(f"v_lshlrev_b32 {C(7)}, 9, {C(2)}")

    def st_o(reg, sd):
        for u in range(4):
            st16(k, reg if reg == FF else reg + 4 * u, C(6 if u // 2 else 0), sd, (u % 2) * 2048)

    for a in range(0, AHEAD, 2):
        I(f"s_add_u32 {sr(sT0)}, {sr(sDst)}, {a * 256 * 1024}")
        st_o(FF, sT0)
    I(f"s_lshl_b32 {sr(sT0)}, {sr(sC1)}, 4")
    I(f"v_add_u32 {C(1)}, {sr(sT0)}, {C(1)}")
    for j in range(8):
        I(f"v_cmp_le_i32 {sr(sMask + 2 * j, 2)}, {8 * (j // 4) + j % 4}, {C(1)}")
    I(f"s_sub_u32 {sr(sT0)}, {FL_Q - FL_KV}, {sr(sIdx)}")
    I(f"s_lshr_b32 {sr(sT1)}, {sr(sIdx)}, 1")
    I(f"s_add_u32 {sr(sT0)}, {sr(sT0)}, {sr(sT1)}")
    I(f"s_lshl_b32 {sr(sT0)}, {sr(sT0)}, 7")
    I(f"v_mul_lo_u32 {C(3)}, {C(3)}, {sr(sT0)}")
    I(f"v_add_u32 {C(3)}, {C(3)}, {C(2)}")
    I(f"s_lshl_b32 {sr(sT0)}, {sr(sIdx)}, 7")
    I(f"s_add_u32 {sr(sPoll)}, {sr(sT0)}, {hex(fl(FL_KV))}")
    I(f"v_mov_b32 v6, {f32(-1e30)}")
    I(f"s_mov_b32 {sr(sKn)}, 0")
    I(f"s_mov_b32 s76, 0xff00ff00")
    I(f"s_mov_b32 s77, 0xff00ff00")
    I(f"v_mov_b64 {vr(X, 2)}, 0")
    for r in range(2, 16, 2):
        I(f"v_mov_b64 {vr(X + r, 2)}, 0")
    I("s_waitcnt vmcnt(0)")
    put_flag(k, 1, add=201)
    off = lambda u: vr(vL) if u == 0 else vr(2 + u)

    def known(lab, need):
        I(f"s_cmp_ge_u32 {sr(sKn)}, {need}")
        I(f"s_cbranch_scc1 {lab}_ok")
        spin(k, lab, C(3), sr(sPoll), need)
        r = red8(k, "v_min_u32", 96, 97)
        I(f"v_readfirstlane_b32 {sr(sKn)}, {vr(r)}")
        k.L(f"{lab}_ok")

    def ld_qk():
        for u in range(4):
            I(f"buffer_load_dwordx4 {vr(Q + 4 * u, 4)}, {vr(vL)}, {sr(S_WS, 4)}, {sr(sQ)} offen offset:{u * 1024} sc1")
            for kt in range(2):
                I(f"buffer_load_dwordx4 {vr(KK + 8 * u + 4 * kt, 4)}, {off(u)}, {sr(S_WS, 4)}, {sr(sK)} offen "
                  f"offset:{kt * 1024} sc1")

    def ld_v():
        for u in range(4):
            for et in range(2):
                I(f"buffer_load_dwordx4 {vr(V + 8 * u + 4 * et, 4)}, {off(u)}, {sr(S_WS, 4)}, {sr(sK)} offen "
                  f"offset:{2048 + et * 1024} sc1")

    I(f"s_add_u32 {sr(sNeed)}, {sr(sSeg)}, 1")
    known("at_k0", sr(sNeed))
    ld_qk()
    ld_v()
    I("s_waitcnt vmcnt(0)")
    k.L("at_loop")
    k.forget()
    for u in range(4):
        I(f"s_waitcnt vmcnt({12 + 3 * (3 - u)})")
        for kt in range(2):
            I(f"v_mfma_f32_16x16x32_bf16 {vr(S + 4 * kt, 4)}, {vr(KK + 8 * u + 4 * kt, 4)}, {vr(Q + 4 * u, 4)}, "
              f"{vr(S + 4 * kt, 4) if u else 0}")
    I(f"s_add_u32 {sr(sQ)}, {sr(sQ)}, {2 * 32 * 8192}")
    I(f"s_add_u32 {sr(sK)}, {sr(sK)}, {2 * 32 * 16384}")
    for j in range(8):
        I(f"v_cndmask_b32_e64 {vr(S + j)}, v6, {vr(S + j)}, {sr(sMask + 2 * j, 2)}")
    I(f"v_max3_f32 v2, {vr(S)}, {vr(S + 1)}, {vr(S + 2)}")
    I(f"v_max3_f32 v2, v2, {vr(S + 3)}, {vr(S + 4)}")
    I(f"v_max3_f32 v2, v2, {vr(S + 5)}, {vr(S + 6)}")
    I(f"v_max_f32 v2, v2, {vr(S + 7)}")
    I(f"s_add_u32 {sr(sNeed)}, {sr(sSeg)}, 3")
    I(f"s_min_u32 {sr(sNeed)}, {sr(sNeed)}, 64")
    known("at_k1", sr(sNeed))
    if OPT.get("lp", 1):
        k.L("at_look")
        I(f"buffer_load_dword v92, {C(7)}, {sr(S_WS, 4)}, {sr(sKM)} offen offset:{240 if OPT.get('lp', 1) == 1 else 1024} sc1")
        I(f"s_sub_u32 {sr(sBud)}, {sr(sBud)}, 1")
        I("s_cbranch_scc1 all_exit")
        I("s_waitcnt vmcnt(0)")
        I(f"v_cmp_eq_u32 vcc, -1, v92")
        I(f"s_cbranch_vccnz at_look")
    k.L("at_again")
    I("s_mov_b64 exec, s[76:77]")
    for u in range(4):
        I(f"buffer_load_dwordx4 {vr(X + 4 * u, 4)}, {off(u // 2)}, {sr(S_WS, 4)}, {sr(sKM)} offen "
          f"offset:{(u % 2) * 2048} sc1")
    I("s_mov_b64 exec, -1")
    for u in range(4):
        I(f"buffer_load_dwordx4 {vr(VM + 4 * u, 4)}, {off(u // 2)}, {sr(S_WS, 4)}, {sr(sKM)} offen "
          f"offset:{1024 + (u % 2) * 2048} sc1")
    I(f"s_sub_u32 {sr(sBud)}, {sr(sBud)}, 1")
    I("s_cbranch_scc1 all_exit")
    for u in range(4):
        I(f"v_mfma_f32_16x16x32_bf16 {vr(SM, 4)}, {vr(X + 4 * u, 4)}, {vr(Q + 4 * u, 4)}, {vr(SM, 4) if u else 0}")
    I(f"v_max3_u32 v92, {vr(X)}, {vr(X + 4)}, {vr(X + 8)}")
    I(f"v_max3_u32 v92, v92, {vr(X + 12)}, {vr(VM)}")
    I(f"v_max3_u32 v92, v92, {vr(VM + 4)}, {vr(VM + 8)}")
    I(f"v_max_u32 v92, v92, {vr(VM + 12)}")
    I(f"v_cmp_eq_u32 vcc, -1, v92")
    I(f"s_cbranch_vccnz at_again")
    stamp(k, sr(sSeg), add=131)
    I(f"s_add_u32 {sr(sKM)}, {sr(sKM)}, {2 * 32 * 8192}")
    I("s_mov_b32 exec_hi, 0")
    for r in range(4):
        I(f"v_mov_b32 {vr(SM + r)}, v6")
    I("s_mov_b32 exec_hi, -1")
    I(f"v_max3_f32 v2, v2, {vr(SM)}, {vr(SM + 1)}")
    I(f"v_max3_f32 v92, v2, {vr(SM + 2)}, {vr(SM + 3)}")
    I(f"v_max3_f32 v93, v2, {vr(SM + 2)}, {vr(SM + 3)}")
    I("v_permlane16_swap_b32 v92, v93")
    I("v_max_f32 v2, v92, v93")
    I("v_max_f32 v92, v92, v93")
    I("v_permlane32_swap_b32 v2, v92")
    I("v_max_f32 v2, v2, v92")
    I(f"v_mul_f32 v2, {sr(sC0)}, v2")
    for r in range(12):
        I(f"v_fma_f32 {vr(S + r)}, {vr(S + r)}, {sr(sC0)}, -v2")
    for r in range(12):
        I(f"v_exp_f32 {vr(S + r)}, {vr(S + r)}")
    for r in range(4):
        I(f"v_cvt_pk_bf16_f32 {vr(148 + r)}, {vr(S + 2 * r)}, {vr(S + 2 * r + 1)}")
    for r in (92, 94):
        I(f"v_cvt_pk_bf16_f32 {vr(r)}, {vr(SM)}, {vr(SM + 2)}")
        I(f"v_cvt_pk_bf16_f32 {vr(r + 1)}, {vr(SM + 1)}, {vr(SM + 3)}")
    Z = 88
    red = [f"v_add_f32 {vr(Z + i)}, {vr(S + i)}, {vr(S + 4 + i)}" for i in range(4)]
    red += [f"v_add_f32 {vr(Z + i)}, {vr(Z + i)}, {vr(S + 8 + i)}" for i in range(4)]
    red += [f"v_add_f32 {vr(Z)}, {vr(Z)}, {vr(Z + 1)}", f"v_add_f32 {vr(Z + 2)}, {vr(Z + 2)}, {vr(Z + 3)}",
            f"v_add_f32 {vr(Z + 1)}, {vr(Z)}, {vr(Z + 2)}", f"v_add_f32 {vr(Z)}, {vr(Z)}, {vr(Z + 2)}",
            f"v_permlane16_swap_b32 {vr(Z)}, {vr(Z + 1)}", f"v_add_f32 {vr(Z + 2)}, {vr(Z)}, {vr(Z + 1)}",
            f"v_add_f32 {vr(Z)}, {vr(Z)}, {vr(Z + 1)}", f"v_permlane32_swap_b32 {vr(Z)}, {vr(Z + 2)}",
            f"v_add_f32 {vr(Z)}, {vr(Z)}, {vr(Z + 2)}", f"v_rcp_f32 {vr(Z)}, {vr(Z)}"]
    red = ["v_permlane32_swap_b32 v92, v94", "v_permlane32_swap_b32 v93, v95"] + red
    for u in range(4):
        for et in range(2):
            I(f"v_mfma_f32_16x16x32_bf16 {vr(O + 8 * u + 4 * et, 4)}, {vr(V + 8 * u + 4 * et, 4)}, {vr(148, 4)}, 0")
            for _ in range(2):
                I(red.pop(0))
    for u in range(4):
        for et in range(2):
            I(f"v_mfma_f32_16x16x16_bf16 {vr(O + 8 * u + 4 * et, 4)}, {vr(VM + 4 * u + 2 * et, 2)}, "
              f"v[94:95], {vr(O + 8 * u + 4 * et, 4)}")
            if red:
                I(red.pop(0))
    for u in range(4):
        for r in range(0, 8, 2):
            I(f"v_pk_mul_f32 {vr(O + 8 * u + r, 2)}, {vr(O + 8 * u + r, 2)}, {vr(Z, 2)} op_sel_hi:[1,0]")
        for r in range(4):
            I(f"v_cvt_pk_bf16_f32 {vr(PK + 4 * u + r)}, {vr(O + 8 * u + 2 * r)}, {vr(O + 8 * u + 2 * r + 1)}")
        st16(k, PK + 4 * u, C(6 if u // 2 else 0), sDst, (u % 2) * 2048)
    I(f"s_add_u32 {sr(sSeg)}, {sr(sSeg)}, 2")
    I(f"s_sub_u32 {sr(sT1)}, {sr(sSeg)}, 1")
    stamp(k, sr(sT1))
    I(f"s_cmp_ge_u32 {sr(sSeg)}, 64")
    I("s_cbranch_scc1 all_exit")
    ld_qk()
    ld_v()
    I(f"s_add_u32 {sr(sT0)}, {sr(sDst)}, {AHEAD * 256 * 1024}")
    st_o(FF, sT0)
    I(f"s_add_u32 {sr(sDst)}, {sr(sDst)}, {2 * 256 * 1024}")
    I("s_branch at_loop")


def all_roles(k):
    role_proj(k, False)
    role_proj(k, True)
    role_gu(k)
    role_red(k, False)
    role_red(k, True)
    role_ln(k)
    role_sum(k, False)
    role_sum(k, True)
    role_at(k)
```

```python
import sys
sys.path.insert(0, 'exp')
import h
import os, importlib, roles
chain = importlib.import_module(os.environ.get('CH', 'chain5'))
BEST = ['full', 'gb=2', 'pd=3', 'e3=1', 'e1=1', 'la=1', 'lb=9', 'xa=2', 'ya=1', 'za=0', 'zb=9', 'hold=3', 'hb=12', 'lk=12', 'sp=3']
from gen import K

NAME = "sequential_preLN__memory_aug_recurrent_mem_tr__glu_gated_bilinear__prompt_kernel"


def full_asm(name=NAME, opts=BEST, prof=False):
    chain.OPT.clear()
    chain.OPT.update({x.split('=')[0]: int(x.split('=')[1]) if '=' in x else 1 for x in opts})
    roles.OPT.clear()
    roles.OPT.update(chain.OPT)
    k = K(timed=True)
    roles.entry(k)
    k.L("chain_entry")
    chain.chain_kernel(prof=prof, k=k)
    k.I("s_branch all_exit")
    k.forget()
    roles.all_roles(k)
    k.L("all_exit")
    k.I("s_waitcnt vmcnt(0)")
    if roles.OPT.get("ts"):
        roles.stamp(k, 498)
        k.I("s_waitcnt vmcnt(0)")
        k.L("all_end")
    body = k.render()
    s = "; @launch grid=(256,1,1) block=(256,1,1) lds=163840\n"
    s += '.amdgcn_target "amdgcn-amd-amdhsa--gfx950"\n.text\n'
    s += f".globl {name}\n.p2align 8\n.type {name},@function\n{name}:\n"
    s += body + "\ts_endpgm\n" + chain.table_text("chain_tbl") + roles.tables_text()
    s += h.KD.format(name=name, vgpr=512, acc=256, ka=14 * 8)
    return s, k


if __name__ == "__main__":
    s, k = full_asm()
    co = h.build(s, NAME, 14, "full", launch_lists=True)
    print(co, k.nops, len(s), h.L.address_register_problem(co, NAME, None))
    if len(sys.argv) > 1:
        open(sys.argv[1], "w").write(s)
```

```python
from gen import K, vr, ar, sr
from lay import *

R_CH, R_KV, R_Q, R_AT, R_WO, R_R1, R_GU, R_DN, R_R2, R_NONE = range(10)
TROW = {R_KV: 0, R_Q: 1, R_GU: 2, R_WO: 3, R_DN: 4, R_AT: 5, R_R1: 6, R_R2: 6, R_NONE: 6}

S_WS, S_A, S_B, S_X = 4, 8, 12, 16
S_DBG = 24
sW, sIdx, sSeg, sNeed, sSrc, sDst, sFlag, sPoll, sBud, sM0, sT0, sT1, sT2, sT3, sIss, sLn, sRole, sKn, sW4k = range(26, 45)
sDst2, sC0, sC1, sC2, sC3 = range(45, 50)
sMask = 60
vL = 0
C = lambda i: vr(100 + i)
BUFSZ = 36864
OPT = {}
NL = [0]


def f32(x):
    return hex(int(np.float32(x).view(np.uint32)))


def role_map():
    m = [None] * 256
    groups = [(R_WO, g) for g in range(8)] + [(R_DN, g) for g in range(8)]
    order = [groups[(i // 2) + 8 * (i % 2)] for i in range(16)]
    rest = [(R_KV, i) for i in range(32)] + [(R_Q, i) for i in range(16)] + [(R_AT, i) for i in range(32)] + \
           [(R_GU, i) for i in range(36)] + [(R_R1, i) for i in range(12)] + [(R_R2, i) for i in range(12)] + \
           [(R_NONE, i) for i in range(4)]
    gi = 0
    for base, xs in ((0, range(1, 8)), (5, range(1, 8)), (10, (1, 2))):
        for x in xs:
            r, g = order[gi]
            gi += 1
            for j in range(5):
                m[(base + j) * 8 + x] = (r, g * 5 + j)
    for i in range(32):
        m[i * 8] = (R_CH, i)
    free = [wg for wg in range(256) if m[wg] is None]
    assert len(free) == len(rest)
    for wg, e in zip(free, rest):
        m[wg] = e
    ln = 0
    out = []
    lnidx = {}
    for r in (R_NONE, R_R2, R_R1, R_AT):
        for wg in range(256):
            if m[wg][0] == r:
                lnidx[wg] = ln
                ln += 1
    assert ln == 60
    for wg in range(256):
        r, i = m[wg]
        out.append(r | i << 8 | lnidx.get(wg, 255) << 16)
    return out


def lane_table():
    T = np.zeros((7, 64, 8), np.uint32)
    for l in range(64):
        q, p = l // 16, l % 16
        g, n16 = l // 16, l % 16
        r, c4 = n16 // 4, n16 % 4
        n, hi = l % 32, l // 32
        dm = lambda S: q * S + (p ^ (4 * q)) * 16
        tr = lambda HS: ((g // 2) * HS + r) * 256 + (4 * r + 2 * (g % 2) + c4 // 2) * 16 + (c4 % 2) * 8
        vk = ((n >> 3) & 1) * 1024 + hi * 256 + ((n >> 4) * 8 + (n & 7)) * 16
        vv = 2048 + (n // 16) * 1024 + hi * 256 + (n % 16) * 16
        vq = (n // 16) * 4096 + hi * 256 + (n % 16) * 16
        T[0, l, :6] = [dm(8192), tr(8), vk, vv, (l % 4) * 4, l * 16 if n16 >= 8 else 1024 + (g * 8 + n16) * 16]
        T[1, l, :5] = [dm(8192), tr(8), vq, vq + 8192, (l % 4) * 4]
        T[2, l, :6] = [dm(9216), tr(4), l * 16, 0, ((l % 36) // 3) * 128 + (l % 3) * 4, min(l // 4, 8) * 1024 + l % 4 * 128]
        T[3, l, :6] = [dm(1152), tr(4), l * 16, 0, ((l % 16) // 4) * 128 + (l % 4) * 4, l // 2 % 8 * 1024 + l % 2 * 256]
        T[4, l, :6] = [dm(1152), tr(4), l * 16, 0, l % 18, min(l, 8) * 1024]
        T[5, l, :6] = [g * 512 + n16 * 16, (n16 - 16 * (g // 2) - 4 * (g % 2)) & 0xffffffff, (l % 4) * 4,
                       1 if l % 8 >= 4 else 0, l * 8, l * 16 if n16 >= 8 else 1024 + (g * 8 + n16) * 16]
        nn, pp = l // 8, l % 8
        T[6, l, :6] = [pp * 512 + nn * 16, nn * 1152 + (pp // 2) * 32 + (pp % 2) * 8, nn * 1152 + pp * 16,
                       (l % 40) * 128, nn * 16 + pp % 2 * 8, pp * BUFSZ + nn % 4 * 1024]
    return T


def tables_text():
    s = ".p2align 8\n.type role_tbl,@object\nrole_tbl:\n"
    rm = role_map()
    for i in range(0, 256, 8):
        s += ".long " + ",".join(hex(x) for x in rm[i:i + 8]) + "\n"
    T = lane_table()
    T2 = T.reshape(7, 64, 2, 4).transpose(0, 2, 1, 3).reshape(-1, 8)
    for row in T2:
        s += ".long " + ",".join(hex(int(x)) for x in row) + "\n"
    s += f".size role_tbl, {1024 + T.size * 4}\n"
    return s


def entry(k):
    I = k.I
    I("s_cmp_ge_u32 s2, 256")
    I("s_cbranch_scc1 " + ("all_end" if OPT.get("ts") else "all_exit"))
    I("s_and_b32 s3, s2, 7")
    I("s_cmp_eq_u32 s3, 0")
    I("s_cbranch_scc1 chain_entry")
    I("s_getpc_b64 s[64:65]")
    k.L("role_pc")
    I("s_add_u32 s64, s64, role_tbl-role_pc")
    I("s_addc_u32 s65, s65, 0")
    I("s_lshl_b32 s3, s2, 2")
    I(f"s_load_dword {sr(sRole)}, s[64:65], s3")
    I(f"s_load_dwordx2 {sr(S_WS, 2)}, s[0:1], 104")
    I(f"s_load_dwordx2 {sr(S_DBG, 2)}, s[0:1], 96")
    I(f"s_load_dwordx2 {sr(S_X, 2)}, s[0:1], 0")
    I("v_lshrrev_b32 v8, 6, v0")
    I(f"v_readfirstlane_b32 {sr(sW)}, v8")
    I("v_and_b32 v0, 63, v0")
    I(f"v_lshlrev_b32 {vr(vL)}, 4, v0")
    I(f"s_mov_b32 {sr(S_WS + 2)}, {hex(WS_BYTES)}")
    I(f"s_mov_b32 {sr(S_WS + 3)}, 0x00020000")
    I(f"s_mov_b32 {sr(S_X + 2)}, {2048 * 1152}")
    I(f"s_mov_b32 {sr(S_X + 3)}, 0x00020000")
    I(f"s_mov_b32 {sr(sBud)}, 0x40000")
    I(f"s_lshl_b32 {sr(sW4k)}, {sr(sW)}, 12")
    I("s_waitcnt lgkmcnt(0)")
    I(f"s_bfe_u32 {sr(sIdx)}, {sr(sRole)}, 0x80008")
    I(f"s_bfe_u32 {sr(sLn)}, {sr(sRole)}, 0x80010")
    I(f"s_and_b32 {sr(sRole)}, {sr(sRole)}, 255")
    stamp_base(k, sW)
    stamp(k, 200)
    for r in range(10):
        if OPT.get("off", 0) >> r & 1:
            I(f"s_cmp_eq_u32 {sr(sRole)}, {r}")
            I(f"s_cbranch_scc1 {'all_exit' if r in (R_KV, R_Q, R_GU, R_WO, R_DN) else 'role_off'}")
    for r, nm in ((R_KV, "kv"), (R_Q, "q"), (R_GU, "gu"), (R_WO, "wo"), (R_DN, "dn")):
        I(f"s_cmp_eq_u32 {sr(sRole)}, {r}")
        I(f"s_cbranch_scc1 {nm}_entry")
    I("s_branch ln_entry")
    k.L("role_off")
    I(f"s_mov_b32 {sr(sRole)}, {R_NONE}")
    I("s_branch ln_entry")


def consts(k, row):
    I = k.I
    I(f"v_add_u32 v8, {1024 + row * 2048}, {vr(vL)}")
    I(f"global_load_dwordx4 {vr(100, 4)}, v8, s[64:65]")
    I(f"global_load_dwordx4 {vr(104, 4)}, v8, s[64:65] offset:1024")


def wait_init(k, p):
    I = k.I
    I("v_mov_b32 v8, 0")
    k.L(f"{p}_init")
    I(f"global_load_dword v9, v8, {sr(S_DBG, 2)} offset:8 sc1")
    I(f"s_sub_u32 {sr(sBud)}, {sr(sBud)}, 1")
    I("s_cbranch_scc1 all_exit")
    I("s_waitcnt vmcnt(0)")
    I(f"v_readfirstlane_b32 {sr(sT0)}, v9")
    I(f"s_cmp_eq_u32 {sr(sT0)}, 0")
    I(f"s_cbranch_scc1 {p}_init")


FLG = [" nt", "", " sc1", " sc0 sc1", " sc1 nt", " sc0", " sc0 nt", " sc0 sc1 nt"]


def hold(k, p):
    if not OPT.get("hold", 0) >> {"gu": 0, "dn": 1, "wo": 2, "q": 3, "kv": 4}[p] & 1:
        return
    I = k.I
    mp = OPT.get("mp", 0)
    if mp and p in ("gu", "dn"):
        ms = [m for m in range(4) if mp >> m & 1]
        for m in ms:
            srd(k, 68 + 4 * m, 16 + 8 * m, 576 * 8192)
        I(f"s_lshl_b32 {sr(sT1)}, {sr(sIdx)}, 12")
        I(f"s_lshl_b32 {sr(sT0)}, {sr(sW)}, 10")
        I(f"s_add_u32 {sr(sT1)}, {sr(sT1)}, {sr(sT0)}")
        if p == "dn":
            I(f"s_add_u32 {sr(sT1)}, {sr(sT1)}, {144 * 1024}")
            I(f"s_cmp_ge_u32 {sr(sIdx)}, 36")
            I(f"s_cbranch_scc1 {p}_warm")
        I("s_waitcnt lgkmcnt(0)")
        n = 0
        for i in (range(16) if OPT.get("mr", 0) == 0 else range(15, -1, -1)):
            I(f"s_add_u32 {sr(sT0)}, {sr(sT1)}, {i * 288 * 1024}")
            for m in ms:
                k.raw(f"\tbuffer_load_dwordx4 {vr(12, 4)}, {vr(vL)}, {sr(68 + 4 * m, 4)}, {sr(sT0)} offen{FLG[OPT.get('mf', 1)]}")
                n += 1
                if n > OPT.get("mw", 32):
                    k.raw(f"\ts_waitcnt vmcnt({OPT.get('mw', 32)})")
        k.raw("\ts_waitcnt vmcnt(0)")
        stamp(k, 203)
        k.L(f"{p}_warm")
    I("v_mov_b32 v8, 0")
    k.L(f"{p}_hold")
    I(f"global_load_dword v9, v8, {sr(S_DBG, 2)} offset:128 sc1")
    I(f"s_sub_u32 {sr(sBud)}, {sr(sBud)}, 1")
    I("s_cbranch_scc1 all_exit")
    I("s_waitcnt vmcnt(0)")
    I(f"v_readfirstlane_b32 {sr(sT0)}, v9")
    I(f"s_cmp_lt_u32 {sr(sT0)}, {OPT.get('hn', 32)}")
    I(f"s_cbranch_scc1 {p}_hold")


def stamp(k, val, t0=97, t1=99, add=0, src=None):
    if not OPT.get("ts"):
        return
    I = k.I
    if OPT["ts"] >= 2 and isinstance(val, str):
        if (src is not None and src < 70) or (OPT["ts"] == 2 and add not in (0, 65, 400)) or (OPT["ts"] == 4 and src is None):
            return
        NL[0] += 1
        for x in (f"s_and_b32 s55, {val}, 7" if OPT["ts"] == 2 else f"s_cmp_lt_u32 {val}, {OPT.get('tf', 63)}", f"s_cbranch_scc1 lst_{NL[0]}", "s_memrealtime s[52:53]", "s_nop 4",
                  f"v_mov_b32 {vr(t1)}, {val}", f"v_lshlrev_b32 {vr(t1)}, 2, {vr(t1)}", "s_waitcnt lgkmcnt(0)",
                  f"v_mov_b32 {vr(t0)}, s{src or 52}", "s_mov_b64 exec, 1", "s_nop 1",
                  f"buffer_store_dword {vr(t0)}, {vr(t1)}, {sr(S_WS, 4)}, s54 offen offset:{4 * add}",
                  "s_mov_b64 exec, -1", "s_waitcnt vmcnt(0)" if OPT["ts"] == 2 else "s_nop 0", f"lst_{NL[0]}:"):
            k.raw("\t" + x)
        return
    if src is None:
        I("s_memrealtime s[52:53]")
    I(f"v_mov_b32 {vr(t1)}, {val}")
    I(f"v_lshlrev_b32 {vr(t1)}, 2, {vr(t1)}")
    I("s_waitcnt lgkmcnt(0)")
    I(f"v_mov_b32 {vr(t0)}, s{src or 52}")
    I(f"s_mov_b64 exec, 1")
    I(f"buffer_store_dword {vr(t0)}, {vr(t1)}, {sr(S_WS, 4)}, s54 offen offset:{4 * add}")
    I(f"s_mov_b64 exec, -1")


def stamp_base(k, sw):
    if not OPT.get("ts"):
        return
    k.I(f"s_lshl_b32 s54, s2, 13")
    k.I(f"s_lshl_b32 s55, {sr(sw)}, 11")
    k.I(f"s_add_u32 s54, s54, s55")
    k.I(f"s_add_u32 s54, s54, {hex(WS_TS)}")


def put_flag(k, val, tmp=98, add=0):
    I = k.I
    stamp(k, val, add=add)
    I(f"v_mov_b32 {vr(tmp)}, {val}")
    I(f"s_mov_b64 exec, 1")
    I(f"buffer_store_dword {vr(tmp)}, off, {sr(S_WS, 4)}, {sr(sFlag)} sc1")
    I(f"s_mov_b64 exec, -1")


def spin(k, lab, voff, soff, need, wide=False, dst=96):
    I = k.I
    k.L(lab)
    if wide:
        I(f"buffer_load_dwordx4 {vr(92, 4)}, {voff}, {sr(S_WS, 4)}, {soff} offen sc1")
    else:
        I(f"buffer_load_dword {vr(dst)}, {voff}, {sr(S_WS, 4)}, {soff} offen sc1")
    I(f"s_sub_u32 {sr(sBud)}, {sr(sBud)}, 1")
    I("s_cbranch_scc1 all_exit")
    I("s_waitcnt vmcnt(0)")
    if wide:
        I(f"v_min_u32 {vr(92)}, {vr(92)}, {vr(93)}")
        I(f"v_min3_u32 {vr(dst)}, {vr(92)}, {vr(94)}, {vr(95)}")
    I(f"v_cmp_gt_u32 vcc, {need}, {vr(dst)}")
    I(f"s_cbranch_vccnz {lab}")


def look(k, lab, voff, soff, off=0, one=0):
    I = k.I
    if one:
        I(f"s_mov_b64 exec, {one}")
    k.L(lab)
    I(f"buffer_load_dword v92, {voff}, {sr(S_WS, 4)}, {sr(soff)} offen offset:{off} sc1")
    I(f"s_sub_u32 {sr(sBud)}, {sr(sBud)}, 1")
    I("s_cbranch_scc1 all_exit")
    I("s_waitcnt vmcnt(0)")
    I(f"v_cmp_eq_u32 vcc, -1, v92")
    I(f"s_cbranch_vccnz {lab}")
    if one:
        I(f"s_mov_b64 exec, -1")


def wreg(t, ks, off=0, n=4):
    i = (36 * t + ks) * 4
    if i < 256:
        return ar(i + off, n)
    return vr(112 + i - 256 + off, n)


ROWMAP = {
    "nat": lambda t, half: 16 * t + 4 * half,
    "std": lambda t, half: 16 * t + 8 * half,
    "o": lambda t, half: 32 * (t // 2) + 16 * half + 8 * (t % 2),
}


def load_weights(k, mats, nslab, S, perm):
    I = k.I
    N = len(mats) * nslab

    def dma(n):
        d, base = mats[n // nslab]
        sl = n % nslab
        for i in range(4):
            I(f"s_add_u32 {sr(sT0)}, {sr(base)}, {(64 * sl + 4 * i) * S}")
            I(f"s_add_u32 m0, {sr(sW4k)}, {(n % 10) * 16384 + i * 1024}")
            I(f"buffer_load_dwordx4 {C(0)}, {sr(d, 4)}, {sr(sT0)} offen{FLG[OPT.get('kn', 0)]} lds")
        k.tag(f"slab{n}")

    for n in range(min(9, N)):
        dma(n)
    I(f"s_lshl_b32 {sr(sT0)}, {sr(sW)}, 6")
    I(f"v_xor_b32 {C(1)}, {sr(sT0)}, {C(1)}")
    for n in range(N):
        k.wait_tag(f"slab{n}")
        I("s_waitcnt lgkmcnt(0)")
        I("s_barrier")
        if n + 9 < N:
            dma(n + 9)
        I(f"v_add_u32 v8, {(n % 10) * 16384}, {C(1)}")
        for t in range(4):
            for half in range(2):
                I(f"ds_read_b64_tr_b16 {wreg(n // nslab, 4 * (n % nslab) + t, 2 * half, 2)}, v8 "
                  f"offset:{ROWMAP[perm](t, half) * 256}")
    I("s_waitcnt lgkmcnt(0)")
    I("s_barrier")


ACC = [8, 24]
BR = 40
EP = 72
vRd = 1


def gemm(k, p, ntile, per, swap, epilogue, src_step, poll_step, extra=None):
    I = k.I
    nk = 4 * sum(per)
    start = [0, 4 * per[0], 4 * (per[0] + per[1])]
    LA = 6 if ntile == 1 else 3

    def dma_all():
        for c in range(3):
            if c == 0:
                I(f"s_mov_b32 m0, {sr(sM0)}")
                so = sSrc
            else:
                d = start[c] * 1024
                if per[c] != per[0]:
                    I(f"s_mul_i32 {sr(sT1)}, {sr(sW)}, {(per[0] - per[c]) * 1024}")
                    I(f"s_sub_u32 {sr(sT1)}, {d}, {sr(sT1)}")
                    I(f"s_add_u32 m0, {sr(sM0)}, {sr(sT1)}")
                    I(f"s_add_u32 {sr(sT0)}, {sr(sSrc)}, {sr(sT1)}")
                else:
                    I(f"s_add_u32 m0, {sr(sM0)}, {d}")
                    I(f"s_add_u32 {sr(sT0)}, {sr(sSrc)}, {d}")
                so = sT0
            for j in range(per[c]):
                I(f"buffer_load_dwordx4 {vr(vL)}, {sr(S_WS, 4)}, {sr(so)} offen offset:{j * 1024} sc1 lds")
        I(f"s_add_u32 {sr(sSrc)}, {sr(sSrc)}, {src_step}")
        I(f"s_sub_u32 {sr(sM0)}, {sr(sC0)}, {sr(sM0)}")

    NS = epilogue(None)
    I(f"s_mul_i32 {sr(sT0)}, {sr(sW)}, {per[0] * 1024}")
    I(f"s_add_u32 {sr(sSrc)}, {sr(sSrc)}, {sr(sT0)}")
    I(f"s_mov_b32 {sr(sM0)}, {sr(sT0)}")
    I(f"s_lshl_b32 {sr(sC0)}, {sr(sT0)}, 1")
    I(f"s_add_u32 {sr(sC0)}, {sr(sC0)}, {BUFSZ}")
    I(f"v_mov_b32 {vr(vRd)}, {vr(vL)}")
    I(f"s_mov_b32 {sr(sSeg)}, 0")
    I(f"s_mov_b32 {sr(sNeed)}, 1")
    stamp(k, 201)
    wait_init(k, p)
    I(f"s_branch {p}_spin")
    k.L(f"{p}_loop")
    k.forget()
    I(f"s_waitcnt vmcnt({per[1] + per[2] + NS})")
    I("s_barrier")
    if OPT.get("ts"):
        I("s_memrealtime s[56:57]")
    I(f"buffer_load_dword {vr(96)}, {C(4)}, {sr(S_WS, 4)}, {sr(sPoll)} offen sc1")
    k.forget()

    def rd(t):
        if t == start[1]:
            I(f"s_waitcnt vmcnt({per[2] + NS + 1})")
            I("s_barrier")
        if t == start[2]:
            I(f"s_waitcnt vmcnt(0)")
            I("s_barrier")
            put_flag(k, sr(sSeg))
            I(f"v_cmp_gt_u32 vcc, {sr(sNeed)}, {vr(96)}")
            I(f"s_mov_b32 {sr(sIss)}, 0")
            I(f"s_cbranch_vccnz {p}_late")
            I(f"s_cmp_eq_u32 {sr(sSeg)}, 63")
            I(f"s_cbranch_scc1 {p}_late")
            dma_all()
            I(f"s_mov_b32 {sr(sIss)}, 1")
            k.L(f"{p}_late")
        I(f"ds_read_b128 {vr(BR + 4 * (t % 8), 4)}, {vr(vRd)} offset:{t * 1024}")

    for t in range(LA):
        rd(t)
    for t in range(nk):
        b = vr(BR + 4 * (t % 8), 4)
        for j in range(ntile):
            a = vr(ACC[j], 16)
            x, y = (b, wreg(j, t)) if swap[j] else (wreg(j, t), b)
            I(f"v_mfma_f32_32x32x16_bf16 {a}, {x}, {y}, {a if t else 0}")
            if j == 0 and t + LA < nk:
                rd(t + LA)
    I(f"v_xor_b32 {vr(vRd)}, {vr(2)}, {vr(vRd)}")
    epilogue(k)
    if OPT.get("ts"):
        I("s_memrealtime s[58:59]")
    I(f"s_add_u32 {sr(sSeg)}, {sr(sSeg)}, 1")
    I(f"s_add_u32 {sr(sNeed)}, {sr(sNeed)}, 1")
    poll_step(k)
    I(f"s_cmp_eq_u32 {sr(sIss)}, 1")
    I(f"s_cbranch_scc1 {p}_loop")
    I("s_waitcnt vmcnt(0)")
    put_flag(k, sr(sSeg), add=65)
    stamp(k, sr(sSeg), add=260, src=56)
    stamp(k, sr(sSeg), add=330, src=58)
    I(f"s_cmp_eq_u32 {sr(sSeg)}, 64")
    I(f"s_cbranch_scc1 {p + '_more' if OPT.get('g0') else 'all_exit'}")
    I(f"s_sub_u32 {sr(sNeed)}, {sr(sNeed)}, 1")
    poll_step(k, back=True)
    k.L(f"{p}_spin")
    spin(k, f"{p}_sp", C(4), sr(sPoll), sr(sNeed))
    stamp(k, sr(sNeed), add=130)
    dma_all()
    for _ in range(NS):
        I(f"buffer_load_dword {vr(97)}, {C(4)}, {sr(S_WS, 4)}, {sr(sPoll)} offen sc1")
    k.forget()
    I(f"s_add_u32 {sr(sNeed)}, {sr(sNeed)}, 1")
    poll_step(k)
    I(f"s_branch {p}_loop")


FF = 108


def empty(k):
    k.I(f"v_mov_b64 {vr(FF, 2)}, -1")
    k.I(f"v_mov_b64 {vr(FF + 2, 2)}, -1")


def ready(k, p):
    k.I("s_waitcnt vmcnt(0)")
    wait_init(k, p)
    put_flag(k, 1, add=201)


def gemm2(k, p, ntile, nb, epilogue, src_step, dst_step, side=None):
    I = k.I
    nk = 4 * nb
    LA = 6 if ntile == 1 else 3

    def dma():
        out = []
        for j in range(nb):
            if j == 0:
                out.append(f"s_mov_b32 m0, {sr(sM0)}")
            elif j % 4 == 0:
                out.append(f"s_add_u32 m0, {sr(sM0)}, {j * 1024}")
                out.append(f"s_add_u32 {sr(sT0)}, {sr(sSrc)}, {j * 1024}")
            out.append(f"buffer_load_dwordx4 {vr(vL)}, {sr(S_WS, 4)}, {sr(sSrc if j < 4 else sT0)} offen "
                       f"offset:{(j % 4) * 1024} sc1 lds")
        return out

    NS = epilogue(None)
    I(f"s_mul_i32 {sr(sC1)}, {sr(sW)}, {nb * 1024}")
    I(f"s_add_u32 {sr(sSrc)}, {sr(sSrc)}, {sr(sC1)}")
    I(f"s_mov_b32 {sr(sM0)}, {sr(sC1)}")
    I(f"s_lshl_b32 {sr(sC0)}, {sr(sC1)}, 1")
    I(f"s_add_u32 {sr(sC0)}, {sr(sC0)}, {BUFSZ}")
    I(f"v_mov_b32 {vr(vRd)}, {vr(vL)}")
    g0 = OPT.get("g0") if p == "gu" else 0
    if not g0:
        I(f"s_mov_b32 {sr(sSeg)}, 0")
    spin(k, f"{p}_sp", C(4), sr(sPoll), 1)
    I(f"v_add_u32 v3, {sr(sC1)}, {vr(vRd)}")
    bit = {"wo": 0, "gu": 2, "dn": 3}[p]
    l1 = OPT.get("l1", 0) >> bit & 1
    if l1:
        I(f"s_mov_b32 {sr(sNeed)}, 0")
    k.L(f"{p}_again")
    if l1:
        I(f"s_cmp_eq_u32 {sr(sNeed)}, 1")
        I(f"s_cbranch_scc1 {p}_seen")
        look(k, f"{p}_look", C(5), sSrc, one=OPT.get("lm", 1))
        I(f"s_mov_b32 {sr(sNeed)}, 1")
        k.L(f"{p}_seen")
    elif OPT.get("lk", 0) >> bit & 1:
        look(k, f"{p}_look", C(5), sSrc)
    for x in dma() + (side["load"] if side else []):
        I(x)
    I(f"s_sub_u32 {sr(sBud)}, {sr(sBud)}, 1")
    I("s_cbranch_scc1 all_exit")
    I("s_waitcnt vmcnt(0)")
    k.L(f"{p}_loop")
    k.forget()
    I(f"s_waitcnt vmcnt({NS})")
    T = 88
    crd = [f"ds_read2st64_b32 {vr(T + j, 2)}, v3 offset0:{4 * j} offset1:{4 * j + 4}" if j + 1 < nb else
           f"ds_read_b32 {vr(T + j)}, v3 offset:{1024 * j}" for j in range(0, nb, 2)]
    chk = []
    if side:
        c = side["check"]
        chk += [f"v_max3_u32 {vr(T + 10)}, {vr(c[0])}, {vr(c[1])}, {vr(c[2])}",
                f"v_max3_u32 {vr(T + 10)}, {vr(T + 10)}, {vr(c[3])}, {vr(c[4])}"]
    chk += [f"v_max3_u32 {vr(T)}, {vr(T)}, {vr(T + 1)}, {vr(T + 2)}",
            f"v_max3_u32 {vr(T + 3)}, {vr(T + 3)}, {vr(T + 4)}, {vr(T + 5)}",
            f"v_max3_u32 {vr(T + 6)}, {vr(T + 6)}, {vr(T + 7)}, {vr(T + nb - 1)}",
            f"v_max3_u32 {vr(T)}, {vr(T)}, {vr(T + 3)}, {vr(T + 6)}"]
    if side:
        chk += [f"v_max_u32 {vr(T)}, {vr(T)}, {vr(T + 10)}"]
    chk += [f"v_cmp_eq_u32 vcc, -1, {vr(T)}"]
    for x in crd + chk:
        I(x)
    I(f"s_cbranch_vccnz {p}_again")
    stamp(k, sr(sSeg), add=131)
    I("s_barrier")
    stamp(k, sr(sSeg), add=261)
    cy = OPT.get("ts") == 4
    if cy:
        k.raw("\ts_mov_b32 s78, s56\n\ts_memtime s[56:57]")
    rd = lambda t: I(f"ds_read_b128 {vr(BR + 4 * (t % 8), 4)}, {vr(vRd)} offset:{t * 1024}")
    for t in range(LA):
        rd(t)
    if l1:
        I(f"s_mov_b32 {sr(sNeed)}, 0")
    if g0:
        I(f"s_cmp_ge_u32 {sr(sSeg)}, {g0}")
        I(f"s_cselect_b32 {sr(sMul)}, 1, 0")
    for x in adv(sSrc, src_step, g0):
        I(x)
    I(f"s_sub_u32 {sr(sM0)}, {sr(sC0)}, {sr(sM0)}")
    spread = lambda xs: sum([[x] + [None] * (OPT.get("sp", 0) if x.startswith("buffer") else 0) for x in xs], [])
    nxt = spread(marks(dst_step, g0) + dma())
    if side:
        nxt = side["use"] + [None] * OPT.get("gl", 0) + nxt + spread(side["load"])
    else:
        nxt = [None] * max(0, min(OPT.get("gw", 0), 2 * nk - len(nxt))) + nxt
    late = OPT.get("g2" + p, 0)
    if late:
        def second():
            k.raw(f"\ts_cbranch_vccz {p}_have")
            for x in dma() + (side["load"] if side else []):
                k.raw("\t" + x)
                if x.startswith("s_") and " m0," in x:
                    k.raw("\ts_nop 0")
            k.raw(f"{p}_have:")
        tl = ["s_waitcnt vmcnt(0)"] + crd + [None] * 4 + chk + [None, second]
        nxt = [f"v_xor_b32 v3, {vr(2)}, {vr(vRd)}", f"v_add_u32 v3, {sr(sC1)}, v3"] + nxt
        gap = 2 * nk * ntile - late - len(tl) - len(nxt)
        assert gap >= 0
        nxt += [None] * gap + tl
    for t in range(nk):
        b = vr(BR + 4 * (t % 8), 4)
        for j in range(ntile):
            a = vr(ACC[j], 16)
            I(f"v_mfma_f32_32x32x16_bf16 {a}, {wreg(j, t)}, {b}, {a if t else 0}")
            if j == 0 and t + LA < nk:
                rd(t + LA)
            for _ in range(2):
                if nxt:
                    x = nxt.pop(0)
                    if callable(x):
                        x()
                    elif x:
                        I(x)
    I(f"v_xor_b32 {vr(vRd)}, {vr(2)}, {vr(vRd)}")
    I(f"v_add_u32 v3, {sr(sC1)}, {vr(vRd)}")
    if cy:
        k.raw("\ts_memtime s[58:59]")
    epilogue(k)
    if cy:
        k.raw("\ts_memtime s[60:61]\n\ts_waitcnt lgkmcnt(0)\n\ts_sub_u32 s70, s58, s56\n\ts_sub_u32 s71, s60, s58\n\ts_sub_u32 s72, s56, s78")
        stamp(k, sr(sSeg), add=0, src=70)
        stamp(k, sr(sSeg), add=65, src=71)
        stamp(k, sr(sSeg), add=130, src=72)
    if g0:
        I(f"s_add_u32 {sr(sSeg)}, {sr(sSeg)}, 1")
        stamp(k, sr(sSeg))
        I(f"s_add_u32 {sr(sSeg)}, {sr(sSeg)}, {sr(sMul)}")
    else:
        I(f"s_add_u32 {sr(sSeg)}, {sr(sSeg)}, 1")
        stamp(k, sr(sSeg))
    I(f"s_cmp_lt_u32 {sr(sSeg)}, 64")
    I(f"s_cbranch_scc1 {p}_loop")
    I("s_branch all_exit")


sMul, sG2, sSpare = sIss, sLn, sKn


def adv(r, step, two):
    if not two:
        return [f"s_add_u32 {sr(r)}, {sr(r)}, {step}"]
    return [f"s_lshl_b32 {sr(sT2)}, {step}, {sr(sMul)}", f"s_add_u32 {sr(r)}, {sr(r)}, {sr(sT2)}"]


def cvt16(k, dst, src):
    for r in range(8):
        k.I(f"v_cvt_pk_bf16_f32 {vr(dst + r)}, {vr(src + 2 * r)}, {vr(src + 2 * r + 1)}")


def st16(k, reg, voff, soff, off):
    k.I(f"buffer_store_dwordx4 {vr(reg, 4)}, {voff}, {sr(S_WS, 4)}, {sr(soff)} offen offset:{off} sc1")


def srd(k, s, karg, nbytes):
    k.I(f"s_load_dwordx2 {sr(s, 2)}, s[0:1], {karg}")
    k.I(f"s_mov_b32 {sr(s + 2)}, {nbytes}")
    k.I(f"s_mov_b32 {sr(s + 3)}, 0x00020000")


def rd_toggle(k):
    k.I(f"v_add_u32 v2, {BUFSZ}, {vr(vL)}")
    k.I(f"v_xor_b32 v2, v2, {vr(vL)}")


def own_flag(k, line):
    k.I(f"s_lshl_b32 {sr(sFlag)}, {sr(sIdx)}, 7")
    k.I(f"s_lshl_b32 {sr(sT0)}, {sr(sW)}, 2")
    k.I(f"s_add_u32 {sr(sFlag)}, {sr(sFlag)}, {sr(sT0)}")
    k.I(f"s_add_u32 {sr(sFlag)}, {sr(sFlag)}, {hex(fl(line))}")


def role_proj(k, isq):
    I = k.I
    p = "q" if isq else "kv"
    k.L(f"{p}_entry")
    consts(k, TROW[R_Q if isq else R_KV])
    srd(k, S_A, 16 if isq else 24, 576 * 8192)
    srd(k, S_B, 16 if isq else 32, 576 * 8192)
    I(f"s_lshl_b32 {sr(sC2)}, {sr(sW)}, 17")
    I(f"s_lshl_b32 {sr(sT0)}, {sr(sIdx)}, {9 if isq else 8}")
    I(f"s_add_u32 {sr(sC2)}, {sr(sC2)}, {sr(sT0)}")
    I(f"s_add_u32 {sr(sC3)}, {sr(sC2)}, {256 if isq else 0}")
    I("s_waitcnt vmcnt(0) lgkmcnt(0)")
    hold(k, p)
    load_weights(k, [(S_A, sC2), (S_B, sC3)], 9, 8192, "nat")
    rd_toggle(k)
    own_flag(k, FL_Q if isq else FL_KV)
    I(f"s_mov_b32 {sr(sSrc)}, {hex(WS_XN)}")
    I(f"s_mov_b32 {sr(sPoll)}, {hex(fl(FL_XN))}")
    I(f"s_lshl_b32 {sr(sDst)}, {sr(sIdx)}, 14")
    I(f"s_lshl_b32 {sr(sT0)}, {sr(sW)}, {10 if isq else 12}")
    I(f"s_add_u32 {sr(sDst)}, {sr(sDst)}, {sr(sT0)}")
    I(f"s_add_u32 {sr(sDst)}, {sr(sDst)}, {hex(WS_Q if isq else WS_KV)}")

    if not isq:
        empty(k)
        I(f"s_lshl_b32 {sr(sDst2)}, {sr(sIdx)}, 13")
        I(f"s_lshl_b32 {sr(sT0)}, {sr(sW)}, 11")
        I(f"s_add_u32 {sr(sDst2)}, {sr(sDst2)}, {sr(sT0)}")
        I(f"s_add_u32 {sr(sDst2)}, {sr(sDst2)}, {hex(WS_KM)}")

    def ep(k):
        if k is None:
            return 4 if isq else 6
        if not isq:
            st16(k, FF, vr(vL), sDst2, 0)
            st16(k, FF, vr(vL), sDst2, 1024)
            k.I(f"s_add_u32 {sr(sDst2)}, {sr(sDst2)}, {32 * 8192}")
        for j in range(2):
            cvt16(k, EP + 8 * j, ACC[j])
            st16(k, EP + 8 * j, C(2 + j), sDst, 0)
            st16(k, EP + 8 * j + 4, C(2 + j), sDst, 512)
        k.I(f"s_add_u32 {sr(sDst)}, {sr(sDst)}, {32 * (8192 if isq else 16384)}")

    def ps(k, back=False):
        k.I(f"s_{'sub' if back else 'add'}_u32 {sr(sPoll)}, {sr(sPoll)}, 128")

    gemm(k, p, 2, [3, 3, 3], [False, not isq], ep, BUFSZ, ps)


def out2(k, step, two=0):
    st16(k, EP, vr(vL), sDst, 0)
    st16(k, EP + 4, vr(vL), sDst, 1024)
    for x in adv(sDst, step, two):
        k.I(x)


def marks(step, g0=0):
    late = [f"s_cmp_ge_u32 {sr(sSeg)}, {g0 - AHEAD}", f"s_cselect_b32 {sr(sT1)}, {sr(sSpare)}, {sr(sT1)}"] if g0 else []
    return [f"s_add_u32 {sr(sT1)}, {sr(sDst)}, {AHEAD * step}"] + late + \
           [f"buffer_store_dwordx4 {vr(FF, 4)}, {vr(vL)}, {sr(S_WS, 4)}, {sr(sT1)} offen offset:{o} sc1" for o in (0, 1024)]


def first2(k, step, more=()):
    empty(k)
    for a in list(range(AHEAD)) + list(more):
        k.I(f"s_add_u32 {sr(sT0)}, {sr(sDst)}, {a * step}")
        st16(k, FF, vr(vL), sT0, 0)
        st16(k, FF, vr(vL), sT0, 1024)


def role_gu(k):
    I = k.I
    g0 = OPT.get("g0", 0)
    if g0:
        k.L("q_more")
        I(f"s_cmp_ge_u32 {sr(sIdx)}, 4")
        I("s_cbranch_scc1 all_exit")
        I(f"s_add_u32 {sr(sIdx)}, {sr(sIdx)}, 32")
        k.L("kv_more")
        I(f"s_mov_b32 {sr(sG2)}, 1")
        I("s_waitcnt vmcnt(0) lgkmcnt(0)")
        I("s_barrier")
        I("s_branch gu_both")
    k.L("gu_entry")
    if g0:
        I(f"s_mov_b32 {sr(sG2)}, 0")
        k.L("gu_both")
    consts(k, TROW[R_GU])
    srd(k, S_A, 64, 576 * 9216)
    srd(k, S_B, 72, 576 * 9216)
    I(f"s_mul_i32 {sr(sC2)}, {sr(sW)}, {16 * 9216}")
    I(f"s_lshl_b32 {sr(sT0)}, {sr(sIdx)}, 8")
    I(f"s_add_u32 {sr(sC2)}, {sr(sC2)}, {sr(sT0)}")
    I("s_waitcnt vmcnt(0) lgkmcnt(0)")
    if g0:
        I(f"s_cmp_eq_u32 {sr(sG2)}, 1")
        I("s_cbranch_scc1 gu_go")
    hold(k, "gu")
    if g0:
        k.L("gu_go")
    load_weights(k, [(S_A, sC2), (S_B, sC2)], 9, 9216, "std")
    rd_toggle(k)
    own_flag(k, FL_GU)
    I(f"s_mov_b32 {sr(sSrc)}, {hex(WS_H)}")
    I(f"s_mov_b32 {sr(sPoll)}, {hex(fl(FL_HN))}")
    I(f"s_lshl_b32 {sr(sDst)}, {sr(sIdx)}, 13")
    I(f"s_lshl_b32 {sr(sT0)}, {sr(sW)}, 11")
    I(f"s_add_u32 {sr(sDst)}, {sr(sDst)}, {sr(sT0)}")
    I(f"s_add_u32 {sr(sDst)}, {sr(sDst)}, {hex(WS_ACT)}")
    if g0:
        I(f"s_add_u32 {sr(sSpare)}, {sr(sDst)}, {64 * 288 * 1024}")
        empty(k)
        I(f"s_cmp_eq_u32 {sr(sG2)}, 1")
        I("s_cbranch_scc1 gu_marked")
    first2(k, 288 * 1024, range(g0, 64) if g0 else ())
    if g0:
        k.L("gu_marked")
    CS, ST = 144, 176
    I(f"s_mov_b32 {sr(sC3)}, 0x3f803f80")
    for r in range(4):
        I(f"v_mov_b32 {vr(BR + r)}, {sr(sC3)}")
    for t in range(36):
        for j in range(2):
            a = vr(CS + 16 * j, 16)
            I(f"v_mfma_f32_32x32x16_bf16 {a}, {wreg(j, t)}, {vr(BR, 4)}, {a if t else 0}")
    I(f"v_and_b32 v4, {31 * 16}, {vr(vL)}")
    I(f"v_and_b32 v5, {32 * 16}, {vr(vL)}")
    I(f"v_lshl_add_u32 v5, v5, 2, v4")
    I(f"v_add_u32 v4, 2048, v4")
    sS = sDst2
    I(f"s_mov_b32 {sr(sS)}, {hex(WS_S)}")
    if g0:
        I(f"s_mul_i32 {sr(sSeg)}, {sr(sG2)}, {g0 + 1}")
        for r, stp in ((sSrc, BUFSZ), (sDst, 288 * 1024), (sS, 8192)):
            I(f"s_mul_i32 {sr(sT0)}, {sr(sSeg)}, {stp}")
            I(f"s_add_u32 {sr(r)}, {sr(r)}, {sr(sT0)}")
        I(f"s_cmp_eq_u32 {sr(sG2)}, 0")
        I("s_cbranch_scc1 gu_first")
        I("v_mov_b32 v8, 0")
        spin(k, "gu_spm", "v8", sr(sFlag), 1)
        I("s_branch gu_set")
        k.L("gu_first")
    ready(k, "gu")
    if g0:
        I("s_waitcnt vmcnt(0)")
        k.L("gu_set")
        k.forget()
    m, v = ST + 10, ST + 12
    load = [f"buffer_load_dwordx2 {vr(ST + 2 * j, 2)}, v5, {sr(S_WS, 4)}, {sr(sS)} offen offset:{512 * j} sc1"
            for j in range(4)]
    load.append(f"buffer_load_dwordx2 {vr(ST + 8, 2)}, v4, {sr(S_WS, 4)}, {sr(sS)} offen offset:2048 sc1")
    rn = lambda r: [f"v_cvt_pk_bf16_f32 {vr(r)}, {vr(r)}, {vr(r)}", f"v_lshlrev_b32 {vr(r)}, 16, {vr(r)}"]
    use = [f"v_pk_add_f32 {vr(ST, 2)}, {vr(ST, 2)}, {vr(ST + 2, 2)}",
           f"v_pk_add_f32 {vr(ST + 4, 2)}, {vr(ST + 4, 2)}, {vr(ST + 6, 2)}",
           f"v_pk_add_f32 {vr(ST + 2, 2)}, {vr(ST, 2)}, {vr(ST + 4, 2)}",
           f"v_pk_add_f32 {vr(ST, 2)}, {vr(ST, 2)}, {vr(ST + 4, 2)}",
           *adv(sS, 8192, g0),
           f"v_permlane32_swap_b32 {vr(ST)}, {vr(ST + 2)}",
           f"v_permlane32_swap_b32 {vr(ST + 1)}, {vr(ST + 3)}",
           f"v_pk_add_f32 {vr(ST, 2)}, {vr(ST, 2)}, {vr(ST + 8, 2)}",
           f"v_pk_add_f32 {vr(ST, 2)}, {vr(ST, 2)}, {vr(ST + 2, 2)}",
           f"v_mul_f32 {vr(m)}, {f32(1 / 576)}, {vr(ST)}",
           f"v_mul_f32 {vr(v)}, {f32(1 / 576)}, {vr(ST + 1)}",
           f"v_fma_f32 {vr(v)}, -{vr(m)}, {vr(m)}, {vr(v)}",
           f"v_max_f32 {vr(v)}, 0, {vr(v)}"] + rn(m) + rn(v) + \
          [f"v_add_f32 {vr(v)}, {f32(1e-5)}, {vr(v)}"] + rn(v) + [f"v_sqrt_f32 {vr(v)}, {vr(v)}", "s_nop 0"] + rn(v) + \
          [f"v_rcp_f32 {vr(v)}, {vr(v)}", "s_nop 0", f"v_mul_f32 {vr(v)}, {vr(v)}, {vr(v)}"]

    def ep(k):
        if k is None:
            return 2
        for r in range(0, 32, 2):
            I(f"v_pk_fma_f32 {vr(ACC[0] + r, 2)}, {vr(CS + r, 2)}, {vr(m, 2)}, {vr(ACC[0] + r, 2)} op_sel_hi:[1,0,1] "
              f"neg_lo:[0,1,0] neg_hi:[0,1,0]")
        for r in range(0, 16, 2):
            I(f"v_pk_mul_f32 {vr(ACC[0] + r, 2)}, {vr(ACC[0] + r, 2)}, {vr(ACC[1] + r, 2)}")
        for r in range(0, 16, 2):
            I(f"v_pk_mul_f32 {vr(ACC[0] + r, 2)}, {vr(ACC[0] + r, 2)}, {vr(v, 2)} op_sel_hi:[1,0]")
        cvt16(k, EP, ACC[0])
        out2(k, 288 * 1024, g0)

    gemm2(k, "gu", 2, 9, ep, BUFSZ, 288 * 1024, dict(load=load, use=use, check=[ST + 2 * j for j in range(5)]))


def role_red(k, dn):
    I = k.I
    p = "dn" if dn else "wo"
    rows = 576 if dn else 512
    k.L(f"{p}_entry")
    consts(k, TROW[R_DN if dn else R_WO])
    srd(k, S_A, 80 if dn else 40, 8 * rows * 1152)
    I(f"s_mul_i32 {sr(sC1)}, {sr(sIdx)}, 52")
    I(f"s_lshr_b32 {sr(sC1)}, {sr(sC1)}, 8")
    I(f"s_mul_i32 {sr(sT0)}, {sr(sC1)}, 5")
    I(f"s_sub_u32 {sr(sC3)}, {sr(sIdx)}, {sr(sT0)}")
    I(f"s_mul_i32 {sr(sC2)}, {sr(sC1)}, {rows * 1152}")
    I(f"s_mul_i32 {sr(sT0)}, {sr(sW)}, {16 * 1152}")
    I(f"s_add_u32 {sr(sC2)}, {sr(sC2)}, {sr(sT0)}")
    I(f"s_lshl_b32 {sr(sT0)}, {sr(sC3)}, 8")
    I(f"s_add_u32 {sr(sC2)}, {sr(sC2)}, {sr(sT0)}")
    I("s_waitcnt vmcnt(0) lgkmcnt(0)")
    hold(k, p)
    load_weights(k, [(S_A, sC2)], rows // 64, 1152, "std" if dn else "o")
    rd_toggle(k)
    own_flag(k, FL_DN if dn else FL_WO)
    I(f"s_mul_i32 {sr(sSrc)}, {sr(sC1)}, {rows * 64}")
    I(f"s_add_u32 {sr(sSrc)}, {sr(sSrc)}, {hex(WS_ACT if dn else WS_O)}")
    if dn:
        I(f"s_mul_i32 {sr(sT0)}, {sr(sC1)}, 18")
        I(f"v_add_u32 {C(4)}, {sr(sT0)}, {C(4)}")
        I(f"v_lshrrev_b32 v8, 2, {C(4)}")
        I(f"v_and_b32 {C(4)}, 3, {C(4)}")
        I(f"v_lshlrev_b32 {C(4)}, 2, {C(4)}")
        I(f"v_lshl_add_u32 {C(4)}, v8, 7, {C(4)}")
        I(f"s_mov_b32 {sr(sPoll)}, {hex(fl(FL_GU))}")
    else:
        I(f"s_lshl_b32 {sr(sPoll)}, {sr(sC1)}, 9")
        I(f"s_add_u32 {sr(sPoll)}, {sr(sPoll)}, {hex(fl(FL_O))}")
    I(f"s_lshl_b32 {sr(sT0)}, {sr(sC3)}, 2")
    I(f"s_add_u32 {sr(sT0)}, {sr(sT0)}, {sr(sW)}")
    I(f"s_lshl_b32 {sr(sDst)}, {sr(sT0)}, 11")
    I(f"s_mul_i32 {sr(sT1)}, {sr(sC1)}, {BUFSZ}")
    I(f"s_add_u32 {sr(sDst)}, {sr(sDst)}, {sr(sT1)}")
    I(f"s_add_u32 {sr(sDst)}, {sr(sDst)}, {hex(WS_DP if dn else WS_WP)}")
    I(f"s_add_u32 {sr(sT1)}, {sr(sDst)}, 0x4000000")
    I(f"s_cmp_lt_u32 {sr(sT0)}, 18")
    I(f"s_cselect_b32 {sr(sDst)}, {sr(sDst)}, {sr(sT1)}")

    first2(k, 8 * BUFSZ)
    ready(k, p)

    def ep(k):
        if k is None:
            return 2
        cvt16(k, EP, ACC[0])
        out2(k, 8 * BUFSZ)

    gemm2(k, p, 1, rows // 64, ep, 8 * rows * 64, 8 * BUFSZ)


def red8(k, op, r, t):
    I = k.I
    for m in ("quad_perm:[1,0,3,2]", "quad_perm:[2,3,0,1]", "row_half_mirror"):
        I(f"{op}_dpp {vr(t)}, {vr(r)}, {vr(r)} {m} row_mask:0xf bank_mask:0xf")
        r, t = t, r
    return r


def sum_regs(k, regs, a, sq=False):
    I = k.I
    for i, r in enumerate(regs):
        d = a + i % 4
        if sq:
            I(f"v_mul_f32 {vr(d)}, {vr(r)}, {vr(r)}" if i < 4 else f"v_fmac_f32 {vr(d)}, {vr(r)}, {vr(r)}")
        elif i < 4:
            continue
        elif i < 8:
            I(f"v_add_f32 {vr(d)}, {vr(regs[i - 4])}, {vr(r)}")
        else:
            I(f"v_add_f32 {vr(d)}, {vr(d)}, {vr(r)}")
    I(f"v_add_f32 {vr(a)}, {vr(a)}, {vr(a + 1)}")
    I(f"v_add_f32 {vr(a + 2)}, {vr(a + 2)}, {vr(a + 3)}")
    I(f"v_add_f32 {vr(a)}, {vr(a)}, {vr(a + 2)}")


def unpack(k, dst, src, n):
    for r in range(n):
        k.I(f"v_lshlrev_b32 {vr(dst + 2 * r)}, 16, {vr(src + r)}")
        k.I(f"v_and_b32 {vr(dst + 2 * r + 1)}, 0xffff0000, {vr(src + r)}")


def rnd(k, r):
    k.I(f"v_cvt_pk_bf16_f32 {vr(r)}, {vr(r)}, {vr(r)}")
    k.I(f"v_lshlrev_b32 {vr(r)}, 16, {vr(r)}")


def normalise(k, x, n, mean, var, pk):
    I = k.I
    rnd(k, mean)
    rnd(k, var)
    I(f"v_add_f32 {vr(var)}, {f32(1e-5)}, {vr(var)}")
    rnd(k, var)
    I(f"v_sqrt_f32 {vr(var)}, {vr(var)}")
    rnd(k, var)
    I(f"v_rcp_f32 {vr(var)}, {vr(var)}")
    for r in range(n):
        I(f"v_sub_f32 {vr(x + r)}, {vr(x + r)}, {vr(mean)}")
    for r in range(n // 2):
        I(f"v_cvt_pk_bf16_f32 {vr(pk + r)}, {vr(x + 2 * r)}, {vr(x + 2 * r + 1)}")
    unpack(k, x, pk, n // 2)
    for r in range(n):
        I(f"v_mul_f32 {vr(x + r)}, {vr(x + r)}, {vr(var)}")
    for r in range(n // 2):
        I(f"v_cvt_pk_bf16_f32 {vr(pk + r)}, {vr(x + 2 * r)}, {vr(x + 2 * r + 1)}")


def role_ln(k):
    I = k.I
    k.L("ln_entry")
    consts(k, 6)
    I(f"s_cmp_lg_u32 {sr(sLn)}, 0")
    I("s_cbranch_scc1 ln_go")
    k.snap("z")
    I("v_mov_b64 v[8:9], 0")
    I("v_mov_b64 v[10:11], 0")
    I(f"s_mul_i32 {sr(sT0)}, {sr(sW)}, 10240")
    I(f"s_add_u32 {sr(sT0)}, {sr(sT0)}, {hex(WS_F)}")
    for i in range(10):
        I(f"buffer_store_dwordx4 v[8:11], {vr(vL)}, {sr(S_WS, 4)}, {sr(sT0)} offen offset:{(i % 4) * 1024} sc1")
        if i % 4 == 3:
            I(f"s_add_u32 {sr(sT0)}, {sr(sT0)}, 4096")
    I("s_waitcnt vmcnt(0)")
    I("s_barrier")
    I("v_mov_b32 v9, 1")
    I("s_mov_b64 exec, 1")
    I(f"global_store_dword v8, v9, {sr(S_DBG, 2)} offset:8 sc1")
    I("s_mov_b64 exec, -1")
    k.L("ln_go")
    k.restore("z")
    I("s_waitcnt vmcnt(0)")
    k.L("ln_loop")
    I(f"s_lshl_b32 {sr(sT0)}, {sr(sLn)}, 2")
    I(f"s_add_u32 {sr(sT0)}, {sr(sT0)}, {sr(sW)}")
    I(f"s_mul_i32 {sr(sT0)}, {sr(sT0)}, {8 * 1152}")
    for i in range(9):
        I(f"buffer_load_dwordx4 {vr(8 + 4 * i, 4)}, {C(2)}, {sr(S_X, 4)}, {sr(sT0)} offen offset:{i * 128}")
    X = 112
    unpack(k, X, 8, 36)
    sum_regs(k, list(range(X, X + 72)), 44)
    r = red8(k, "v_add_f32", 44, 45)
    I(f"v_mul_f32 v48, {f32(1 / 576)}, {vr(r)}")
    for i in range(72):
        I(f"v_sub_f32 {vr(184 + i)}, {vr(X + i)}, v48")
    sum_regs(k, list(range(184, 256)), 44, sq=True)
    r = red8(k, "v_add_f32", 44, 45)
    I(f"v_mul_f32 v49, {f32(1 / 576)}, {vr(r)}")
    normalise(k, X, 72, 48, 49, 8)
    I(f"s_mul_i32 {sr(sT0)}, {sr(sLn)}, {BUFSZ}")
    I(f"s_lshl_b32 {sr(sT1)}, {sr(sW)}, 7")
    I(f"s_add_u32 {sr(sT0)}, {sr(sT0)}, {sr(sT1)}")
    I(f"s_add_u32 {sr(sT0)}, {sr(sT0)}, {hex(WS_XN)}")
    for i in range(9):
        st16(k, 8 + 4 * i, C(0), sT0, 0)
        I(f"s_add_u32 {sr(sT0)}, {sr(sT0)}, 4096")
    I("s_waitcnt vmcnt(0)")
    wait_init(k, "ln")
    I(f"s_lshl_b32 {sr(sFlag)}, {sr(sLn)}, 7")
    I(f"s_lshl_b32 {sr(sT0)}, {sr(sW)}, 2")
    I(f"s_add_u32 {sr(sFlag)}, {sr(sFlag)}, {sr(sT0)}")
    I(f"s_add_u32 {sr(sFlag)}, {sr(sFlag)}, {hex(fl(FL_XN))}")
    I(f"s_add_u32 {sr(sT0)}, {sr(sLn)}, 1")
    put_flag(k, sr(sT0), add=400)
    I(f"s_add_u32 {sr(sLn)}, {sr(sLn)}, 60")
    I(f"s_cmp_lt_u32 {sr(sLn)}, 64")
    k.forget()
    I("s_cbranch_scc1 ln_loop")
    for r, nm in ((R_AT, "at"), (R_R1, "r1"), (R_R2, "r2")):
        I(f"s_cmp_eq_u32 {sr(sRole)}, {r}")
        I(f"s_cbranch_scc1 {nm}_entry")
    I("s_branch all_exit")


def acc_parts(k, A, P, n, ns):
    I = k.I
    for s in range(ns):
        for i in range(n):
            for r in range(4):
                src = P + 4 * (n * s + i) + r
                d = A + 8 * i + 2 * r
                if s == 0:
                    I(f"v_lshlrev_b32 {vr(d)}, 16, {vr(src)}")
                    I(f"v_and_b32 {vr(d + 1)}, 0xffff0000, {vr(src)}")
                else:
                    I(f"v_dot2c_f32_bf16 {vr(d)}, {sr(sC0)}, {vr(src)}")
                    I(f"v_dot2c_f32_bf16 {vr(d + 1)}, {sr(sC1)}, {vr(src)}")


def role_sum(k, last):
    I = k.I
    p = "r2" if last else "r1"
    k.L(f"{p}_entry")
    I(f"s_cmp_eq_u32 {sr(sW)}, 3")
    I("s_cbranch_scc1 all_exit")
    if last:
        srd(k, S_A, 88, 2048 * 1152)
    I(f"s_mov_b32 {sr(sC0)}, 0x3f80")
    I(f"s_mov_b32 {sr(sC1)}, 0x3f800000")
    I(f"s_mov_b32 {sr(sKn)}, 0x3f803f80")
    I(f"s_mul_i32 {sr(sT0)}, {sr(sIdx)}, 3")
    I(f"s_add_u32 {sr(sT0)}, {sr(sT0)}, {sr(sW)}")
    I(f"s_mul_i32 {sr(sC2)}, {sr(sT0)}, 57")
    I(f"s_lshr_b32 {sr(sC2)}, {sr(sC2)}, 9")
    I(f"s_mul_i32 {sr(sT1)}, {sr(sC2)}, 9")
    I(f"s_sub_u32 {sr(sC3)}, {sr(sT0)}, {sr(sT1)}")
    I(f"s_lshl_b32 {sr(sT0)}, {sr(sC3)}, 12")
    I(f"s_lshl_b32 {sr(sT1)}, {sr(sC2)}, 7")
    I(f"s_add_u32 {sr(sT0)}, {sr(sT0)}, {sr(sT1)}")
    I(f"v_add_u32 v3, {sr(sT0)}, {C(0)}")
    I(f"v_add_u32 {C(5)}, {sr(sT0)}, {C(5)}")
    I(f"s_lshl_b32 {sr(sT0)}, {sr(sC3)}, 7")
    I(f"s_mul_i32 {sr(sT1)}, {sr(sC2)}, {8 * 1152}")
    I(f"s_add_u32 {sr(sT0)}, {sr(sT0)}, {sr(sT1)}")
    I(f"v_add_u32 v6, {sr(sT0)}, {C(1)}")
    if not last:
        own_flag(k, FL_HN)
        empty(k)
        I(f"s_lshl_b32 {sr(sT0)}, {sr(sC3)}, 9")
        I(f"s_lshl_b32 {sr(sT1)}, {sr(sC2)}, 7")
        I(f"s_add_u32 {sr(sT0)}, {sr(sT0)}, {sr(sT1)}")
        I(f"v_add_u32 v7, {sr(sT0)}, {C(4)}")
        I(f"s_mov_b32 {sr(sM0)}, {hex(WS_S)}")
        I(f"s_mov_b32 s76, 0x03030303")
        I(f"s_mov_b32 s77, 0x03030303")
        for a in list(range(AHEAD)) + ([OPT["g0"] + 1] if OPT.get("g0") else []):
            I(f"s_mov_b32 {sr(sT0)}, {hex(WS_H + a * BUFSZ)}")
            st16(k, FF, "v3", sT0, 0)
            I(f"s_mov_b32 {sr(sT0)}, {hex(WS_S + a * 8192)}")
            I(f"buffer_store_dwordx2 {vr(FF, 2)}, v7, {sr(S_WS, 4)}, {sr(sT0)} offen sc1")
        I("s_waitcnt vmcnt(0)")
        put_flag(k, 1, add=201)
    I(f"s_mov_b32 {sr(sPoll)}, {hex(fl(FL_DN if last else FL_WO))}")
    I("s_waitcnt lgkmcnt(0)")
    spin(k, f"{p}_sp", C(3), sr(sPoll), 1, wide=True)
    sRow, sH = sSrc, sDst2
    I(f"s_mov_b32 {sr(sSeg)}, 0")
    I(f"s_mov_b32 {sr(sRow)}, 0")
    I(f"s_mov_b32 {sr(sH)}, {hex(WS_H)}")
    I(f"s_mov_b32 {sr(sDst)}, {hex(WS_DP if last else WS_WP)}")
    P, A = 112, 24
    k.L(f"{p}_loop")
    if not last:
        for u in range(2):
            I(f"buffer_load_dwordx2 {vr(8 + 2 * u, 2)}, v6, {sr(S_X, 4)}, {sr(sRow)} offen offset:{16 * u}")
    l1 = OPT.get("l1", 0) >> (4 if last else 1) & 1
    if l1:
        k.forget()
        look(k, f"{p}_look", C(5), sDst, one=OPT.get("lm", 1))
    k.L(f"{p}_again")
    if OPT.get("lk", 0) >> (4 if last else 1) & 1 and not l1:
        look(k, f"{p}_look", C(5), sDst)
    if last:
        I(f"buffer_load_dwordx4 v[8:11], v3, {sr(S_WS, 4)}, {sr(sH)} offen sc1")
    for s_ in range(8):
        if s_:
            I(f"s_add_u32 {sr(sT0)}, {sr(sDst)}, {s_ * BUFSZ}")
        I(f"buffer_load_dwordx4 {vr(P + 4 * s_, 4)}, v3, {sr(S_WS, 4)}, {sr(sT0 if s_ else sDst)} offen sc1")
    I(f"s_sub_u32 {sr(sBud)}, {sr(sBud)}, 1")
    I("s_cbranch_scc1 all_exit")
    unpack(k, 60, 8, 4)
    I(f"v_max3_u32 v20, {vr(P)}, {vr(P + 4)}, {vr(8 if last else P)}")
    for s_ in range(1, 4):
        I(f"v_max3_u32 v20, v20, {vr(P + 8 * s_)}, {vr(P + 8 * s_ + 4)}")
    I(f"v_cmp_eq_u32 vcc, -1, v20")
    I(f"s_cbranch_vccnz {p}_again")
    stamp(k, sr(sSeg), add=131)
    acc_parts(k, A, P, 1, 8)
    for r in range(4):
        I(f"v_cvt_pk_bf16_f32 {vr(48 + r)}, {vr(A + 2 * r)}, {vr(A + 2 * r + 1)}")
    unpack(k, A, 48, 4)
    for r in range(8):
        I(f"v_add_f32 {vr(A + r)}, {vr(A + r)}, {vr(60 + r)}")
    for r in range(4):
        I(f"v_cvt_pk_bf16_f32 {vr(48 + r)}, {vr(A + 2 * r)}, {vr(A + 2 * r + 1)}")
    if last:
        fl_ = ("", " sc1", " nt", " sc0 sc1", " sc1 nt")[OPT.get("os", 0)]
        I(f"buffer_store_dwordx2 v[48:49], v6, {sr(S_A, 4)}, {sr(sRow)} offen{fl_}")
        I(f"buffer_store_dwordx2 v[50:51], v6, {sr(S_A, 4)}, {sr(sRow)} offen offset:16{fl_}")
    else:
        st16(k, 48, "v3", sH, 0)
        I(f"v_mov_b64 v[52:53], 0")
        for r in range(4):
            I(f"v_dot2c_f32_bf16 v52, {sr(sKn)}, {vr(48 + r)}")
            I(f"v_dot2c_f32_bf16 v53, {vr(48 + r)}, {vr(48 + r)}")
        a_, b_ = 52, 54
        for m in ("quad_perm:[1,0,3,2]", "quad_perm:[2,3,0,1]", "row_half_mirror"):
            for e in range(2):
                I(f"v_add_f32_dpp {vr(b_ + e)}, {vr(a_ + e)}, {vr(a_ + e)} {m} row_mask:0xf bank_mask:0xf")
            a_, b_ = b_, a_
        I(f"s_add_u32 {sr(sT0)}, {sr(sH)}, {AHEAD * BUFSZ}")
        I(f"s_add_u32 {sr(sT1)}, {sr(sM0)}, {AHEAD * 8192}")
        I("s_mov_b64 exec, s[76:77]")
        I(f"buffer_store_dwordx2 {vr(a_, 2)}, v7, {sr(S_WS, 4)}, {sr(sM0)} offen sc1")
        I(f"buffer_store_dwordx2 {vr(FF, 2)}, v7, {sr(S_WS, 4)}, {sr(sT1)} offen sc1")
        I("s_mov_b64 exec, -1")
        st16(k, FF, "v3", sT0, 0)
        I(f"s_add_u32 {sr(sM0)}, {sr(sM0)}, 8192")
    I(f"s_add_u32 {sr(sSeg)}, {sr(sSeg)}, 1")
    I(f"s_add_u32 {sr(sRow)}, {sr(sRow)}, {BUFSZ}")
    I(f"s_add_u32 {sr(sH)}, {sr(sH)}, {BUFSZ}")
    I(f"s_add_u32 {sr(sDst)}, {sr(sDst)}, {8 * BUFSZ}")
    stamp(k, sr(sSeg))
    I(f"s_cmp_lt_u32 {sr(sSeg)}, 64")
    k.forget()
    I(f"s_cbranch_scc1 {p}_loop")
    I("s_branch all_exit")


def role_at(k):
    I = k.I
    k.L("at_entry")
    consts(k, TROW[R_AT])
    own_flag(k, FL_O)
    empty(k)
    Q, KK, V, X, VM, S, SM, O, PK = 8, 24, 56, 112, 200, 136, 144, 152, 184
    sQ, sK, sKM = sSrc, sM0, sC3
    I(f"s_and_b32 {sr(sC1)}, {sr(sW)}, 1")
    I(f"s_lshr_b32 {sr(sSeg)}, {sr(sW)}, 1")
    I(f"s_lshl_b32 {sr(sT1)}, {sr(sIdx)}, 13")
    I("s_waitcnt vmcnt(0)")
    I(f"s_lshl_b32 {sr(sT0)}, {sr(sSeg)}, 18")
    I(f"s_add_u32 {sr(sT1)}, {sr(sT1)}, {sr(sT0)}")
    I(f"s_add_u32 {sr(sKM)}, {sr(sT1)}, {hex(WS_KM)}")
    I(f"s_lshl_b32 {sr(sK)}, {sr(sT1)}, 1")
    I(f"s_lshl_b32 {sr(sT0)}, {sr(sC1)}, 12")
    I(f"s_add_u32 {sr(sQ)}, {sr(sT1)}, {sr(sT0)}")
    I(f"s_add_u32 {sr(sQ)}, {sr(sQ)}, {hex(WS_Q)}")
    I(f"s_lshl_b32 {sr(sT0)}, {sr(sC1)}, 8")
    I(f"s_add_u32 {sr(sDst)}, {sr(sT1)}, {sr(sT0)}")
    I(f"s_add_u32 {sr(sDst)}, {sr(sDst)}, {hex(WS_O)}")
    I(f"s_mov_b32 {sr(sC0)}, {f32(128 ** -0.5 * 1.4426950408889634)}")
    for u in range(1, 4):
        I(f"v_add_u32 {vr(2 + u)}, {4096 * u}, {vr(vL)}")
    I(f"v_add_u32 {C(6)}, 4096, {C(0)}")
    I(f"v_lshlrev_b32 {C(7)}, 9, {C(2)}")

    def st_o(reg, sd):
        for u in range(4):
            st16(k, reg if reg == FF else reg + 4 * u, C(6 if u // 2 else 0), sd, (u % 2) * 2048)

    for a in range(0, AHEAD, 2):
        I(f"s_add_u32 {sr(sT0)}, {sr(sDst)}, {a * 256 * 1024}")
        st_o(FF, sT0)
    I(f"s_lshl_b32 {sr(sT0)}, {sr(sC1)}, 4")
    I(f"v_add_u32 {C(1)}, {sr(sT0)}, {C(1)}")
    for j in range(8):
        I(f"v_cmp_le_i32 {sr(sMask + 2 * j, 2)}, {8 * (j // 4) + j % 4}, {C(1)}")
    I(f"s_sub_u32 {sr(sT0)}, {FL_Q - FL_KV}, {sr(sIdx)}")
    I(f"s_lshr_b32 {sr(sT1)}, {sr(sIdx)}, 1")
    I(f"s_add_u32 {sr(sT0)}, {sr(sT0)}, {sr(sT1)}")
    I(f"s_lshl_b32 {sr(sT0)}, {sr(sT0)}, 7")
    I(f"v_mul_lo_u32 {C(3)}, {C(3)}, {sr(sT0)}")
    I(f"v_add_u32 {C(3)}, {C(3)}, {C(2)}")
    I(f"s_lshl_b32 {sr(sT0)}, {sr(sIdx)}, 7")
    I(f"s_add_u32 {sr(sPoll)}, {sr(sT0)}, {hex(fl(FL_KV))}")
    I(f"v_mov_b32 v6, {f32(-1e30)}")
    I(f"s_mov_b32 {sr(sKn)}, 0")
    I(f"s_mov_b32 s76, 0xff00ff00")
    I(f"s_mov_b32 s77, 0xff00ff00")
    I(f"v_mov_b64 {vr(X, 2)}, 0")
    for r in range(2, 16, 2):
        I(f"v_mov_b64 {vr(X + r, 2)}, 0")
    I("s_waitcnt vmcnt(0)")
    put_flag(k, 1, add=201)
    off = lambda u: vr(vL) if u == 0 else vr(2 + u)

    def known(lab, need):
        I(f"s_cmp_ge_u32 {sr(sKn)}, {need}")
        I(f"s_cbranch_scc1 {lab}_ok")
        spin(k, lab, C(3), sr(sPoll), need)
        r = red8(k, "v_min_u32", 96, 97)
        I(f"v_readfirstlane_b32 {sr(sKn)}, {vr(r)}")
        k.L(f"{lab}_ok")

    def ld_qk():
        for u in range(4):
            I(f"buffer_load_dwordx4 {vr(Q + 4 * u, 4)}, {vr(vL)}, {sr(S_WS, 4)}, {sr(sQ)} offen offset:{u * 1024} sc1")
            for kt in range(2):
                I(f"buffer_load_dwordx4 {vr(KK + 8 * u + 4 * kt, 4)}, {off(u)}, {sr(S_WS, 4)}, {sr(sK)} offen "
                  f"offset:{kt * 1024} sc1")

    def ld_v():
        for u in range(4):
            for et in range(2):
                I(f"buffer_load_dwordx4 {vr(V + 8 * u + 4 * et, 4)}, {off(u)}, {sr(S_WS, 4)}, {sr(sK)} offen "
                  f"offset:{2048 + et * 1024} sc1")

    I(f"s_add_u32 {sr(sNeed)}, {sr(sSeg)}, 1")
    known("at_k0", sr(sNeed))
    ld_qk()
    ld_v()
    I("s_waitcnt vmcnt(0)")
    k.L("at_loop")
    k.forget()
    for u in range(4):
        I(f"s_waitcnt vmcnt({12 + 3 * (3 - u)})")
        for kt in range(2):
            I(f"v_mfma_f32_16x16x32_bf16 {vr(S + 4 * kt, 4)}, {vr(KK + 8 * u + 4 * kt, 4)}, {vr(Q + 4 * u, 4)}, "
              f"{vr(S + 4 * kt, 4) if u else 0}")
    I(f"s_add_u32 {sr(sQ)}, {sr(sQ)}, {2 * 32 * 8192}")
    I(f"s_add_u32 {sr(sK)}, {sr(sK)}, {2 * 32 * 16384}")
    for j in range(8):
        I(f"v_cndmask_b32_e64 {vr(S + j)}, v6, {vr(S + j)}, {sr(sMask + 2 * j, 2)}")
    I(f"v_max3_f32 v2, {vr(S)}, {vr(S + 1)}, {vr(S + 2)}")
    I(f"v_max3_f32 v2, v2, {vr(S + 3)}, {vr(S + 4)}")
    I(f"v_max3_f32 v2, v2, {vr(S + 5)}, {vr(S + 6)}")
    I(f"v_max_f32 v2, v2, {vr(S + 7)}")
    I(f"s_add_u32 {sr(sNeed)}, {sr(sSeg)}, 3")
    I(f"s_min_u32 {sr(sNeed)}, {sr(sNeed)}, 64")
    known("at_k1", sr(sNeed))
    if OPT.get("lp", 1):
        k.L("at_look")
        I(f"buffer_load_dword v92, {C(7)}, {sr(S_WS, 4)}, {sr(sKM)} offen offset:{240 if OPT.get('lp', 1) == 1 else 1024} sc1")
        I(f"s_sub_u32 {sr(sBud)}, {sr(sBud)}, 1")
        I("s_cbranch_scc1 all_exit")
        I("s_waitcnt vmcnt(0)")
        I(f"v_cmp_eq_u32 vcc, -1, v92")
        I(f"s_cbranch_vccnz at_look")
    k.L("at_again")
    I("s_mov_b64 exec, s[76:77]")
    for u in range(4):
        I(f"buffer_load_dwordx4 {vr(X + 4 * u, 4)}, {off(u // 2)}, {sr(S_WS, 4)}, {sr(sKM)} offen "
          f"offset:{(u % 2) * 2048} sc1")
    I("s_mov_b64 exec, -1")
    for u in range(4):
        I(f"buffer_load_dwordx4 {vr(VM + 4 * u, 4)}, {off(u // 2)}, {sr(S_WS, 4)}, {sr(sKM)} offen "
          f"offset:{1024 + (u % 2) * 2048} sc1")
    I(f"s_sub_u32 {sr(sBud)}, {sr(sBud)}, 1")
    I("s_cbranch_scc1 all_exit")
    for u in range(4):
        I(f"v_mfma_f32_16x16x32_bf16 {vr(SM, 4)}, {vr(X + 4 * u, 4)}, {vr(Q + 4 * u, 4)}, {vr(SM, 4) if u else 0}")
    I(f"v_max3_u32 v92, {vr(X)}, {vr(X + 4)}, {vr(X + 8)}")
    I(f"v_max3_u32 v92, v92, {vr(X + 12)}, {vr(VM)}")
    I(f"v_max3_u32 v92, v92, {vr(VM + 4)}, {vr(VM + 8)}")
    I(f"v_max_u32 v92, v92, {vr(VM + 12)}")
    I(f"v_cmp_eq_u32 vcc, -1, v92")
    I(f"s_cbranch_vccnz at_again")
    stamp(k, sr(sSeg), add=131)
    I(f"s_add_u32 {sr(sKM)}, {sr(sKM)}, {2 * 32 * 8192}")
    I("s_mov_b32 exec_hi, 0")
    for r in range(4):
        I(f"v_mov_b32 {vr(SM + r)}, v6")
    I("s_mov_b32 exec_hi, -1")
    I(f"v_max3_f32 v2, v2, {vr(SM)}, {vr(SM + 1)}")
    I(f"v_max3_f32 v92, v2, {vr(SM + 2)}, {vr(SM + 3)}")
    I(f"v_max3_f32 v93, v2, {vr(SM + 2)}, {vr(SM + 3)}")
    I("v_permlane16_swap_b32 v92, v93")
    I("v_max_f32 v2, v92, v93")
    I("v_max_f32 v92, v92, v93")
    I("v_permlane32_swap_b32 v2, v92")
    I("v_max_f32 v2, v2, v92")
    I(f"v_mul_f32 v2, {sr(sC0)}, v2")
    for r in range(12):
        I(f"v_fma_f32 {vr(S + r)}, {vr(S + r)}, {sr(sC0)}, -v2")
    for r in range(12):
        I(f"v_exp_f32 {vr(S + r)}, {vr(S + r)}")
    for r in range(4):
        I(f"v_cvt_pk_bf16_f32 {vr(148 + r)}, {vr(S + 2 * r)}, {vr(S + 2 * r + 1)}")
    for r in (92, 94):
        I(f"v_cvt_pk_bf16_f32 {vr(r)}, {vr(SM)}, {vr(SM + 2)}")
        I(f"v_cvt_pk_bf16_f32 {vr(r + 1)}, {vr(SM + 1)}, {vr(SM + 3)}")
    Z = 88
    red = [f"v_add_f32 {vr(Z + i)}, {vr(S + i)}, {vr(S + 4 + i)}" for i in range(4)]
    red += [f"v_add_f32 {vr(Z + i)}, {vr(Z + i)}, {vr(S + 8 + i)}" for i in range(4)]
    red += [f"v_add_f32 {vr(Z)}, {vr(Z)}, {vr(Z + 1)}", f"v_add_f32 {vr(Z + 2)}, {vr(Z + 2)}, {vr(Z + 3)}",
            f"v_add_f32 {vr(Z + 1)}, {vr(Z)}, {vr(Z + 2)}", f"v_add_f32 {vr(Z)}, {vr(Z)}, {vr(Z + 2)}",
            f"v_permlane16_swap_b32 {vr(Z)}, {vr(Z + 1)}", f"v_add_f32 {vr(Z + 2)}, {vr(Z)}, {vr(Z + 1)}",
            f"v_add_f32 {vr(Z)}, {vr(Z)}, {vr(Z + 1)}", f"v_permlane32_swap_b32 {vr(Z)}, {vr(Z + 2)}",
            f"v_add_f32 {vr(Z)}, {vr(Z)}, {vr(Z + 2)}", f"v_rcp_f32 {vr(Z)}, {vr(Z)}"]
    red = ["v_permlane32_swap_b32 v92, v94", "v_permlane32_swap_b32 v93, v95"] + red
    for u in range(4):
        for et in range(2):
            I(f"v_mfma_f32_16x16x32_bf16 {vr(O + 8 * u + 4 * et, 4)}, {vr(V + 8 * u + 4 * et, 4)}, {vr(148, 4)}, 0")
            for _ in range(2):
                I(red.pop(0))
    for u in range(4):
        for et in range(2):
            I(f"v_mfma_f32_16x16x16_bf16 {vr(O + 8 * u + 4 * et, 4)}, {vr(VM + 4 * u + 2 * et, 2)}, "
              f"v[94:95], {vr(O + 8 * u + 4 * et, 4)}")
            if red:
                I(red.pop(0))
    for u in range(4):
        for r in range(0, 8, 2):
            I(f"v_pk_mul_f32 {vr(O + 8 * u + r, 2)}, {vr(O + 8 * u + r, 2)}, {vr(Z, 2)} op_sel_hi:[1,0]")
        for r in range(4):
            I(f"v_cvt_pk_bf16_f32 {vr(PK + 4 * u + r)}, {vr(O + 8 * u + 2 * r)}, {vr(O + 8 * u + 2 * r + 1)}")
        st16(k, PK + 4 * u, C(6 if u // 2 else 0), sDst, (u % 2) * 2048)
    I(f"s_add_u32 {sr(sSeg)}, {sr(sSeg)}, 2")
    I(f"s_sub_u32 {sr(sT1)}, {sr(sSeg)}, 1")
    stamp(k, sr(sT1))
    I(f"s_cmp_ge_u32 {sr(sSeg)}, 64")
    I("s_cbranch_scc1 all_exit")
    ld_qk()
    ld_v()
    I(f"s_add_u32 {sr(sT0)}, {sr(sDst)}, {AHEAD * 256 * 1024}")
    st_o(FF, sT0)
    I(f"s_add_u32 {sr(sDst)}, {sr(sDst)}, {2 * 256 * 1024}")
    I("s_branch at_loop")


def all_roles(k):
    role_proj(k, False)
    role_proj(k, True)
    role_gu(k)
    role_red(k, False)
    role_red(k, True)
    role_ln(k)
    role_sum(k, False)
    role_sum(k, True)
    role_at(k)
```
